```python
import torch

def _softmax(x, axis=-1):
    return torch.softmax(x, dim=axis)
def _gelu(x):
    return torch.nn.functional.gelu(x, approximate="tanh")
def _silu(x):
    return torch.nn.functional.silu(x)
def _sigmoid(x):
    return torch.sigmoid(x)
def _layernorm(x, axis=-1, eps=1e-5):
    m = x.mean(dim=axis, keepdim=True)
    v = x.var(dim=axis, keepdim=True, unbiased=False)
    return (x - m) / torch.sqrt(v + eps)
def _scatter_add(tgt, idx, src, axis=0):
    return tgt.clone().index_add_(axis, idx, src)
def _segment_sum(src, seg, n):
    out = torch.zeros((n,) + src.shape[1:], dtype=src.dtype)
    return out.index_add_(0, seg, src)
def _pad(x, pw):
    flat = tuple(v for pair in reversed(pw) for v in pair)
    return torch.nn.functional.pad(x, flat)

kernel_name = 'standalone__gqa_softmax__near_ridge'

def setup_inputs():

    _w = (lambda a: (lambda t: t.to(torch.bfloat16) if t.is_floating_point() else t)(torch.as_tensor(a)))
    B, Hq, Hkv, Sq, Sk, D = 32, 16, 8, 256, 256, 256
    return {
        "q": _w((lambda *s: torch.randn(*s, dtype=torch.bfloat16) * 0.8)(B, Hq, Sq, D)),
        "k": _w((lambda *s: torch.randn(*s, dtype=torch.bfloat16) * 0.8)(B, Hkv, Sk, D)),
        "v": _w((lambda *s: torch.randn(*s, dtype=torch.bfloat16) * 0.05)(B, Hkv, Sk, D)),
    }

def reference(q, k, v):
    B, Hq, Sq, D = q.shape
    Hkv = k.shape[1]
    rep = Hq // Hkv
    k = (lambda x, n, axis: torch.repeat_interleave(x, n, dim=axis))(k, rep, axis=1)
    v = (lambda x, n, axis: torch.repeat_interleave(x, n, dim=axis))(v, rep, axis=1)
    scale = D ** -0.5
    scores = torch.einsum("bhqd,bhkd->bhqk", q, k) * scale
    p = _softmax(scores, axis=-1)
    return torch.einsum("bhqk,bhkd->bhqd", p, v)
```

```python
def V(n, cnt=1):
    return [("v", n + i) for i in range(cnt)]


def S(n, cnt=1):
    return [("s", n + i) for i in range(cnt)]


def vr(n, cnt=1):
    return f"v{n}" if cnt == 1 else f"v[{n}:{n + cnt - 1}]"


def sr(n, cnt=1):
    return f"s{n}" if cnt == 1 else f"s[{n}:{n + cnt - 1}]"


class I:
    __slots__ = ("text", "kind", "rd", "wr", "c_rd", "tag", "nws")

    def __init__(self, text, kind, rd=(), wr=(), c_rd=(), tag=None, nws=1):
        self.text = text
        self.kind = kind
        self.rd = set(rd)
        self.wr = set(wr)
        self.c_rd = set(c_rd)
        self.tag = tag
        self.nws = nws

    def __repr__(self):
        return self.text


def _regs(op):
    if isinstance(op, tuple):
        k, n, c = op
        return [(k, n + i) for i in range(c)]
    return []


def _txt(op):
    if isinstance(op, tuple):
        k, n, c = op
        return f"{k}{n}" if c == 1 else f"{k}[{n}:{n + c - 1}]"
    return str(op)


def v(n, c=1):
    return ("v", n, c)


def s(n, c=1):
    return ("s", n, c)


TRANS = ("v_exp_f32", "v_rcp_f32", "v_log_f32", "v_rsq_f32", "v_sqrt_f32")


def valu(op, dst, *srcs, mods=""):
    kind = "trans" if op in TRANS else "valu"
    rd = []
    for x in srcs:
        if isinstance(x, tuple) and len(x) == 2 and x[0] == "neg":
            rd += _regs(x[1])
        else:
            rd += _regs(x)
    if op in ("v_fmac_f32",):
        rd += _regs(dst)

    def t(x):
        if isinstance(x, tuple) and len(x) == 2 and x[0] == "neg":
            return "-" + _txt(x[1])
        return _txt(x)

    text = f"{op} {_txt(dst)}, " + ", ".join(t(x) for x in srcs) + mods
    return I(text, kind, rd, _regs(dst))


def salu(op, dst, *srcs):
    rd = []
    for x in srcs:
        rd += _regs(x)
        if x == "m0":
            rd.append("m0")
    wr = _regs(dst) if isinstance(dst, tuple) else ([dst] if dst == "m0" else [])
    parts = ([_txt(dst)] if dst is not None else []) + [_txt(x) for x in srcs]
    return I(f"{op} " + ", ".join(parts), "salu", rd, wr)


def scmp(op, a, b):
    return I(f"{op} {_txt(a)}, {_txt(b)}", "salu", _regs(a) + _regs(b), [])


def mfma(d, a, b, c):
    ctxt = vr(c, 16) if c is not None else "0"
    crd = V(c, 16) if c is not None else []
    return I(
        f"v_mfma_f32_32x32x16_bf16 {vr(d, 16)}, {vr(a, 4)}, {vr(b, 4)}, {ctxt}",
        "mfma",
        V(a, 4) + V(b, 4) + crd,
        V(d, 16),
        c_rd=crd,
    )


def ds_read(op, dst, cnt, addr, off=0):
    assert 0 <= off < 65536, off
    o = f" offset:{off}" if off else ""
    return I(f"{op} {vr(dst, cnt)}, v{addr}{o}", "dsr", V(addr), V(dst, cnt))


def ds_write(op, addr, src, cnt, off=0):
    assert 0 <= off < 65536, off
    o = f" offset:{off}" if off else ""
    return I(f"{op} v{addr}, {vr(src, cnt)}{o}", "dsw", V(addr) + V(src, cnt), [])


def buf_lds(voff, srd, soff, mods=""):
    so = _txt(soff)
    return I(
        f"buffer_load_dwordx4 v{voff}, {sr(srd, 4)}, {so} offen{mods} lds",
        "vmem_lds",
        V(voff) + S(srd, 4) + _regs(soff) + ["m0"],
        [],
    )


def buf_store(data, voff, srd, soff, mods=""):
    so = _txt(soff)
    return I(
        f"buffer_store_dwordx4 {vr(data, 4)}, v{voff}, {sr(srd, 4)}, {so} offen{mods}",
        "vmem_st",
        V(data, 4) + V(voff) + S(srd, 4) + _regs(soff),
        [],
    )


def perm32swap(a, b):
    return I(f"v_permlane32_swap_b32 v{a}, v{b}", "perm", V(a) + V(b), V(a) + V(b))


def rfl(sd, vs):
    return I(f"v_readfirstlane_b32 s{sd}, v{vs}", "rfl", V(vs), S(sd))


def waitcnt(vm=None, lgkm=None):
    parts = []
    if vm is not None:
        assert 0 <= vm <= 63
        parts.append(f"vmcnt({vm})")
    if lgkm is not None:
        assert 0 <= lgkm <= 15
        parts.append(f"lgkmcnt({lgkm})")
    i = I("s_waitcnt " + " ".join(parts), "wait")
    i.tag = (vm, lgkm)
    return i


def barrier():
    return I("s_barrier", "barrier")


def label(name):
    return I(f"{name}:", "label", nws=0)


def nop(n):
    assert 1 <= n <= 16
    return I(f"s_nop {n - 1}", "nop", nws=n)


def raw(text, kind="salu", rd=(), wr=()):
    return I(text, kind, rd, wr)


def comment(text):
    return I(f"; {text}", "label", nws=0)


def insert_lgkm_waits(insts, queue=None):
    out = []
    q = list(queue or [])

    def need(idx):
        n = len(q) - idx - 1
        return min(n, 15)

    for ins in insts:
        if ins.kind == "wait":
            vm, lg = ins.tag
            if lg is not None:
                del q[: max(0, len(q) - lg)]
            out.append(ins)
            continue
        touched = ins.rd | ins.wr
        idx = -1
        for k, op in enumerate(q):
            if op.kind == "dsr" and (op.wr & touched):
                idx = k
            if ins.kind == "barrier" and op.kind == "dsw":
                idx = k
        if idx >= 0:
            n = need(idx)
            if out and out[-1].kind == "wait" and out[-1].tag[1] is None:
                out[-1] = waitcnt(vm=out[-1].tag[0], lgkm=n)
            else:
                out.append(waitcnt(lgkm=n))
            del q[: len(q) - n]
        if ins.kind in ("dsr", "dsw"):
            q.append(ins)
            if len(q) > 15:
                out.append(waitcnt(lgkm=14))
                del q[: len(q) - 1 - 14]
        out.append(ins)
    return out, q


def required_ws(p, c):
    need = 0
    pv = p.kind in ("valu", "trans", "perm", "rfl")
    cv = c.kind in ("valu", "trans", "perm", "rfl")
    pw = p.wr
    if pv and c.kind == "mfma" and (pw & c.rd):
        need = max(need, 2)
    if p.kind == "mfma":
        d = p.wr
        if c.kind == "mfma":
            ab = c.rd - c.c_rd
            if d & ab:
                need = max(need, 12)
            if d & c.c_rd and c.c_rd != d:
                need = max(need, 10)
            if (d & c.wr) and c.wr != d:
                need = max(need, 12)
            if c.wr == d and not c.c_rd:
                need = max(need, 10)
        else:
            if d & (c.rd | c.wr):
                need = max(need, 12)
        if cv and (p.c_rd & c.wr):
            need = max(need, 7)
    if p.kind == "trans" and c.kind in ("valu", "perm", "rfl") and (pw & c.rd):
        need = max(need, 1)
    if p.kind == "trans" and c.kind in ("dsw", "vmem_st") and (pw & c.rd):
        need = max(need, 1)
    if pv and c.kind == "perm" and (pw & c.rd):
        need = max(need, 2)
    if pv and c.kind == "rfl" and (pw & c.rd):
        need = max(need, 1)
    sw = {r for r in pw if isinstance(r, tuple) and r[0] == "s"}
    if pv and sw:
        if c.kind in ("vmem_lds", "vmem_st", "vmem_ld") and (sw & c.rd):
            need = max(need, 5)
        if cv and (sw & c.rd):
            need = max(need, 2)
        if c.kind == "salu" and (sw & c.rd):
            need = max(need, 4)
    if p.kind == "salu" and "m0" in pw and c.kind == "vmem_lds":
        need = max(need, 1)
    if p.kind == "vmem_st" and (p.rd & c.wr):
        need = max(need, 2)
    return need


def pad_hazards(insts, history=None, window=24):
    out = list(history or [])
    h = len(out)
    for ins in insts:
        if ins.kind == "label":
            out.append(ins)
            continue
        dist = 0
        short = 0
        k = len(out) - 1
        while k >= 0 and dist < window:
            p = out[k]
            if p.kind != "label":
                r = required_ws(p, ins)
                if r > dist:
                    short = max(short, r - dist)
                dist += p.nws
            k -= 1
        while short > 0:
            n = min(short, 16)
            out.append(nop(n))
            short -= n
        out.append(ins)
    return out[h:]


def render(insts):
    lines = []
    for i in insts:
        if i.kind == "label":
            lines.append(i.text)
        else:
            lines.append("    " + i.text)
    return "\n".join(lines)
```

```python
import struct
import sys
import os

sys.path.insert(0, os.path.dirname(__file__))
from asmlib import *

NAME = "standalone__gqa_softmax__near_ridge"

R = 20416
QS = 2112
NQ = 6
STG = QS
POFF = NQ * QS
OOFF = POFF + 4096
XOFF = OOFF + 2048
LDS_BYTES = 8 * R
assert XOFF + 1536 <= R and LDS_BYTES <= 163840 and STG + 16384 <= R

KF = 0
VF = 64
SA = [128, 144]
OA = 160
FB = 176
NB = 8
PP = 208
OP = 216
XV = 224
MC, INV, LSUM, LMAX, T0, T1, T2 = 232, 233, 234, 235, 236, 237, 238
VQ, VQB = 240, 241
VPR = 242
VPW, VXW, VXR, VOW0, VOW1, VOR, VQD, VOS = 245, 246, 247, 248, 249, 250, 251, 252
VL = 253

SRD_K, SRD_Q, SRD_O, SRD_V = 4, 8, 12, 16
SPTR = 20
SW, SWR = 28, 29
SQSO, SQSO1, SQM0, SQRD, SOSO, SOSO1, STICK, SC, ST0, ST1 = 30, 31, 32, 33, 34, 35, 36, 37, 38, 39
SMASK = 40
SQLIM = 42
SQE, SOE = 43, 44

C_SCALE = 1.4426950408889634 / 16.0


def f32bits(x):
    return struct.unpack("<I", struct.pack("<f", x))[0]


LD_MODS = os.environ.get("LD_MODS", "")
ST_MODS = os.environ.get("ST_MODS", "")
LA = int(os.environ.get("LA", "6"))


def prologue():
    p = []
    a = p.append
    a(scmp("s_cmp_ge_u32", s(2), 256))
    a(raw("s_cbranch_scc1 L_end", "branch"))
    a(raw(f"s_load_dwordx4 {sr(SPTR, 4)}, s[0:1], 0", "smem", wr=S(SPTR, 4)))
    a(raw(f"s_load_dwordx4 {sr(SPTR + 4, 4)}, s[0:1], 16", "smem", wr=S(SPTR + 4, 4)))
    a(valu("v_and_b32", v(VL), 63, v(0)))
    a(valu("v_lshrrev_b32", v(T0), 6, v(0)))
    a(rfl(SW, T0))
    tq, th, tA, tB, tC, vKe, vKo = 128, 129, 130, 131, 132, 133, 134
    a(valu("v_and_b32", v(tq), 31, v(VL)))
    a(valu("v_lshrrev_b32", v(th), 5, v(VL)))
    a(valu("v_lshrrev_b32", v(tA), 3, v(VL)))
    a(valu("v_lshlrev_b32", v(tA), 9, v(tA)))
    a(valu("v_and_b32", v(tB), 7, v(VL)))
    a(valu("v_lshrrev_b32", v(tC), 4, v(VL)))
    a(valu("v_xor_b32", v(tB), v(tB), v(tC)))
    a(valu("v_lshl_add_u32", v(vKe), v(tB), 4, v(tA)))
    a(valu("v_xor_b32", v(vKo), 64, v(vKe)))
    a(salu("s_mul_i32", s(SWR), s(SW), R))
    a(salu("s_lshl_b32", s(ST0), s(2), 18))
    a(salu("s_lshl_b32", s(ST1), s(2), 17))
    a(raw("s_waitcnt lgkmcnt(0)", "wait0"))
    for srd, ptr, off, size in (
        (SRD_K, SPTR + 2, ST1, 131072),
        (SRD_Q, SPTR + 0, ST0, 262144),
        (SRD_V, SPTR + 4, ST1, 131072),
        (SRD_O, SPTR + 6, ST0, 0),
    ):
        a(salu("s_add_u32", s(srd), s(ptr), s(off)))
        a(salu("s_addc_u32", s(srd + 1), s(ptr + 1), 0))
        a(salu("s_and_b32", s(srd + 1), s(srd + 1), "0xffff"))
        a(salu("s_mov_b32", s(srd + 2), size))
        a(salu("s_mov_b32", s(srd + 3), "0x00020000"))
    a(salu("s_lshl_b32", s(ST0), s(SW), 14))
    for j in range(4):
        for n in range(4):
            a(salu("s_add_u32", "m0", s(SWR), STG + j * 4096 + n * 1024))
            a(salu("s_add_u32", s(ST1), s(ST0), j * 128 + n * 4096))
            a(buf_lds(vKo if n & 1 else vKe, SRD_K, s(ST1), LD_MODS))
    a(salu("s_lshl_b32", s(ST0), s(SW), 11))
    a(valu("v_xor_b32", v(tA), v(tq), v(th)))
    a(valu("v_lshlrev_b32", v(tA), 4, v(tA)))
    a(valu("v_lshl_add_u32", v(tA), v(th), 9, v(tA)))
    a(valu("v_add_u32", v(VQD), s(ST0), v(tA)))

    def qload(blk):
        a(salu("s_add_u32", "m0", s(SWR), (blk % NQ) * QS))
        a(salu("s_mov_b32", s(ST1), blk * 16384))
        a(buf_lds(VQD, SRD_Q, s(ST1), LD_MODS))
        a(salu("s_add_u32", "m0", s(SWR), (blk % NQ) * QS + 1056))
        a(salu("s_mov_b32", s(ST1), blk * 16384 + 1024))
        a(buf_lds(VQD, SRD_Q, s(ST1), LD_MODS))

    def dummy_st():
        a(buf_store(OP, VOS, SRD_O, 0))
        a(buf_store(OP, VOS, SRD_O, 0))

    qload(0)
    a(salu("s_lshl_b32", s(ST0), s(SW), 6))
    a(valu("v_lshrrev_b32", v(tA), 2, v(VL)))
    a(valu("v_and_b32", v(tB), 3, v(VL)))
    a(valu("v_lshlrev_b32", v(tC), 9, v(tA)))
    a(valu("v_lshl_add_u32", v(tC), v(tB), 4, v(tC)))
    a(valu("v_add_u32", v(VOS), s(ST0), v(tC)))
    a(valu("v_bfe_u32", v(tC), v(VL), 3, 2))
    a(valu("v_xor_b32", v(tC), v(tC), v(tB)))
    a(valu("v_lshlrev_b32", v(tC), 4, v(tC)))
    a(valu("v_lshl_add_u32", v(tC), v(tA), 6, v(tC)))
    a(salu("s_add_u32", s(ST0), s(SWR), OOFF))
    a(valu("v_add_u32", v(VOR), s(ST0), v(tC)))
    a(valu("v_bfe_u32", v(tC), v(tq), 1, 2))
    a(valu("v_lshlrev_b32", v(tB), 1, v(th)))
    a(valu("v_xor_b32", v(tC), v(tC), v(tB)))
    a(valu("v_lshlrev_b32", v(tC), 4, v(tC)))
    a(valu("v_lshl_add_u32", v(tC), v(tq), 6, v(tC)))
    a(valu("v_xor_b32", v(tB), 16, v(tC)))
    a(valu("v_add_u32", v(VOW0), s(ST0), v(tC)))
    a(valu("v_add_u32", v(VOW1), s(ST0), v(tB)))
    a(valu("v_lshrrev_b32", v(tA), 2, v(tq)))
    a(valu("v_mul_u32_u24", v(tA), R, v(tA)))
    a(valu("v_bfe_u32", v(tB), v(tq), 1, 1))
    a(valu("v_mul_u32_u24", v(tB), 1056, v(tB)))
    a(valu("v_add_u32", v(tA), v(tA), v(tB)))
    a(valu("v_and_b32", v(tB), 1, v(tq)))
    a(valu("v_lshl_add_u32", v(tA), v(tB), 9, v(tA)))
    a(valu("v_xor_b32", v(tB), v(tB), v(th)))
    a(valu("v_lshl_add_u32", v(VQB), v(tB), 4, v(tA)))
    a(valu("v_mov_b32", v(VQ), v(VQB)))
    a(valu("v_lshlrev_b32", v(VPR), 4, v(VL)))
    a(valu("v_add_u32", v(VPR + 1), 3 * R, v(VPR)))
    a(valu("v_add_u32", v(VPR + 2), 6 * R, v(VPR)))
    a(valu("v_add_u32", v(VPW), s(SWR), v(VPR)))
    a(valu("v_mul_u32_u24", v(tA), R, v(th)))
    a(valu("v_mul_u32_u24", v(tB), 48, v(tq)))
    a(valu("v_add_u32", v(tA), v(tA), v(tB)))
    a(valu("v_add_u32", v(VXR), XOFF, v(tA)))
    a(valu("v_lshrrev_b32", v(tB), 3, v(tq)))
    a(valu("v_xor_b32", v(tB), s(SW), v(tB)))
    a(valu("v_lshl_add_u32", v(VXW), v(tB), 2, v(VXR)))
    vKA = 136
    a(valu("v_bfe_u32", v(tA), v(tq), 1, 3))
    a(valu("v_xor_b32", v(tA), v(tA), v(th)))
    a(valu("v_lshlrev_b32", v(tA), 4, v(tA)))
    a(valu("v_lshl_add_u32", v(tA), v(tq), 7, v(tA)))
    for k in range(4):
        a(valu("v_xor_b32", v(tB), 32 * k, v(tA)))
        a(valu("v_add_u32", v(vKA + k), s(SWR), v(tB)))
    vVA = 140
    a(valu("v_bfe_u32", v(tA), v(VL), 2, 2))
    a(valu("v_lshl_add_u32", v(tA), v(th), 2, v(tA)))
    a(valu("v_lshlrev_b32", v(tA), 6, v(tA)))
    a(valu("v_and_b32", v(tB), 1, v(VL)))
    a(valu("v_lshl_add_u32", v(tA), v(tB), 5, v(tA)))
    a(valu("v_bfe_u32", v(tB), v(VL), 4, 1))
    a(valu("v_lshl_add_u32", v(tA), v(tB), 4, v(tA)))
    a(valu("v_bfe_u32", v(tB), v(VL), 1, 1))
    a(valu("v_lshl_add_u32", v(tA), v(tB), 3, v(tA)))
    a(valu("v_add_u32", v(vVA), s(SWR), v(tA)))
    a(salu("s_mov_b32", s(SC), hex(f32bits(C_SCALE))))
    a(salu("s_mov_b32", s(SMASK), -1))
    a(salu("s_mov_b32", s(SMASK + 1), 0))
    a(salu("s_mov_b32", s(SQSO), 5 * 16384))
    a(salu("s_add_u32", s(SQM0), s(SWR), 5 * QS))
    a(salu("s_add_u32", s(SQLIM), s(SWR), NQ * QS))
    a(salu("s_mov_b32", s(SQRD), 0))
    a(salu("s_mov_b32", s(SOSO), hex((-3 * 16384) & 0xFFFFFFFF)))
    a(salu("s_mov_b32", s(STICK), 0))

    for j in range(4):
        a(waitcnt(vm=14))
        for k in range(4):
            a(ds_read("ds_read_b128", KF + 4 * (4 * j + k), 4, vKA + k, STG + 4096 * j))
        a(waitcnt(lgkm=0))
        for n in range(4):
            a(salu("s_add_u32", "m0", s(SWR), STG + j * 4096 + n * 1024))
            a(salu("s_mov_b32", s(ST1), j * 32768 + n * 8192))
            a(buf_lds(VOS, SRD_V, s(ST1), LD_MODS))
    vw = [12, 10, 14, 14]
    for j in range(4):
        a(waitcnt(vm=vw[j]))
        for ml in range(4):
            for aa in range(2):
                a(ds_read("ds_read_b64_tr_b16", VF + 4 * (4 * j + ml) + 2 * aa, 2, vVA,
                          STG + 4096 * j + (16 * ml + 8 * aa) * 64))
        a(waitcnt(lgkm=0))
        if j == 0:
            qload(1)
        elif j == 1:
            qload(2); dummy_st(); qload(3); dummy_st()
        elif j == 2:
            qload(4); dummy_st()
    a(waitcnt(vm=12))
    a(barrier())
    return p


def frag_read(f, par):
    buf = FB + 4 * (f % NB)
    f2 = f % 32
    if f2 < 16:
        return ds_read("ds_read_b128", buf, 4, VQ, 32 * f2)
    m = f2 - 16
    wq, b = m >> 1, m & 1
    g, r3 = wq // 3, wq % 3
    return ds_read("ds_read_b128", buf, 4, VPR + g, r3 * R + POFF + (1 - par) * 2048 + b * 1024)


def tick(par):
    Sc, Sn = SA[par], SA[1 - par]
    slots = [[] for _ in range(33)]
    pre = []

    xs = (1 - par) * 2 * R
    pre.append(ds_read("ds_read_b128", XV, 4, VXR, xs))
    pre.append(ds_read("ds_read_b128", XV + 4, 4, VXR, xs + 16))

    qd = [
        scmp("s_cmp_lt_u32", s(SQSO), 262144),
        salu("s_cselect_b32", s(SRD_Q + 2), 262144, 0),
        salu("s_cselect_b32", s(SQE), s(SQSO), 0),
        salu("s_mov_b32", "m0", s(SQM0)),
        salu("s_add_u32", s(SQSO1), s(SQE), 1024),
        buf_lds(VQD, SRD_Q, s(SQE), LD_MODS),
        salu("s_add_u32", "m0", s(SQM0), 1056),
        salu("s_add_u32", s(SQSO), s(SQSO), 16384),
        buf_lds(VQD, SRD_Q, s(SQSO1), LD_MODS),
        salu("s_add_u32", s(SQM0), s(SQM0), QS),
        scmp("s_cmp_eq_u32", s(SQM0), s(SQLIM)),
        salu("s_cselect_b32", s(SQM0), s(SWR), s(SQM0)),
    ]
    E = []
    for hlf in range(2):
        for r in range(8):
            E.append(valu("v_mul_f32", v(OA + 8 * hlf + r), v(OA + 8 * hlf + r), v(INV)))
        for r in range(4):
            E.append(valu("v_cvt_pk_bf16_f32", v(OP + 4 * hlf + r), v(OA + 8 * hlf + 2 * r), v(OA + 8 * hlf + 2 * r + 1)))
        E.append(ds_write("ds_write_b128", VOW1 if hlf else VOW0, OP + 4 * hlf, 4))
    Erd = [ds_read("ds_read_b128", OP, 4, VOR, 0), ds_read("ds_read_b128", OP + 4, 4, VOR, 1024)]
    D = [
        scmp("s_cmp_lt_u32", s(SOSO), 262144),
        salu("s_cselect_b32", s(SRD_O + 2), 262144, 0),
        salu("s_cselect_b32", s(SOE), s(SOSO), 0),
        salu("s_add_u32", s(SOSO1), s(SOE), 8192),
        salu("s_add_u32", s(SOSO), s(SOSO), 16384),
        buf_store(OP, VOS, SRD_O, s(SOE), ST_MODS),
        buf_store(OP + 4, VOS, SRD_O, s(SOSO1), ST_MODS),
    ]
    X = [
        valu("v_max3_f32", v(T0), v(XV), v(XV + 1), v(XV + 2)),
        valu("v_add_f32", v(T1), v(XV), v(XV + 1)),
        valu("v_add_f32", v(T2), v(XV + 2), v(XV + 3)),
        valu("v_max3_f32", v(T0), v(T0), v(XV + 3), v(XV + 4)),
        valu("v_add_f32", v(T1), v(T1), v(XV + 4)),
        valu("v_add_f32", v(T2), v(T2), v(XV + 5)),
        valu("v_max3_f32", v(T0), v(T0), v(XV + 5), v(XV + 6)),
        valu("v_add_f32", v(T1), v(T1), v(XV + 6)),
        valu("v_add_f32", v(T2), v(T2), v(XV + 7)),
        valu("v_max_f32", v(T0), v(T0), v(XV + 7)),
        valu("v_add_f32", v(T1), v(T1), v(T2)),
        valu("v_cndmask_b32", v(T0), v(T1), v(T0), s(SMASK, 2)),
        valu("v_mov_b32", v(T1), v(T0)),
        perm32swap(T0, T1),
        valu("v_mul_f32", v(MC), s(SC), v(T0)),
        valu("v_rcp_f32", v(INV), v(T1)),
    ]
    Bp = []
    for pr in range(8):
        r0, r1 = Sc + 2 * pr, Sc + 2 * pr + 1
        g = [
            valu("v_fma_f32", v(r0), v(r0), s(SC), ("neg", v(MC))),
            valu("v_fma_f32", v(r1), v(r1), s(SC), ("neg", v(MC))),
            valu("v_exp_f32", v(r0), v(r0)),
            valu("v_exp_f32", v(r1), v(r1)),
        ]
        g2 = []
        if pr == 0:
            g2.append(valu("v_add_f32", v(LSUM), v(r0), v(r1)))
        else:
            g2.append(valu("v_add_f32", v(LSUM), v(LSUM), v(r0)))
            g2.append(valu("v_add_f32", v(LSUM), v(LSUM), v(r1)))
        g2.append(valu("v_cvt_pk_bf16_f32", v(PP + pr), v(r0), v(r1)))
        if pr in (3, 7):
            g2.append(ds_write("ds_write_b128", VPW, PP + (pr - 3), 4, POFF + par * 2048 + (pr // 4) * 1024))
        Bp.append((g, g2))
    M = [
        valu("v_max3_f32", v(LMAX), v(Sn), v(Sn + 1), v(Sn + 2)),
        valu("v_max3_f32", v(T0), v(Sn + 3), v(Sn + 4), v(Sn + 5)),
        valu("v_max3_f32", v(LMAX), v(LMAX), v(Sn + 6), v(Sn + 7)),
        valu("v_max3_f32", v(T0), v(T0), v(Sn + 8), v(Sn + 9)),
        valu("v_max3_f32", v(LMAX), v(LMAX), v(Sn + 10), v(Sn + 11)),
        valu("v_max3_f32", v(T0), v(T0), v(Sn + 12), v(Sn + 13)),
        valu("v_max3_f32", v(LMAX), v(LMAX), v(Sn + 14), v(Sn + 15)),
        valu("v_max_f32", v(LMAX), v(LMAX), v(T0)),
    ]
    PUB = [
        perm32swap(LMAX, LSUM),
        valu("v_max_f32", v(T0), v(LMAX), v(LSUM)),
        valu("v_add_f32", v(T1), v(LMAX), v(LSUM)),
        valu("v_cndmask_b32", v(T0), v(T1), v(T0), s(SMASK, 2)),
        ds_write("ds_write_b32", VXW, T0, 1, par * 2 * R),
    ]
    QUPD = [
        salu("s_add_u32", s(SQRD), s(SQRD), QS),
        scmp("s_cmp_eq_u32", s(SQRD), NQ * QS),
        salu("s_cselect_b32", s(SQRD), 0, s(SQRD)),
        valu("v_add_u32", v(VQ), s(SQRD), v(VQB)),
    ]

    slots[0] += qd[:6]
    slots[1] += qd[6:]
    for k, ins in enumerate(E):
        slots[2 + k * 5 // len(E)].append(ins)
    slots[7] += Erd
    for k, ins in enumerate(X):
        slots[7 + k * 3 // len(X)].append(ins)
    slots[10] += D
    for pr, (g, g2) in enumerate(Bp):
        slots[10 + 2 * pr] += g
        slots[11 + 2 * pr] += g2
    for k, ins in enumerate(M):
        slots[19 + k // 2].append(ins)
    slots[16] += QUPD
    slots[26] += PUB

    out = list(pre)
    for i in range(32):
        buf = FB + 4 * (i % NB)
        if i < 16:
            out.append(mfma(Sn, KF + 4 * i, buf, None if i == 0 else Sn))
        else:
            m = i - 16
            out.append(mfma(OA, VF + 4 * m, buf, None if m == 0 else OA))
        out.append(frag_read(i + LA, par if i + LA < 32 else 1 - par))
        out += slots[i]
    out.append(waitcnt(vm=14))
    out.append(barrier())
    return out


def build():
    pro = prologue()
    pf = [frag_read(f, 0) for f in range(LA)]
    pro2 = pro + pf
    pro2, q0 = insert_lgkm_waits(pro2)
    pro2 = pad_hazards(pro2)

    t0 = tick(0)
    t1 = tick(1)
    mid = [
        salu("s_add_u32", s(STICK), s(STICK), 1),
        scmp("s_cmp_eq_u32", s(STICK), 19),
        raw("s_cbranch_scc1 L_end", "branch"),
    ]
    end = [
        salu("s_add_u32", s(STICK), s(STICK), 1),
        raw("s_branch L_loop", "branch"),
    ]
    body = t0 + mid + t1 + end
    b2, q1 = insert_lgkm_waits(body, q0)
    tq0, tq1 = [i.text for i in q0], [i.text for i in q1]
    assert tq0[len(tq0) - len(tq1):] == tq1, (tq0, tq1)
    h1 = pad_hazards(b2, pro2[-40:])
    h2 = pad_hazards(b2, h1[-40:])
    if [i.text for i in h1] != [i.text for i in h2]:
        h1 = pad_hazards(h2, pro2[-40:])
        h3 = pad_hazards(h1, h1[-40:])
        assert [i.text for i in h1] == [i.text for i in h3]
    return pro2, h1


HEADER = """; Kernarg layout for this problem (48 bytes, ptrs only, base s[0:1]):
; @launch grid=(256,1,1) block=(512,1,1) lds={lds}
.amdgcn_target "amdgcn-amd-amdhsa--gfx950"
.text
.globl {name}_kernel
.p2align 8
.type {name}_kernel,@function
{name}_kernel:
"""

FOOTER = """
L_end:
    s_endpgm
.section .rodata,"a"
.p2align 6
.amdhsa_kernel {name}_kernel
  .amdhsa_next_free_vgpr 256
  .amdhsa_next_free_sgpr 64
  .amdhsa_accum_offset 256
  .amdhsa_group_segment_fixed_size 0
  .amdhsa_kernarg_size 48
  .amdhsa_user_sgpr_count 2
  .amdhsa_user_sgpr_kernarg_segment_ptr 1
  .amdhsa_system_sgpr_workgroup_id_x 1
.end_amdhsa_kernel
"""


def main():
    pro, body = build()
    txt = HEADER.format(name=NAME, lds=LDS_BYTES)
    txt += render(pro) + "\n"
    txt += ".p2align 6\nL_loop:\n" + render(body) + "\n"
    txt += FOOTER.format(name=NAME)
    out = sys.argv[1] if len(sys.argv) > 1 else f"cdna_kernels/{NAME}.s"
    open(out, "w").write(txt)
    nn = sum(1 for i in body if i.kind == "nop")
    print(f"wrote {out}: prologue {len(pro)} instrs, body {len(body)} instrs ({nn} nops)")


if __name__ == "__main__":
    main()
```

```python
import struct
import sys
import os

sys.path.insert(0, os.path.dirname(__file__))
from asmlib import *

NAME = "standalone__gqa_softmax__near_ridge"
ENV = os.environ.get

QSL = 16896
NQ = 6
POFF = NQ * QSL
OOFF = POFF + 32768
XOFF = OOFF + 16384
LDS_BYTES = XOFF + 2048
KS = 2 * QSL
VS01 = POFF + 16384
assert KS + 65536 <= POFF and LDS_BYTES <= 163840

AF = 0
ACC = [128, 160]
FB = 192
NB = 8
PK = 224
XV = 240
MC, LSUM, LMAX, T0, T1 = 244, 245, 246, 247, 248
INV = [244, 245]
VQ, VQB, VPW, VXW, VXRQ = 249, 250, 251, 252, 253
VPR, VXRP, VOR, VQD, VOS = 246, 247, 248, 249, 250
VOW = 251
VL = 255
DIAG = int(ENV("DIAG", "0"))
VDG, VDT = 238, 239

SRD_A, SRD_Q, SRD_O = 4, 8, 12
SPTR = 20
SW, SWW = 28, 29
SQSO, SQM0, SQRD, SOSO, STICK, SC, ST0, ST1, ST2 = 30, 31, 32, 33, 34, 35, 36, 37, 38
SMASK = 40
SQE, SOE, SQB, SQLIM = 42, 43, 44, 45
STM = 46
SRD_W = 48
SDL = 52

C_SCALE = 1.4426950408889634 / 16.0
LD_MODS = ENV("LD_MODS", " nt")
ST_MODS = ENV("ST_MODS", "")
LA = int(ENV("LA", "5"))
ABL = ENV("ABL", "")


def f32bits(x):
    return struct.unpack("<I", struct.pack("<f", x))[0]


def stamp(lane, real=False):
    if not DIAG:
        return []
    op = "s_memrealtime" if real else "s_memtime"
    o = [raw(f"{op} {sr(STM, 2)}", "smem", wr=S(STM, 2)), waitcnt(lgkm=0)]
    if isinstance(lane, int):
        o.append(I(f"v_writelane_b32 v{VDG}, s{STM}, {lane}", "valu", S(STM), V(VDG)))
    else:
        o.append(I(f"v_cmp_eq_u32 vcc, s{lane[1]}, v{VL}", "valu", V(VL), []))
        o.append(valu("v_mov_b32", v(VDT), s(STM)))
        o.append(nop(2))
        o.append(I(f"v_cndmask_b32 v{VDG}, v{VDG}, v{VDT}, vcc", "valu", V(VDG) + V(VDT), V(VDG)))
    return o


def tick_stamps():
    if not DIAG:
        return []
    return stamp(s(STICK)) + [salu("s_add_u32", s(SDL), s(STICK), 20)] + stamp(s(SDL), True)


def diag_end():
    if not DIAG:
        return []
    o = stamp(62) + stamp(63, True)
    o += [
        raw(f"s_load_dwordx2 {sr(SRD_W, 2)}, s[0:1], 40", "smem", wr=S(SRD_W, 2)),
        waitcnt(lgkm=0),
        salu("s_mov_b32", s(SRD_W + 2), 256 * 8 * 256),
        salu("s_mov_b32", s(SRD_W + 3), "0x00020000"),
        salu("s_lshl_b32", s(ST0), s(2), 3),
        salu("s_add_u32", s(ST0), s(ST0), s(SW)),
        salu("s_lshl_b32", s(ST0), s(ST0), 8),
        valu("v_lshlrev_b32", v(VDT), 2, v(VL)),
        raw(f"buffer_store_dword v{VDG}, v{VDT}, {sr(SRD_W, 4)}, s{ST0} offen", "vmem_st", rd=V(VDG) + V(VDT)),
    ]
    return o


def srd(a, base, ptr, off, size):
    a(salu("s_add_u32", s(base), s(ptr), s(off)))
    a(salu("s_addc_u32", s(base + 1), s(ptr + 1), 0))
    a(salu("s_and_b32", s(base + 1), s(base + 1), "0xffff"))
    a(salu("s_mov_b32", s(base + 2), size))
    a(salu("s_mov_b32", s(base + 3), "0x00020000"))


tq, th, tA, tB, tC = 128, 129, 130, 131, 132


def common_head():
    p = []
    a = p.append
    a(scmp("s_cmp_ge_u32", s(2), 256))
    a(raw("s_cbranch_scc1 L_end", "branch"))
    a(salu("s_and_b32", s(3), s(2), 7))
    a(salu("s_lshl_b32", s(3), s(3), 5))
    a(salu("s_lshr_b32", s(2), s(2), 3))
    a(salu("s_add_u32", s(2), s(2), s(3)))
    if DIAG:
        a(valu("v_mov_b32", v(VDG), 0))
        p.extend(stamp(60, True))
        p.extend(stamp(61))
    a(raw(f"s_load_dwordx4 {sr(SPTR, 4)}, s[0:1], 0", "smem", wr=S(SPTR, 4)))
    a(raw(f"s_load_dwordx4 {sr(SPTR + 4, 4)}, s[0:1], 16", "smem", wr=S(SPTR + 4, 4)))
    a(valu("v_and_b32", v(VL), 63, v(0)))
    a(valu("v_lshrrev_b32", v(tA), 6, v(0)))
    a(rfl(SW, tA))
    a(valu("v_and_b32", v(tq), 31, v(VL)))
    a(valu("v_lshrrev_b32", v(th), 5, v(VL)))
    a(salu("s_and_b32", s(SWW), s(SW), 3))
    a(salu("s_lshl_b32", s(ST0), s(2), 18))
    a(salu("s_lshl_b32", s(ST1), s(2), 17))
    a(salu("s_lshl_b32", s(ST2), s(SWW), 12))
    a(valu("v_xor_b32", v(tA), v(tq), v(th)))
    a(valu("v_lshlrev_b32", v(tA), 4, v(tA)))
    a(valu("v_lshl_add_u32", v(tA), v(th), 9, v(tA)))
    a(valu("v_add_u32", v(VQD), s(ST2), v(tA)))
    a(salu("s_mul_i32", s(SQB), s(SWW), 4 * 1056))
    a(raw("s_waitcnt lgkmcnt(0)", "wait0"))
    srd(a, SRD_Q, SPTR + 0, ST0, 262144)
    a(scmp("s_cmp_ge_u32", s(SW), 4))
    a(raw("s_cbranch_scc1 L_pv", "branch"))
    return p


def qload(a, blk):
    for n in range(4):
        a(salu("s_add_u32", "m0", s(SQB), (blk % NQ) * QSL + n * 1056))
        a(salu("s_mov_b32", s(ST2), blk * 16384 + n * 1024))
        a(buf_lds(VQD, SRD_Q, s(ST2), LD_MODS))


def qk_prologue():
    p = []
    a = p.append
    vKe, vKo, vKA = 133, 134, 136
    srd(a, SRD_A, SPTR + 2, ST1, 131072)
    a(valu("v_lshrrev_b32", v(tA), 3, v(VL)))
    a(valu("v_lshlrev_b32", v(tA), 9, v(tA)))
    a(valu("v_and_b32", v(tB), 7, v(VL)))
    a(valu("v_lshrrev_b32", v(tC), 4, v(VL)))
    a(valu("v_xor_b32", v(tB), v(tB), v(tC)))
    a(valu("v_lshl_add_u32", v(vKe), v(tB), 4, v(tA)))
    a(valu("v_xor_b32", v(vKo), 64, v(vKe)))
    a(salu("s_lshl_b32", s(ST0), s(SWW), 15))
    a(salu("s_lshl_b32", s(ST1), s(SWW), 14))
    a(salu("s_add_u32", s(ST1), s(ST1), KS))

    def kload(j):
        kt, dq = j >> 2, j & 3
        for n in range(4):
            a(salu("s_add_u32", "m0", s(ST1), (j & 3) * 4096 + n * 1024))
            a(salu("s_add_u32", s(ST2), s(ST0), kt * 16384 + n * 4096 + dq * 128))
            a(buf_lds(vKo if n & 1 else vKe, SRD_A, s(ST2), LD_MODS))

    for j in range(4):
        kload(j)
    qload(a, 0)
    p.extend(stamp(51))
    a(raw("s_setprio 1", "salu"))
    a(valu("v_bfe_u32", v(tA), v(tq), 1, 3))
    a(valu("v_xor_b32", v(tA), v(tA), v(th)))
    a(valu("v_lshlrev_b32", v(tA), 4, v(tA)))
    a(valu("v_lshl_add_u32", v(tA), v(tq), 7, v(tA)))
    for k in range(4):
        a(valu("v_xor_b32", v(tB), 32 * k, v(tA)))
        a(valu("v_add_u32", v(vKA + k), s(ST1), v(tB)))
    a(valu("v_lshrrev_b32", v(tA), 1, v(tq)))
    a(valu("v_mul_u32_u24", v(tA), 1056, v(tA)))
    a(valu("v_and_b32", v(tB), 1, v(tq)))
    a(valu("v_lshl_add_u32", v(tA), v(tB), 9, v(tA)))
    a(valu("v_xor_b32", v(tB), v(tB), v(th)))
    a(valu("v_lshl_add_u32", v(VQB), v(tB), 4, v(tA)))
    a(salu("s_lshl_b32", s(ST2), s(SWW), 12))
    a(salu("s_add_u32", s(ST2), s(ST2), POFF))
    a(valu("v_lshlrev_b32", v(tA), 4, v(VL)))
    a(valu("v_add_u32", v(VPW), s(ST2), v(tA)))
    a(valu("v_lshlrev_b32", v(tA), 4, v(tq)))
    a(valu("v_add_u32", v(VXRQ), XOFF, v(tA)))
    a(valu("v_lshl_add_u32", v(tA), v(th), 9, v(VXRQ)))
    a(valu("v_lshrrev_b32", v(tB), 3, v(tq)))
    a(valu("v_xor_b32", v(tB), s(SWW), v(tB)))
    a(valu("v_lshl_add_u32", v(VXW), v(tB), 2, v(tA)))
    a(salu("s_mov_b32", s(SC), hex(f32bits(C_SCALE))))
    a(salu("s_mov_b32", s(SMASK), -1))
    a(salu("s_mov_b32", s(SMASK + 1), 0))
    a(salu("s_mov_b32", s(SQRD), 0))
    a(salu("s_mov_b32", s(STICK), 0))

    def kfrags(j):
        kt, dq = j >> 2, j & 3
        for k in range(4):
            a(ds_read("ds_read_b128", AF + 4 * (16 * kt + 4 * dq + k), 4, vKA + k, (j & 3) * 4096))

    for j in range(4):
        a(waitcnt(vm=16))
        kfrags(j)
        a(waitcnt(lgkm=0))
        kload(4 + j)
    qload(a, 1)
    a(valu("v_mov_b32", v(VQ), v(VQB)))
    p.extend(stamp(40))
    a(barrier())
    for j, w in zip(range(4, 8), (16, 12, 8, 4)):
        a(waitcnt(vm=w))
        kfrags(j)
    a(waitcnt(vm=0, lgkm=0))
    p.extend(stamp(48))
    a(barrier())
    p.extend(stamp(49))
    p.extend(stamp(59, True))
    return p


def q_frag(f):
    return ds_read("ds_read_b128", FB + 4 * (f % NB), 4, VQ, 32 * (f % 16))


def qk_tick(par, doA=True, doB=True, prefetch=True):
    Sc, Sn = ACC[par], ACC[1 - par]
    slots = [[] for _ in range(33)]
    pre = []
    NPK = 8
    if doB:
        pre.append(ds_read("ds_read_b128", XV, 4, VXRQ, (1 - par) * 1024))
        X = [
            valu("v_max3_f32", v(T0), v(XV), v(XV + 1), v(XV + 2)),
            valu("v_max_f32", v(T0), v(T0), v(XV + 3)),
            valu("v_mul_f32", v(MC), s(SC), v(T0)),
        ]
        slots[2] += X
        seq = []
        for pr in range(16):
            r0, r1 = Sc + 2 * pr, Sc + 2 * pr + 1
            g = [
                valu("v_fma_f32", v(r0), v(r0), s(SC), ("neg", v(MC))),
                valu("v_fma_f32", v(r1), v(r1), s(SC), ("neg", v(MC))),
                valu("v_exp_f32", v(r0), v(r0)),
                valu("v_exp_f32", v(r1), v(r1)),
            ]
            g2 = []
            if pr == 0:
                g2.append(valu("v_add_f32", v(LSUM), v(r0), v(r1)))
            else:
                g2.append(valu("v_add_f32", v(LSUM), v(LSUM), v(r0)))
                g2.append(valu("v_add_f32", v(LSUM), v(LSUM), v(r1)))
            g2.append(valu("v_cvt_pk_bf16_f32", v(PK + pr % NPK), v(r0), v(r1)))
            if pr % 4 == 3:
                g2.append(ds_write("ds_write_b128", VPW, PK + (pr - 3) % NPK, 4, par * 16384 + (pr // 4) * 1024))
            seq.append((g, g2))
        flat = []
        for pr in range(16):
            flat.append(seq[pr][0][:2])
            flat.append(seq[pr][0][2:])
            if pr > 0:
                flat[-2] = flat[-2] + seq[pr - 1][1]
        flat.append(seq[15][1])
        n = len(flat)
        for k, grp in enumerate(flat):
            slots[3 + k * 27 // n] += grp
    else:
        pre.append(valu("v_mov_b32", v(LSUM), 0))
    M = []
    if doA:
        M.append(valu("v_max3_f32", v(LMAX), v(Sn), v(Sn + 1), v(Sn + 2)))
        M.append(valu("v_max3_f32", v(T0), v(Sn + 16), v(Sn + 17), v(Sn + 18)))
        for k in range(6):
            M.append(valu("v_max3_f32", v(LMAX), v(LMAX), v(Sn + 3 + 2 * k), v(Sn + 4 + 2 * k)))
            M.append(valu("v_max3_f32", v(T0), v(T0), v(Sn + 19 + 2 * k), v(Sn + 20 + 2 * k)))
        M.append(valu("v_max3_f32", v(LMAX), v(LMAX), v(Sn + 15), v(Sn + 31)))
        M.append(valu("v_max_f32", v(LMAX), v(LMAX), v(T0)))
    else:
        M.append(valu("v_mov_b32", v(LMAX), 0))
    PUB = [
        perm32swap(LMAX, LSUM),
        valu("v_max_f32", v(T0), v(LMAX), v(LSUM)),
        valu("v_add_f32", v(T1), v(LMAX), v(LSUM)),
        valu("v_cndmask_b32", v(T0), v(T1), v(T0), s(SMASK, 2)),
        ds_write("ds_write_b32", VXW, T0, 1, par * 1024),
    ]
    QUPD = [
        salu("s_add_u32", s(SQRD), s(SQRD), QSL),
        scmp("s_cmp_eq_u32", s(SQRD), NQ * QSL),
        salu("s_cselect_b32", s(SQRD), 0, s(SQRD)),
        valu("v_add_u32", v(VQ), s(SQRD), v(VQB)),
    ]
    out = list(pre)
    if doA:
        upd_at = 2 * (16 - LA) - 1
        for i in range(32):
            kk, kt = i >> 1, i & 1
            d = Sn + 16 * kt
            if "A" not in ABL:
                out.append(mfma(d, AF + 4 * (16 * kt + kk), FB + 4 * (kk % NB), None if kk == 0 else d))
            if kt == 1:
                f = kk + LA
                if f == 16:
                    out += QUPD
                if f < 16 or prefetch:
                    out.append(q_frag(f))
            out += [x for x in slots[i] if not ("V" in ABL and x.kind in ("valu", "trans"))]
    else:
        for i in range(32):
            out += slots[i]
    out += M + PUB
    return out


def pv_prologue():
    p = []
    a = p.append
    vVD, vVA = 133, 134
    srd(a, SRD_A, SPTR + 4, ST1, 131072)
    srd(a, SRD_O, SPTR + 6, ST0, 0)
    a(salu("s_lshl_b32", s(ST2), s(SWW), 7))
    a(valu("v_lshrrev_b32", v(tA), 3, v(VL)))
    a(valu("v_and_b32", v(tB), 7, v(VL)))
    a(valu("v_lshlrev_b32", v(tC), 9, v(tA)))
    a(valu("v_lshl_add_u32", v(tC), v(tB), 4, v(tC)))
    a(valu("v_add_u32", v(VOS), s(ST2), v(tC)))
    a(valu("v_bfe_u32", v(tC), v(VL), 4, 1))
    a(valu("v_lshlrev_b32", v(tC), 6, v(tC)))
    a(valu("v_xor_b32", v(vVD), v(tC), v(VOS)))
    a(salu("s_lshl_b32", s(ST2), s(SWW), 12))
    a(salu("s_add_u32", s(ST2), s(ST2), OOFF))
    a(valu("v_xor_b32", v(tC), v(tA), v(tB)))
    a(valu("v_lshlrev_b32", v(tC), 4, v(tC)))
    a(valu("v_lshl_add_u32", v(tC), v(tA), 7, v(tC)))
    a(valu("v_add_u32", v(VOR), s(ST2), v(tC)))
    a(valu("v_and_b32", v(tC), 7, v(tq)))
    a(valu("v_lshlrev_b32", v(tB), 1, v(th)))
    a(valu("v_xor_b32", v(tC), v(tC), v(tB)))
    a(valu("v_lshlrev_b32", v(tC), 4, v(tC)))
    a(valu("v_lshl_add_u32", v(tC), v(tq), 7, v(tC)))
    for dt in range(2):
        for e in range(2):
            a(valu("v_xor_b32", v(tB), 64 * dt + 16 * e, v(tC)))
            a(valu("v_add_u32", v(VOW + 2 * dt + e), s(ST2), v(tB)))
    a(valu("v_lshlrev_b32", v(tA), 4, v(VL)))
    a(valu("v_add_u32", v(VPR), POFF, v(tA)))
    a(valu("v_lshlrev_b32", v(tA), 4, v(tq)))
    a(valu("v_add_u32", v(VXRP), XOFF + 512, v(tA)))
    a(valu("v_bfe_u32", v(tA), v(VL), 2, 2))
    a(valu("v_lshl_add_u32", v(tA), v(th), 2, v(tA)))
    a(valu("v_lshlrev_b32", v(tA), 7, v(tA)))
    a(valu("v_bfe_u32", v(tB), v(VL), 3, 1))
    a(valu("v_lshl_add_u32", v(tA), v(tB), 6, v(tA)))
    a(valu("v_and_b32", v(tB), 1, v(VL)))
    a(valu("v_lshl_add_u32", v(tA), v(tB), 5, v(tA)))
    a(valu("v_bfe_u32", v(tB), v(VL), 4, 1))
    a(valu("v_lshl_add_u32", v(tA), v(tB), 4, v(tA)))
    a(valu("v_bfe_u32", v(tB), v(VL), 1, 1))
    a(valu("v_lshl_add_u32", v(tA), v(tB), 3, v(tA)))
    a(valu("v_xor_b32", v(tB), 64, v(tA)))
    a(salu("s_lshl_b32", s(ST0), s(SWW), 13))
    a(salu("s_add_u32", s(ST0), s(ST0), VS01))
    a(valu("v_add_u32", v(vVA), s(ST0), v(tA)))
    a(valu("v_add_u32", v(vVA + 1), s(ST0), v(tB)))
    a(valu("v_add_u32", v(vVA + 2), s(SQB), v(tA)))
    a(valu("v_add_u32", v(vVA + 3), s(SQB), v(tB)))
    a(salu("s_mov_b32", s(SQSO), 7 * 16384))
    a(salu("s_add_u32", s(SQM0), s(SQB), 1 * QSL))
    a(salu("s_add_u32", s(SQLIM), s(SQB), NQ * QSL))
    a(salu("s_mov_b32", s(SOSO), hex((-1 * 16384) & 0xFFFFFFFF)))
    a(salu("s_mov_b32", s(STICK), 2))

    def vdest(j):
        if 2 <= j <= 5:
            return SQB, j * QSL, vVA + 2
        return ST0, (j & 1) * 4096, vVA

    def vload(j):
        sb, off, _ = vdest(j)
        for n in range(4):
            a(salu("s_add_u32", "m0", s(sb), off + n * 1024))
            a(salu("s_mov_b32", s(ST2), (32 * j + 8 * n) * 512))
            a(buf_lds(vVD, SRD_A, s(ST2), LD_MODS))

    def vfrags(j):
        _, off, ar = vdest(j)
        if off >= 65536 - 4096:
            a(valu("v_add_u32", v(138), off, v(ar)))
            a(valu("v_add_u32", v(139), off, v(ar + 1)))
            ar, off = 138, 0
        for b in range(2):
            for dt in range(2):
                for aa in range(2):
                    a(ds_read("ds_read_b64_tr_b16", AF + 4 * (16 * dt + 2 * j + b) + 2 * aa, 2, ar + dt,
                              off + (16 * b + 8 * aa) * 128))

    def dummy_st():
        for _ in range(4):
            a(buf_store(PK, VOS, SRD_O, 0))

    p.extend(stamp(51))
    a(barrier())
    vload(0); vload(1)
    p.extend(stamp(40))
    a(barrier())
    p.extend(stamp(49))
    p.extend(stamp(59, True))
    for j in range(2, 6):
        vload(j)
    a(barrier())
    waits = [20, 20, 20, 20, 20, 24, 28, 32]
    for j in range(8):
        a(waitcnt(vm=waits[j]))
        vfrags(j)
        a(waitcnt(lgkm=0))
        p.extend(stamp(41 + j))
        if j < 2:
            vload(6 + j)
        elif j < 4:
            qload(a, j)
        elif j < 7:
            qload(a, j)
            dummy_st()
    a(waitcnt(vm=28))
    a(barrier())
    return p


def pv_E(par_o, inv):
    O = ACC[par_o]
    E = []
    for c in range(4):
        b = O + 8 * c
        for r in range(8):
            E.append(valu("v_mul_f32", v(b + r), v(b + r), v(inv)))
        for r in range(4):
            E.append(valu("v_cvt_pk_bf16_f32", v(PK + 4 * (c % NPKB) + r), v(b + 2 * r), v(b + 2 * r + 1)))
        E.append(ds_write("ds_write_b128", VOW + c, PK + 4 * (c % NPKB), 4))
    return E


NPKB = 3 if DIAG else 4


def pv_D():
    hdr = [
        scmp("s_cmp_lt_u32", s(SOSO), 262144),
        salu("s_cselect_b32", s(SRD_O + 2), 262144, 0),
        salu("s_cselect_b32", s(SOE), s(SOSO), 0),
        salu("s_add_u32", s(SOSO), s(SOSO), 16384),
    ]
    rd = [ds_read("ds_read_b128", PK + 4 * (n % NPKB), 4, VOR, 1024 * n) for n in range(4)]
    st = []
    for n in range(4):
        g = [buf_store(PK + 4 * (n % NPKB), VOS, SRD_O, s(SOE), ST_MODS)]
        if n < 3:
            g.append(salu("s_add_u32", s(SOE), s(SOE), 4096))
        st.append(g)
    return hdr, rd, st


def pv_tick(par):
    Oc = ACC[1 - par]
    slots = [[] for _ in range(33)]

    def p_frag(m):
        return ds_read("ds_read_b128", FB + 4 * (m % NB), 4, VPR, (1 - par) * 16384 + m * 1024)

    pre = [p_frag(m) for m in range(LA)]
    pre.append(ds_read("ds_read_b128", XV, 4, VXRP, (1 - par) * 1024))
    E = pv_E(par, INV[par])
    hdr, rd, st = pv_D()
    X = [
        valu("v_add_f32", v(XV), v(XV), v(XV + 1)),
        valu("v_add_f32", v(XV + 2), v(XV + 2), v(XV + 3)),
        valu("v_add_f32", v(XV), v(XV), v(XV + 2)),
        valu("v_rcp_f32", v(INV[1 - par]), v(XV)),
    ]
    qd = [
        scmp("s_cmp_lt_u32", s(SQSO), 262144),
        salu("s_cselect_b32", s(SRD_Q + 2), 262144, 0),
        salu("s_cselect_b32", s(SQE), s(SQSO), 0),
        salu("s_add_u32", s(SQSO), s(SQSO), 16384),
    ]
    ql = []
    for n in range(4):
        g = [salu("s_add_u32", "m0", s(SQM0), n * 1056)]
        if n:
            g.append(salu("s_add_u32", s(SQE), s(SQE), 1024))
        else:
            g.append(nop(1))
        g.append(buf_lds(VQD, SRD_Q, s(SQE), LD_MODS))
        ql.append(g)
    qu = [
        salu("s_add_u32", s(SQM0), s(SQM0), QSL),
        scmp("s_cmp_eq_u32", s(SQM0), s(SQLIM)),
        salu("s_cselect_b32", s(SQM0), s(SQB), s(SQM0)),
    ]
    npre = 13
    pre += E[:npre]
    pre += qd
    rest = E[npre:]
    for k, ins in enumerate(rest):
        slots[k * 13 // len(rest)].append(ins)
    for n in range(4):
        slots[1 + 3 * n] += ql[n]
    slots[11] += qu
    slots[13] += X
    if NPKB == 4:
        slots[14] += rd[:2]
        slots[15] += rd[2:] + hdr
        for n in range(4):
            slots[18 + 3 * n] += st[n]
    else:
        slots[14] += rd[:3] + hdr
        slots[18] += st[0] + [rd[3]]
        for n in range(1, 4):
            slots[18 + 3 * n] += st[n]
    out = list(pre)
    for i in range(32):
        m, dt = i >> 1, i & 1
        d = Oc + 16 * dt
        if "A" not in ABL:
            out.append(mfma(d, AF + 4 * (16 * dt + m), FB + 4 * (m % NB), None if m == 0 else d))
        if dt == 1 and m + LA < 16:
            out.append(p_frag(m + LA))
        out += [x for x in slots[i] if not ("V" in ABL and x.kind in ("valu", "trans"))]
    out.append(waitcnt(vm=28))
    return out


def finalize(seq, q0=None, hist=None):
    s1, q = insert_lgkm_waits(seq, q0)
    return pad_hazards(s1, hist), q


def build():
    T = []
    head = common_head()
    head, _ = finalize(head)
    T.append(render(head))

    pro = qk_prologue() + [q_frag(f) for f in range(LA)]
    tm1 = qk_tick(1, doA=True, doB=False) + [barrier()] + tick_stamps() + [salu("s_add_u32", s(STICK), s(STICK), 1)]
    pro, q = finalize(pro + tm1, None, head[-30:])
    T.append(render(pro))

    def repf(lbl):
        return [scmp("s_cmp_gt_u32", s(STICK), 2), raw(f"s_cbranch_scc1 {lbl}", "branch"), waitcnt(lgkm=0)] + \
               [q_frag(f) for f in range(LA)] + [waitcnt(lgkm=0), label(lbl)]

    b0 = qk_tick(0) + [barrier()] + tick_stamps()
    b1 = qk_tick(1) + [barrier()] + tick_stamps()
    inc = [salu("s_add_u32", s(STICK), s(STICK), 1)]
    body_a, qa = insert_lgkm_waits(b0, q)
    mid = [scmp("s_cmp_eq_u32", s(STICK), 15), raw("s_cbranch_scc1 L_qk_tail", "branch")]
    body_b, qb = insert_lgkm_waits(b1, qa)
    ta, tb, t0 = [i.text for i in qa], [i.text for i in qb], [i.text for i in q]
    assert DIAG or t0[len(t0) - len(tb):] == tb, (t0, tb)
    loop = body_a + mid + repf("L_qk_r0") + inc + body_b + repf("L_qk_r1") + inc + [raw("s_branch L_qk_loop", "branch")]
    h1 = pad_hazards(loop, pro[-40:])
    h2 = pad_hazards(h1, h1[-40:])
    assert len(h1) == len(h2)
    T.append(".p2align 6\nL_qk_loop:\n" + render(h1))
    tail = inc + qk_tick(1, doA=False, doB=True) + [barrier()] + tick_stamps() + diag_end()
    tail, _ = finalize(tail, qa, h1[-60:])
    T.append("L_qk_tail:\n    s_nop 7\n    s_nop 7\n" + render(tail) + "\n    s_endpgm")

    pp = pv_prologue()
    pp, q = finalize(pp, None, head[-30:])
    T.append("L_pv:\n" + render(pp))
    c1 = pv_tick(1) + [barrier()] + tick_stamps() + inc
    c0 = pv_tick(0) + [barrier()] + tick_stamps() + inc
    l1, q1 = insert_lgkm_waits(c1, [])
    l0, q2 = insert_lgkm_waits(c0, q1)
    assert not q1 and not q2 or DIAG or True
    loop = l1 + l0 + [scmp("s_cmp_lt_u32", s(STICK), 18), raw("s_cbranch_scc1 L_pv_loop", "branch")]
    assert len(q2) == 0, [i.text for i in q2]
    h1 = pad_hazards(loop, pp[-40:])
    h2 = pad_hazards(h1, h1[-40:])
    assert len(h1) == len(h2)
    T.append(".p2align 6\nL_pv_loop:\n" + render(h1))
    E = pv_E(1, INV[1])
    hdr, rd, st = pv_D()
    if NPKB == 4:
        fin = E + hdr + rd + sum(st, [])
    else:
        fin = E + hdr + rd[:3] + st[0] + [rd[3]] + sum(st[1:], [])
    fin += diag_end()
    fin, _ = finalize(fin, [], h1[-40:])
    T.append(render(fin))
    return "\n".join(T)


HEADER = """; Kernarg layout for this problem (48 bytes, ptrs only, base s[0:1]):
; @launch grid=(256,1,1) block=(512,1,1) lds={lds}
.amdgcn_target "amdgcn-amd-amdhsa--gfx950"
.text
.globl {name}_kernel
.p2align 8
.type {name}_kernel,@function
{name}_kernel:
"""

FOOTER = """
L_end:
    s_endpgm
.section .rodata,"a"
.p2align 6
.amdhsa_kernel {name}_kernel
  .amdhsa_next_free_vgpr 256
  .amdhsa_next_free_sgpr 64
  .amdhsa_accum_offset 256
  .amdhsa_group_segment_fixed_size 0
  .amdhsa_kernarg_size 48
  .amdhsa_user_sgpr_count 2
  .amdhsa_user_sgpr_kernarg_segment_ptr 1
  .amdhsa_system_sgpr_workgroup_id_x 1
.end_amdhsa_kernel
"""


def main():
    txt = HEADER.format(name=NAME, lds=LDS_BYTES) + build() + FOOTER.format(name=NAME)
    out = sys.argv[1] if len(sys.argv) > 1 else f"cdna_kernels/{NAME}.s"
    open(out, "w").write(txt)
    print(f"wrote {out}: {txt.count(chr(10))} lines")


if __name__ == "__main__":
    main()
```

```python
import struct
import sys
import os

sys.path.insert(0, os.path.dirname(__file__))
from asmlib import *

NAME = "standalone__gqa_softmax__near_ridge"
ENV = os.environ.get

QSL = 16896
NQ = 6
POFF = NQ * QSL
OOFF = POFF + 32768
XOFF = OOFF + 16384
LDS_BYTES = XOFF + 2048
KS = 4 * QSL
assert KS + 65536 <= OOFF and LDS_BYTES <= 163840

AF = 0
ACC = [128, 160]
FB = 192
NB = 8
PK = 224
XV = 240
MC, LSUM, LMAX, T0, T1 = 244, 245, 246, 247, 248
INV = [244, 245]
VQ, VQB, VPW, VXW, VXRQ = 249, 250, 251, 252, 253
VPR, VXRP, VOR, VQD, VOS = 246, 247, 248, 249, 250
VOW = 251
VL = 255
DIAG = int(ENV("DIAG", "0"))
VDG, VDT = 238, 239

SRD_A, SRD_Q, SRD_O = 4, 8, 12
SPTR = 20
SW, SWW = 28, 29
SQSO, SQM0, SQRD, SOSO, STICK, SC, ST0, ST1, ST2 = 30, 31, 32, 33, 34, 35, 36, 37, 38
SMASK = 40
SQE, SOE, SQB, SQLIM = 42, 43, 44, 45
STM = 46
SRD_W = 48
SDL = 52

C_SCALE = 1.4426950408889634 / 16.0
LD_MODS = ENV("LD_MODS", " nt")
ST_MODS = ENV("ST_MODS", "")
LA = int(ENV("LA", "5"))
ABL = ENV("ABL", "")


def f32bits(x):
    return struct.unpack("<I", struct.pack("<f", x))[0]


def stamp(lane, real=False):
    if not DIAG:
        return []
    op = "s_memrealtime" if real else "s_memtime"
    o = [raw(f"{op} {sr(STM, 2)}", "smem", wr=S(STM, 2)), waitcnt(lgkm=0)]
    if isinstance(lane, int):
        o.append(I(f"v_writelane_b32 v{VDG}, s{STM}, {lane}", "valu", S(STM), V(VDG)))
    else:
        o.append(I(f"v_cmp_eq_u32 vcc, s{lane[1]}, v{VL}", "valu", V(VL), []))
        o.append(valu("v_mov_b32", v(VDT), s(STM)))
        o.append(nop(2))
        o.append(I(f"v_cndmask_b32 v{VDG}, v{VDG}, v{VDT}, vcc", "valu", V(VDG) + V(VDT), V(VDG)))
    return o


def tick_stamps():
    if not DIAG:
        return []
    return stamp(s(STICK)) + [salu("s_add_u32", s(SDL), s(STICK), 20)] + stamp(s(SDL), True)


def diag_end():
    if not DIAG:
        return []
    o = stamp(62) + stamp(63, True)
    o += [
        raw(f"s_load_dwordx2 {sr(SRD_W, 2)}, s[0:1], 40", "smem", wr=S(SRD_W, 2)),
        waitcnt(lgkm=0),
        salu("s_mov_b32", s(SRD_W + 2), 256 * 8 * 256),
        salu("s_mov_b32", s(SRD_W + 3), "0x00020000"),
        salu("s_lshl_b32", s(ST0), s(2), 3),
        salu("s_add_u32", s(ST0), s(ST0), s(SW)),
        salu("s_lshl_b32", s(ST0), s(ST0), 8),
        valu("v_lshlrev_b32", v(VDT), 2, v(VL)),
        raw(f"buffer_store_dword v{VDG}, v{VDT}, {sr(SRD_W, 4)}, s{ST0} offen", "vmem_st", rd=V(VDG) + V(VDT)),
    ]
    return o


def srd(a, base, ptr, off, size):
    a(salu("s_add_u32", s(base), s(ptr), s(off)))
    a(salu("s_addc_u32", s(base + 1), s(ptr + 1), 0))
    a(salu("s_and_b32", s(base + 1), s(base + 1), "0xffff"))
    a(salu("s_mov_b32", s(base + 2), size))
    a(salu("s_mov_b32", s(base + 3), "0x00020000"))


tq, th, tA, tB, tC = 128, 129, 130, 131, 132


def common_head():
    p = []
    a = p.append
    a(scmp("s_cmp_ge_u32", s(2), 256))
    a(raw("s_cbranch_scc1 L_end", "branch"))
    a(salu("s_and_b32", s(3), s(2), 7))
    a(salu("s_lshl_b32", s(3), s(3), 5))
    a(salu("s_lshr_b32", s(2), s(2), 3))
    a(salu("s_add_u32", s(2), s(2), s(3)))
    if ENV("HALF"):
        a(salu("s_and_b32", s(3), s(2), int(ENV("HALF"))))
        a(scmp("s_cmp_lg_u32", s(3), 0))
        a(raw("s_cbranch_scc1 L_end", "branch"))
    if DIAG:
        a(valu("v_mov_b32", v(VDG), 0))
        p.extend(stamp(60, True))
        p.extend(stamp(61))
    a(raw(f"s_load_dwordx4 {sr(SPTR, 4)}, s[0:1], 0", "smem", wr=S(SPTR, 4)))
    a(raw(f"s_load_dwordx4 {sr(SPTR + 4, 4)}, s[0:1], 16", "smem", wr=S(SPTR + 4, 4)))
    a(valu("v_and_b32", v(VL), 63, v(0)))
    a(valu("v_lshrrev_b32", v(tA), 6, v(0)))
    a(rfl(SW, tA))
    a(valu("v_and_b32", v(tq), 31, v(VL)))
    a(valu("v_lshrrev_b32", v(th), 5, v(VL)))
    a(salu("s_and_b32", s(SWW), s(SW), 3))
    a(salu("s_lshl_b32", s(ST0), s(2), 18))
    a(salu("s_lshl_b32", s(ST1), s(2), 17))
    a(salu("s_lshl_b32", s(ST2), s(SWW), 12))
    a(valu("v_xor_b32", v(tA), v(tq), v(th)))
    a(valu("v_lshlrev_b32", v(tA), 4, v(tA)))
    a(valu("v_lshl_add_u32", v(tA), v(th), 9, v(tA)))
    a(valu("v_add_u32", v(VQD), s(ST2), v(tA)))
    a(salu("s_mul_i32", s(SQB), s(SWW), 4 * 1056))
    a(raw("s_waitcnt lgkmcnt(0)", "wait0"))
    srd(a, SRD_Q, SPTR + 0, ST0, 262144)
    a(scmp("s_cmp_ge_u32", s(SW), 4))
    a(raw("s_cbranch_scc1 L_pv", "branch"))
    return p


def qload(a, blk):
    for n in range(4):
        a(salu("s_add_u32", "m0", s(SQB), (blk % NQ) * QSL + n * 1056))
        a(salu("s_mov_b32", s(ST2), blk * 16384 + n * 1024))
        a(buf_lds(VQD, SRD_Q, s(ST2), LD_MODS))


def qk_prologue():
    p = []
    a = p.append
    vKe, vKo, vKA = 133, 134, 136
    srd(a, SRD_A, SPTR + 2, ST1, 131072)
    a(valu("v_lshrrev_b32", v(tA), 3, v(VL)))
    a(valu("v_lshlrev_b32", v(tA), 9, v(tA)))
    a(valu("v_and_b32", v(tB), 7, v(VL)))
    a(valu("v_lshrrev_b32", v(tC), 4, v(VL)))
    a(valu("v_xor_b32", v(tB), v(tB), v(tC)))
    a(valu("v_lshl_add_u32", v(vKe), v(tB), 4, v(tA)))
    a(valu("v_xor_b32", v(vKo), 64, v(vKe)))
    a(salu("s_lshl_b32", s(ST0), s(SWW), 15))
    a(salu("s_lshl_b32", s(ST1), s(SWW), 14))
    a(salu("s_add_u32", s(ST1), s(ST1), KS))

    def kload(j):
        kt, dq = j >> 2, j & 3
        for n in range(4):
            a(salu("s_add_u32", "m0", s(ST1), (j & 3) * 4096 + n * 1024))
            a(salu("s_add_u32", s(ST2), s(ST0), kt * 16384 + n * 4096 + dq * 128))
            a(buf_lds(vKo if n & 1 else vKe, SRD_A, s(ST2), LD_MODS))

    for j in range(4):
        kload(j)
    qload(a, 0)
    p.extend(stamp(51))
    a(raw(f"s_setprio {ENV('QK_PRIO', '1')}", "salu"))
    a(valu("v_bfe_u32", v(tA), v(tq), 1, 3))
    a(valu("v_xor_b32", v(tA), v(tA), v(th)))
    a(valu("v_lshlrev_b32", v(tA), 4, v(tA)))
    a(valu("v_lshl_add_u32", v(tA), v(tq), 7, v(tA)))
    for k in range(4):
        a(valu("v_xor_b32", v(tB), 32 * k, v(tA)))
        a(valu("v_add_u32", v(vKA + k), s(ST1), v(tB)))
    a(valu("v_lshrrev_b32", v(tA), 1, v(tq)))
    a(valu("v_mul_u32_u24", v(tA), 1056, v(tA)))
    a(valu("v_and_b32", v(tB), 1, v(tq)))
    a(valu("v_lshl_add_u32", v(tA), v(tB), 9, v(tA)))
    a(valu("v_xor_b32", v(tB), v(tB), v(th)))
    a(valu("v_lshl_add_u32", v(VQB), v(tB), 4, v(tA)))
    a(salu("s_lshl_b32", s(ST2), s(SWW), 12))
    a(salu("s_add_u32", s(ST2), s(ST2), POFF))
    a(valu("v_lshlrev_b32", v(tA), 4, v(VL)))
    a(valu("v_add_u32", v(VPW), s(ST2), v(tA)))
    a(valu("v_lshlrev_b32", v(tA), 4, v(tq)))
    a(valu("v_add_u32", v(VXRQ), XOFF, v(tA)))
    a(valu("v_lshl_add_u32", v(tA), v(th), 9, v(VXRQ)))
    a(valu("v_lshrrev_b32", v(tB), 3, v(tq)))
    a(valu("v_xor_b32", v(tB), s(SWW), v(tB)))
    a(valu("v_lshl_add_u32", v(VXW), v(tB), 2, v(tA)))
    a(salu("s_mov_b32", s(SC), hex(f32bits(C_SCALE))))
    a(salu("s_mov_b32", s(SMASK), -1))
    a(salu("s_mov_b32", s(SMASK + 1), 0))
    a(salu("s_mov_b32", s(SQRD), 0))
    a(salu("s_mov_b32", s(STICK), 0))

    def kfrags(j):
        kt, dq = j >> 2, j & 3
        for k in range(4):
            a(ds_read("ds_read_b128", AF + 4 * (16 * kt + 4 * dq + k), 4, vKA + k, (j & 3) * 4096))

    for j in range(4):
        a(waitcnt(vm=16))
        kfrags(j)
        a(waitcnt(lgkm=0))
        kload(4 + j)
    qload(a, 1)
    qload(a, 2)
    qload(a, 3)
    a(valu("v_mov_b32", v(VQ), v(VQB)))
    p.extend(stamp(40))
    for j, w in zip(range(4, 8), (24, 20, 16, 12)):
        a(waitcnt(vm=w))
        kfrags(j)
    a(waitcnt(vm=8, lgkm=0))
    p.extend(stamp(48))
    a(barrier())
    p.extend(stamp(49))
    p.extend(stamp(59, True))
    return p


def q_frag(f):
    return ds_read("ds_read_b128", FB + 4 * (f % NB), 4, VQ, 32 * (f % 16))


def qk_tick(par, doA=True, doB=True, prefetch=True, pub=True, keepmax=False):
    Sc, Sn = ACC[par], ACC[1 - par]
    slots = [[] for _ in range(33)]
    pre = []
    NPK = 8
    if doB:
        pre.append(ds_read("ds_read_b128", XV, 4, VXRQ, (1 - par) * 1024))
        X = [
            valu("v_max3_f32", v(T0), v(XV), v(XV + 1), v(XV + 2)),
            valu("v_max_f32", v(T0), v(T0), v(XV + 3)),
            valu("v_mul_f32", v(MC), s(SC), v(T0)),
        ]
        slots[2] += X
        seq = []
        for pr in range(16):
            r0, r1 = Sc + 2 * pr, Sc + 2 * pr + 1
            g = [
                valu("v_fma_f32", v(r0), v(r0), s(SC), ("neg", v(MC))),
                valu("v_fma_f32", v(r1), v(r1), s(SC), ("neg", v(MC))),
                valu("v_exp_f32", v(r0), v(r0)),
                valu("v_exp_f32", v(r1), v(r1)),
            ]
            g2 = []
            if pr == 0:
                g2.append(valu("v_add_f32", v(LSUM), v(r0), v(r1)))
            else:
                g2.append(valu("v_add_f32", v(LSUM), v(LSUM), v(r0)))
                g2.append(valu("v_add_f32", v(LSUM), v(LSUM), v(r1)))
            g2.append(valu("v_cvt_pk_bf16_f32", v(PK + pr % NPK), v(r0), v(r1)))
            if pr % 4 == 3:
                g2.append(ds_write("ds_write_b128", VPW, PK + (pr - 3) % NPK, 4, par * 16384 + (pr // 4) * 1024))
            seq.append((g, g2))
        flat = []
        for pr in range(16):
            flat.append(seq[pr][0][:2])
            flat.append(seq[pr][0][2:])
            if pr > 0:
                flat[-2] = flat[-2] + seq[pr - 1][1]
        flat.append(seq[15][1])
        n = len(flat)
        nin = int(ENV("QK_IN", "8")) if doA else n
        for k, grp in enumerate(flat[:nin]):
            slots[3 + k * 28 // nin] += grp
        post = sum(flat[nin:], [])
    else:
        if pub:
            pre.append(valu("v_mov_b32", v(LSUM), 0))
        post = []
    M = []
    if doA:
        M.append(valu("v_max3_f32", v(LMAX), v(Sn), v(Sn + 1), v(Sn + 2)))
        M.append(valu("v_max3_f32", v(T0), v(Sn + 16), v(Sn + 17), v(Sn + 18)))
        for k in range(6):
            M.append(valu("v_max3_f32", v(LMAX), v(LMAX), v(Sn + 3 + 2 * k), v(Sn + 4 + 2 * k)))
            M.append(valu("v_max3_f32", v(T0), v(T0), v(Sn + 19 + 2 * k), v(Sn + 20 + 2 * k)))
        M.append(valu("v_max3_f32", v(LMAX), v(LMAX), v(Sn + 15), v(Sn + 31)))
        M.append(valu("v_max_f32", v(LMAX), v(LMAX), v(T0)))
    elif not keepmax:
        M.append(valu("v_mov_b32", v(LMAX), 0))
    PUB = [
        perm32swap(LMAX, LSUM),
        valu("v_max_f32", v(T0), v(LMAX), v(LSUM)),
        valu("v_add_f32", v(T1), v(LMAX), v(LSUM)),
        valu("v_cndmask_b32", v(T0), v(T1), v(T0), s(SMASK, 2)),
        ds_write("ds_write_b32", VXW, T0, 1, par * 1024),
    ]
    QUPD = [
        salu("s_add_u32", s(SQRD), s(SQRD), QSL),
        scmp("s_cmp_eq_u32", s(SQRD), NQ * QSL),
        salu("s_cselect_b32", s(SQRD), 0, s(SQRD)),
        valu("v_add_u32", v(VQ), s(SQRD), v(VQB)),
    ]
    out = list(pre)
    if doA:
        upd_at = 2 * (16 - LA) - 1
        for i in range(32):
            kk, kt = i >> 1, i & 1
            d = Sn + 16 * kt
            if "A" not in ABL:
                out.append(mfma(d, AF + 4 * (16 * kt + kk), FB + 4 * (kk % NB), None if kk == 0 else d))
            if kt == 1:
                f = kk + LA
                if f == 16:
                    out += QUPD
                if f < 16 or prefetch:
                    out.append(q_frag(f))
            out += slots[i]
    else:
        for i in range(32):
            out += slots[i]
    k = min(len(post), 14)
    out += post[:k]
    rest = post[k:]
    mi = 0
    for j, ins in enumerate(rest):
        out.append(ins)
        if j % 3 == 2 and mi < len(M):
            out.append(M[mi]); mi += 1
    out += M[mi:] + (PUB if pub else [])
    return out


def pv_prologue():
    p = []
    a = p.append
    vVD, vVA = 208, 209
    srd(a, SRD_A, SPTR + 4, ST1, 131072)
    srd(a, SRD_O, SPTR + 6, ST0, 0)
    a(salu("s_lshl_b32", s(ST2), s(SWW), 7))
    a(valu("v_lshrrev_b32", v(tA), 3, v(VL)))
    a(valu("v_and_b32", v(tB), 7, v(VL)))
    a(valu("v_lshlrev_b32", v(tC), 9, v(tA)))
    a(valu("v_lshl_add_u32", v(tC), v(tB), 4, v(tC)))
    a(valu("v_add_u32", v(VOS), s(ST2), v(tC)))
    a(valu("v_bfe_u32", v(tC), v(VL), 4, 1))
    a(valu("v_lshlrev_b32", v(tC), 6, v(tC)))
    a(valu("v_xor_b32", v(vVD), v(tC), v(VOS)))
    a(salu("s_lshl_b32", s(ST2), s(SWW), 12))
    a(salu("s_add_u32", s(ST2), s(ST2), OOFF))
    a(valu("v_xor_b32", v(tC), v(tA), v(tB)))
    a(valu("v_lshlrev_b32", v(tC), 4, v(tC)))
    a(valu("v_lshl_add_u32", v(tC), v(tA), 7, v(tC)))
    a(valu("v_add_u32", v(VOR), s(ST2), v(tC)))
    a(valu("v_and_b32", v(tC), 7, v(tq)))
    a(valu("v_lshlrev_b32", v(tB), 1, v(th)))
    a(valu("v_xor_b32", v(tC), v(tC), v(tB)))
    a(valu("v_lshlrev_b32", v(tC), 4, v(tC)))
    a(valu("v_lshl_add_u32", v(tC), v(tq), 7, v(tC)))
    for dt in range(2):
        for e in range(2):
            a(valu("v_xor_b32", v(tB), 64 * dt + 16 * e, v(tC)))
            a(valu("v_add_u32", v(VOW + 2 * dt + e), s(ST2), v(tB)))
    a(valu("v_lshlrev_b32", v(tA), 4, v(VL)))
    a(valu("v_add_u32", v(VPR), POFF, v(tA)))
    a(valu("v_lshlrev_b32", v(tA), 4, v(tq)))
    a(valu("v_add_u32", v(VXRP), XOFF + 512, v(tA)))
    a(valu("v_bfe_u32", v(tA), v(VL), 2, 2))
    a(valu("v_lshl_add_u32", v(tA), v(th), 2, v(tA)))
    a(valu("v_lshlrev_b32", v(tA), 7, v(tA)))
    a(valu("v_bfe_u32", v(tB), v(VL), 3, 1))
    a(valu("v_lshl_add_u32", v(tA), v(tB), 6, v(tA)))
    a(valu("v_and_b32", v(tB), 1, v(VL)))
    a(valu("v_lshl_add_u32", v(tA), v(tB), 5, v(tA)))
    a(valu("v_bfe_u32", v(tB), v(VL), 4, 1))
    a(valu("v_lshl_add_u32", v(tA), v(tB), 4, v(tA)))
    a(valu("v_bfe_u32", v(tB), v(VL), 1, 1))
    a(valu("v_lshl_add_u32", v(tA), v(tB), 3, v(tA)))
    a(valu("v_xor_b32", v(tB), 64, v(tA)))
    a(valu("v_add_u32", v(vVA), s(ST2), v(tA)))
    a(valu("v_add_u32", v(vVA + 1), s(ST2), v(tB)))
    a(salu("s_mov_b32", s(ST0), s(ST2)))
    a(valu("v_add_u32", v(vVA + 2), s(SQB), v(tA)))
    a(valu("v_add_u32", v(vVA + 3), s(SQB), v(tB)))
    a(salu("s_mov_b32", s(SQSO), 9 * 16384))
    a(salu("s_add_u32", s(SQM0), s(SQB), 3 * QSL))
    a(salu("s_add_u32", s(SQLIM), s(SQB), NQ * QSL))
    a(salu("s_mov_b32", s(SOSO), 0))
    a(salu("s_mov_b32", s(STICK), 4))
    VLOC = {0: 4, 1: 5, 2: "o", 3: 0, 4: 1, 5: 2, 6: 3, 7: "o"}

    def vdest(j):
        loc = VLOC[j]
        if loc == "o":
            return ST0, 0, vVA
        return SQB, loc * QSL, vVA + 2

    def vload(j):
        sb, off, _ = vdest(j)
        for n in range(4):
            a(salu("s_add_u32", "m0", s(sb), off + n * 1024))
            a(salu("s_mov_b32", s(ST2), (32 * j + 8 * n) * 512))
            a(buf_lds(vVD, SRD_A, s(ST2), LD_MODS))

    def vproc(j, first):
        _, off, ar = vdest(j)
        if off >= 65536 - 4096:
            a(valu("v_add_u32", v(vVA + 4), off, v(ar)))
            a(valu("v_add_u32", v(vVA + 5), off, v(ar + 1)))
            ar, off = vVA + 4, 0
        for b in range(2):
            for dt in range(2):
                for aa in range(2):
                    a(ds_read("ds_read_b64_tr_b16", AF + 4 * (16 * dt + 2 * j + b) + 2 * aa, 2, ar + dt,
                              off + (16 * b + 8 * aa) * 128))
        for blk in range(2):
            for b in range(2):
                a(ds_read("ds_read_b128", FB + 4 * (2 * blk + b), 4, VPR, blk * 16384 + (2 * j + b) * 1024))
        for blk in range(2):
            for b in range(2):
                for dt in range(2):
                    d = ACC[blk] + 16 * dt
                    a(mfma(d, AF + 4 * (16 * dt + 2 * j + b), FB + 4 * (2 * blk + b), None if (first and b == 0) else d))
        p.extend(stamp(41 + j))

    def dummy_st():
        for _ in range(4):
            a(buf_store(PK, VOS, SRD_O, 0))

    p.extend(stamp(51))
    a(raw(f"s_setprio {ENV('PV_PRIO', '0')}", "salu"))
    a(barrier())
    p.extend(stamp(49))
    p.extend(stamp(59, True))
    vload(0); vload(1); vload(2)
    a(barrier())
    vload(3)
    a(barrier())
    vload(4)
    a(barrier())
    vload(5)
    for blk in range(2):
        a(ds_read("ds_read_b128", XV, 4, VXRP, blk * 1024))
        a(valu("v_add_f32", v(XV), v(XV), v(XV + 1)))
        a(valu("v_add_f32", v(XV + 2), v(XV + 2), v(XV + 3)))
        a(valu("v_add_f32", v(XV), v(XV), v(XV + 2)))
        a(valu("v_rcp_f32", v(INV[blk]), v(XV)))
    a(waitcnt(vm=20)); vproc(0, True); qload(a, 4)
    a(barrier())
    vload(6)
    a(waitcnt(vm=24)); vproc(1, False)
    a(waitcnt(vm=20)); vproc(2, False); vload(7); qload(a, 5)
    a(waitcnt(vm=24)); vproc(3, False); qload(a, 6); dummy_st()
    a(waitcnt(vm=28)); vproc(4, False); qload(a, 7); dummy_st()
    a(waitcnt(vm=32)); vproc(5, False); qload(a, 8)
    a(waitcnt(vm=28)); vproc(6, False)
    a(waitcnt(vm=24)); vproc(7, False)
    a(barrier())
    a(salu("s_mov_b32", s(SRD_O + 2), 262144))
    p.extend(pv_final(0))
    a(barrier())
    p.extend(stamp(3) + stamp(23, True))
    return p


def pv_final(par_o):
    E = pv_E(par_o, INV[par_o])
    hdr, rd, st = pv_D()
    if NPKB == 4:
        return E + hdr + rd + sum(st, [])
    return E + hdr + rd[:3] + st[0] + [rd[3]] + sum(st[1:], [])


def pv_E(par_o, inv):
    O = ACC[par_o]
    E = []
    for c in range(4):
        b = O + 8 * c
        for r in range(8):
            E.append(valu("v_mul_f32", v(b + r), v(b + r), v(inv)))
        for r in range(4):
            E.append(valu("v_cvt_pk_bf16_f32", v(PK + 4 * (c % NPKB) + r), v(b + 2 * r), v(b + 2 * r + 1)))
        E.append(ds_write("ds_write_b128", VOW + c, PK + 4 * (c % NPKB), 4))
    return E


NPKB = 3 if DIAG else 4


def pv_D():
    hdr = [
        salu("s_mov_b32", s(SOE), s(SOSO)),
        salu("s_add_u32", s(SOSO), s(SOSO), 16384),
    ]
    rd = [ds_read("ds_read_b128", PK + 4 * (n % NPKB), 4, VOR, 1024 * n) for n in range(4)]
    st = []
    for n in range(4):
        g = [buf_store(PK + 4 * (n % NPKB), VOS, SRD_O, s(SOE), ST_MODS)]
        if n < 3:
            g.append(salu("s_add_u32", s(SOE), s(SOE), 4096))
        st.append(g)
    return hdr, rd, st


def pv_tick(par, mode=None):
    Oc = ACC[1 - par]
    slots = [[] for _ in range(33)]

    def p_frag(m):
        return ds_read("ds_read_b128", FB + 4 * (m % NB), 4, VPR, (1 - par) * 16384 + m * 1024)

    pre = [p_frag(m) for m in range(LA)]
    pre.append(ds_read("ds_read_b128", XV, 4, VXRP, (1 - par) * 1024))
    E = pv_E(par, INV[par])
    hdr, rd, st = pv_D()
    X = [
        valu("v_add_f32", v(XV), v(XV), v(XV + 1)),
        valu("v_add_f32", v(XV + 2), v(XV + 2), v(XV + 3)),
        valu("v_add_f32", v(XV), v(XV), v(XV + 2)),
        valu("v_rcp_f32", v(INV[1 - par]), v(XV)),
    ]
    qd = [
        scmp("s_cmp_lt_u32", s(SQSO), 262144),
        salu("s_cselect_b32", s(SRD_Q + 2), 262144, 0),
        salu("s_cselect_b32", s(SQE), s(SQSO), 0),
        salu("s_add_u32", s(SQSO), s(SQSO), 16384),
    ]
    ql = []
    for n in range(4):
        g = [salu("s_add_u32", "m0", s(SQM0), n * 1056)]
        if n:
            g.append(salu("s_add_u32", s(SQE), s(SQE), 1024))
        else:
            g.append(nop(1))
        g.append(buf_lds(VQD, SRD_Q, s(SQE), LD_MODS))
        ql.append(g)
    qu = [
        salu("s_add_u32", s(SQM0), s(SQM0), QSL),
        scmp("s_cmp_eq_u32", s(SQM0), s(SQLIM)),
        salu("s_cselect_b32", s(SQM0), s(SQB), s(SQM0)),
    ]
    mode = mode or ENV("PV_MODE", "1")
    if mode == "0":
        npre = 13
        pre += E[:npre]
        pre += qd
        rest = E[npre:]
        for k, ins in enumerate(rest):
            slots[k * 13 // len(rest)].append(ins)
        for n in range(4):
            slots[1 + 3 * n] += ql[n]
        slots[11] += qu
        slots[13] += X
        if NPKB == 4:
            slots[14] += rd[:2]
            slots[15] += rd[2:] + hdr
            for n in range(4):
                slots[18 + 3 * n] += st[n]
        else:
            slots[14] += rd[:3] + hdr
            slots[18] += st[0] + [rd[3]]
            for n in range(1, 4):
                slots[18 + 3 * n] += st[n]
    else:
        pre += qd
        for c in range(4):
            pre += E[13 * c:13 * c + 13] + ql[c]
        pre += qu
        if NPKB == 4:
            pre += rd + X + hdr
            sts = st
        else:
            pre += rd[:3] + X + hdr
            sts = [st[0] + [rd[3]]] + st[1:]
        if mode == "1":
            pre += sum(sts, [])
        else:
            for n in range(4):
                slots[2 * n] += sts[n]
    out = list(pre)
    for i in range(32):
        m, dt = i >> 1, i & 1
        d = Oc + 16 * dt
        if "A" not in ABL:
            out.append(mfma(d, AF + 4 * (16 * dt + m), FB + 4 * (m % NB), None if m == 0 else d))
        if dt == 1 and m + LA < 16:
            out.append(p_frag(m + LA))
        out += slots[i]
    out.append(waitcnt(vm=28))
    return out


def ablate(seq):
    out = []
    for x in seq:
        if "V" in ABL and x.kind in ("valu", "trans", "perm") and not (x.wr & set(V(VQ))):
            continue
        if "T" in ABL and x.kind == "trans":
            continue
        if "W" in ABL and x.kind == "dsw":
            continue
        if "M" in ABL and (x.kind in ("vmem_lds", "vmem_st") or (x.kind == "wait" and x.tag[0] is not None)):
            continue
        if "F" in ABL and x.kind == "dsr":
            continue
        if "S" in ABL and x.kind == "mfma":
            import re
            m = re.match(r"v_mfma_f32_32x32x16_bf16 v\[(\d+):\d+\], v\[(\d+):\d+\], v\[(\d+):\d+\], (.*)", x.text)
            d, a_, b_ = int(m.group(1)), int(m.group(2)), int(m.group(3))
            first = m.group(4) == "0"
            odd = (a_ // 4) & 1
            for hh in range(2):
                dd = d + 8 * odd + 4 * hh
                c = "0" if (a_ // 4) % 16 < 2 else vr(dd, 4)
                out.append(I(f"v_mfma_f32_16x16x32_bf16 {vr(dd,4)}, {vr(a_ ^ (4*hh),4)}, {vr(b_,4)}, {c}", "mfma", x.rd, x.wr, x.wr))
            continue
        out.append(x)
    return out


def finalize(seq, q0=None, hist=None):
    s1, q = insert_lgkm_waits(seq, q0)
    return pad_hazards(s1, hist), q


def build():
    T = []
    head = common_head()
    head, _ = finalize(head)
    T.append(render(head))

    pro = qk_prologue() + [q_frag(f) for f in range(LA)]
    inc = [salu("s_add_u32", s(STICK), s(STICK), 1)]
    tm1 = qk_tick(1, doA=True, doB=False) + [waitcnt(vm=4), barrier()] + tick_stamps() + inc
    pro, q = finalize(pro + tm1, None, head[-30:])
    T.append(render(pro))

    pf = [waitcnt(lgkm=0)] + [q_frag(f) for f in range(LA)] + [waitcnt(lgkm=0)]
    b0 = ablate(qk_tick(0)) + [waitcnt(vm=0), barrier()] + tick_stamps()
    b1 = ablate(qk_tick(1)) + [barrier()] + tick_stamps()
    body_a, qa = insert_lgkm_waits(b0, q)
    body_b, qb = insert_lgkm_waits(b1, qa)
    tb, t0 = [i.text for i in qb], [i.text for i in q]
    assert DIAG or ABL or t0[len(t0) - len(tb):] == tb, (t0, tb)
    mid = [scmp("s_cmp_eq_u32", s(STICK), 15), raw("s_cbranch_scc1 L_qk_tail", "branch")] + inc + [label("L_qk_l1")]
    end = [scmp("s_cmp_eq_u32", s(STICK), 2), raw("s_cbranch_scc1 L_qk_special", "branch"),
           scmp("s_cmp_lg_u32", s(STICK), 4), raw("s_cbranch_scc1 L_qk_r1", "branch")] + pf + [label("L_qk_r1")] + \
        inc + [raw("s_branch L_qk_loop", "branch")]
    loop = body_a + mid + body_b + end
    h1 = pad_hazards(loop, pro[-40:])
    h2 = pad_hazards(h1, h1[-40:])
    assert len(h1) == len(h2)
    T.append(".p2align 6\nL_qk_loop:\n" + render(h1))
    sp = inc + qk_tick(0, doA=True, doB=False, prefetch=False, pub=False) + [barrier(), barrier()] + \
        qk_tick(0, doA=False, doB=True, keepmax=True) + [barrier()] + tick_stamps() + pf + inc + \
        [nop(8), raw("s_branch L_qk_l1", "branch")]
    sp, _ = finalize(sp, qb, [])
    T.append("L_qk_special:\n    s_nop 7\n    s_nop 7\n" + render(sp))
    tail = inc + qk_tick(1, doA=False, doB=True) + [barrier()] + tick_stamps() + diag_end()
    tail, _ = finalize(tail, qa, [])
    T.append("L_qk_tail:\n    s_nop 7\n    s_nop 7\n" + render(tail) + "\n    s_endpgm")

    pp = pv_prologue()
    pp, q = finalize(pp, None, head[-30:])
    assert len(q) == 0 or DIAG
    T.append("L_pv:\n" + render(pp))
    c1 = ablate(pv_tick(1)) + [barrier()] + tick_stamps() + inc
    c0 = ablate(pv_tick(0)) + [barrier()] + tick_stamps() + inc
    l1, q1 = insert_lgkm_waits(c1, [])
    l0, q2 = insert_lgkm_waits(c0, q1)
    loop = l1 + l0 + [scmp("s_cmp_lt_u32", s(STICK), 16), raw("s_cbranch_scc1 L_pv_loop", "branch")]
    assert len(q2) == 0 or ABL, [i.text for i in q2]
    h1 = pad_hazards(loop, pp[-40:])
    h2 = pad_hazards(h1, h1[-40:])
    assert len(h1) == len(h2)
    T.append(".p2align 6\nL_pv_loop:\n" + render(h1))
    tm = ENV("PV_TAILMODE", "0")

    def strip_q(seq):
        return [x for x in seq if not (x.kind == "vmem_lds" or "m0" in x.wr or (x.kind == "wait" and x.tag[0] is not None))]

    fin = strip_q(pv_tick(1, tm)) + [barrier()] + tick_stamps() + inc + strip_q(pv_tick(0, tm)) + tick_stamps() + \
        pv_final(1) + diag_end()
    fin, _ = finalize(fin, [], h1[-40:])
    T.append(render(fin))
    return "\n".join(T)


HEADER = """; Kernarg layout for this problem (48 bytes, ptrs only, base s[0:1]):
; @launch grid=(256,1,1) block=(512,1,1) lds={lds}
.amdgcn_target "amdgcn-amd-amdhsa--gfx950"
.text
.globl {name}_kernel
.p2align 8
.type {name}_kernel,@function
{name}_kernel:
"""

FOOTER = """
L_end:
    s_endpgm
.section .rodata,"a"
.p2align 6
.amdhsa_kernel {name}_kernel
  .amdhsa_next_free_vgpr 256
  .amdhsa_next_free_sgpr 64
  .amdhsa_accum_offset 256
  .amdhsa_group_segment_fixed_size 0
  .amdhsa_kernarg_size 48
  .amdhsa_user_sgpr_count 2
  .amdhsa_user_sgpr_kernarg_segment_ptr 1
  .amdhsa_system_sgpr_workgroup_id_x 1
.end_amdhsa_kernel
"""


def main():
    txt = HEADER.format(name=NAME, lds=LDS_BYTES) + build() + FOOTER.format(name=NAME)
    out = sys.argv[1] if len(sys.argv) > 1 else f"cdna_kernels/{NAME}.s"
    open(out, "w").write(txt)
    print(f"wrote {out}: {txt.count(chr(10))} lines")


if __name__ == "__main__":
    main()
```

```python
import struct
import sys
import os

sys.path.insert(0, os.path.dirname(__file__))
from asmlib import *

NAME = "standalone__gqa_softmax__near_ridge"
ENV = os.environ.get

QSL = 16896
NQ = 6
POFF = NQ * QSL
OOFF = POFF + 32768
XOFF = OOFF + 16384
LDS_BYTES = XOFF + 2048
KS = 4 * QSL
assert KS + 65536 <= OOFF and LDS_BYTES <= 163840

AF = 0
ACC = [128, 160]
FB = 192
NB = 8
PK = 224
XV = 240
MC, LSUM, LMAX, T0, T1 = 244, 245, 246, 247, 248
INV = [244, 245]
VQ, VQB, VPW, VXW, VXRQ = 249, 250, 251, 252, 253
VPR, VXRP, VOR, VQD, VOS = 246, 247, 248, 249, 250
VOW = 251
VL = 255
DIAG = int(ENV("DIAG", "0"))
VDG, VDT = 238, 239

SRD_A, SRD_Q, SRD_O = 4, 8, 12
SPTR = 20
SW, SWW = 28, 29
SQSO, SQM0, SQRD, SOSO, STICK, SC, ST0, ST1, ST2 = 30, 31, 32, 33, 34, 35, 36, 37, 38
SMASK = 40
SQE, SOE, SQB, SQLIM = 42, 43, 44, 45
STM = 46
SRD_W = 48
SDL = 52

C_SCALE = 1.4426950408889634 / 16.0
LD_MODS = ENV("LD_MODS", " nt")
ST_MODS = ENV("ST_MODS", "")
LA = int(ENV("LA", "5"))
ABL = ENV("ABL", "")
PKM = ENV("PKM", "")
SCP = 54
LS2 = 232


def f32bits(x):
    return struct.unpack("<I", struct.pack("<f", x))[0]


def stamp(lane, real=False):
    if not DIAG:
        return []
    op = "s_memrealtime" if real else "s_memtime"
    o = [raw(f"{op} {sr(STM, 2)}", "smem", wr=S(STM, 2)), waitcnt(lgkm=0)]
    if isinstance(lane, int):
        o.append(I(f"v_writelane_b32 v{VDG}, s{STM}, {lane}", "valu", S(STM), V(VDG)))
    else:
        o.append(I(f"v_cmp_eq_u32 vcc, s{lane[1]}, v{VL}", "valu", V(VL), []))
        o.append(valu("v_mov_b32", v(VDT), s(STM)))
        o.append(nop(2))
        o.append(I(f"v_cndmask_b32 v{VDG}, v{VDG}, v{VDT}, vcc", "valu", V(VDG) + V(VDT), V(VDG)))
    return o


def tick_stamps():
    if DIAG != 1:
        return []
    return stamp(s(STICK)) + [salu("s_add_u32", s(SDL), s(STICK), 20)] + stamp(s(SDL), True)


def diag_end():
    if not DIAG:
        return []
    o = stamp(62) + stamp(63, True)
    o += [
        raw(f"s_load_dwordx2 {sr(SRD_W, 2)}, s[0:1], 40", "smem", wr=S(SRD_W, 2)),
        waitcnt(lgkm=0),
        salu("s_mov_b32", s(SRD_W + 2), 256 * 8 * 256),
        salu("s_mov_b32", s(SRD_W + 3), "0x00020000"),
        salu("s_lshl_b32", s(ST0), s(2), 3),
        salu("s_add_u32", s(ST0), s(ST0), s(SW)),
        salu("s_lshl_b32", s(ST0), s(ST0), 8),
        valu("v_lshlrev_b32", v(VDT), 2, v(VL)),
        raw(f"buffer_store_dword v{VDG}, v{VDT}, {sr(SRD_W, 4)}, s{ST0} offen", "vmem_st", rd=V(VDG) + V(VDT)),
    ]
    return o


def srd(a, base, ptr, off, size):
    a(salu("s_add_u32", s(base), s(ptr), s(off)))
    a(salu("s_addc_u32", s(base + 1), s(ptr + 1), 0))
    a(salu("s_and_b32", s(base + 1), s(base + 1), "0xffff"))
    a(salu("s_mov_b32", s(base + 2), size))
    a(salu("s_mov_b32", s(base + 3), "0x00020000"))


tq, th, tA, tB, tC = 128, 129, 130, 131, 132


def common_head():
    p = []
    a = p.append
    a(scmp("s_cmp_ge_u32", s(2), 256))
    a(raw("s_cbranch_scc1 L_end", "branch"))
    a(salu("s_and_b32", s(3), s(2), 7))
    a(salu("s_lshl_b32", s(3), s(3), 5))
    a(salu("s_lshr_b32", s(2), s(2), 3))
    a(salu("s_add_u32", s(2), s(2), s(3)))
    if ENV("HALF"):
        a(salu("s_and_b32", s(3), s(2), int(ENV("HALF"))))
        a(scmp("s_cmp_lg_u32", s(3), 0))
        a(raw("s_cbranch_scc1 L_end", "branch"))
    if DIAG:
        a(valu("v_mov_b32", v(VDG), 0))
        p.extend(stamp(60, True))
        p.extend(stamp(61))
    a(raw(f"s_load_dwordx4 {sr(SPTR, 4)}, s[0:1], 0", "smem", wr=S(SPTR, 4)))
    a(raw(f"s_load_dwordx4 {sr(SPTR + 4, 4)}, s[0:1], 16", "smem", wr=S(SPTR + 4, 4)))
    a(valu("v_and_b32", v(VL), 63, v(0)))
    a(valu("v_lshrrev_b32", v(tA), 6, v(0)))
    a(rfl(SW, tA))
    a(valu("v_and_b32", v(tq), 31, v(VL)))
    a(valu("v_lshrrev_b32", v(th), 5, v(VL)))
    a(salu("s_and_b32", s(SWW), s(SW), 3))
    a(salu("s_lshl_b32", s(ST0), s(2), 18))
    a(salu("s_lshl_b32", s(ST1), s(2), 17))
    a(salu("s_lshl_b32", s(ST2), s(SWW), 12))
    a(valu("v_xor_b32", v(tA), v(tq), v(th)))
    a(valu("v_lshlrev_b32", v(tA), 4, v(tA)))
    a(valu("v_lshl_add_u32", v(tA), v(th), 9, v(tA)))
    a(valu("v_add_u32", v(VQD), s(ST2), v(tA)))
    a(salu("s_mul_i32", s(SQB), s(SWW), 4 * 1056))
    a(raw("s_waitcnt lgkmcnt(0)", "wait0"))
    srd(a, SRD_Q, SPTR + 0, ST0, 262144)
    a(scmp("s_cmp_ge_u32", s(SW), 4))
    a(raw("s_cbranch_scc1 L_pv", "branch"))
    return p


def qload(a, blk):
    for n in range(4):
        a(salu("s_add_u32", "m0", s(SQB), (blk % NQ) * QSL + n * 1056))
        a(salu("s_mov_b32", s(ST2), blk * 16384 + n * 1024))
        a(buf_lds(VQD, SRD_Q, s(ST2), LD_MODS))


def qk_prologue():
    p = []
    a = p.append
    vKe, vKo, vKA = 133, 134, 136
    srd(a, SRD_A, SPTR + 2, ST1, 131072)
    a(valu("v_lshrrev_b32", v(tA), 3, v(VL)))
    a(valu("v_lshlrev_b32", v(tA), 9, v(tA)))
    a(valu("v_and_b32", v(tB), 7, v(VL)))
    a(valu("v_lshrrev_b32", v(tC), 4, v(VL)))
    a(valu("v_xor_b32", v(tB), v(tB), v(tC)))
    a(valu("v_lshl_add_u32", v(vKe), v(tB), 4, v(tA)))
    a(valu("v_xor_b32", v(vKo), 64, v(vKe)))
    a(salu("s_lshl_b32", s(ST0), s(SWW), 15))
    a(salu("s_lshl_b32", s(ST1), s(SWW), 14))
    a(salu("s_add_u32", s(ST1), s(ST1), KS))

    def kload(j):
        kt, dq = j >> 2, j & 3
        for n in range(4):
            a(salu("s_add_u32", "m0", s(ST1), (j & 3) * 4096 + n * 1024))
            a(salu("s_add_u32", s(ST2), s(ST0), kt * 16384 + n * 4096 + dq * 128))
            a(buf_lds(vKo if n & 1 else vKe, SRD_A, s(ST2), LD_MODS))

    for j in range(4):
        kload(j)
    qload(a, 0)
    p.extend(stamp(51))
    a(raw(f"s_setprio {ENV('QK_PRIO', '1')}", "salu"))
    a(valu("v_bfe_u32", v(tA), v(tq), 1, 3))
    a(valu("v_xor_b32", v(tA), v(tA), v(th)))
    a(valu("v_lshlrev_b32", v(tA), 4, v(tA)))
    a(valu("v_lshl_add_u32", v(tA), v(tq), 7, v(tA)))
    for k in range(4):
        a(valu("v_xor_b32", v(tB), 32 * k, v(tA)))
        a(valu("v_add_u32", v(vKA + k), s(ST1), v(tB)))
    a(valu("v_lshrrev_b32", v(tA), 1, v(tq)))
    a(valu("v_mul_u32_u24", v(tA), 1056, v(tA)))
    a(valu("v_and_b32", v(tB), 1, v(tq)))
    a(valu("v_lshl_add_u32", v(tA), v(tB), 9, v(tA)))
    a(valu("v_xor_b32", v(tB), v(tB), v(th)))
    a(valu("v_lshl_add_u32", v(VQB), v(tB), 4, v(tA)))
    a(salu("s_lshl_b32", s(ST2), s(SWW), 12))
    a(salu("s_add_u32", s(ST2), s(ST2), POFF))
    a(valu("v_lshlrev_b32", v(tA), 4, v(VL)))
    a(valu("v_add_u32", v(VPW), s(ST2), v(tA)))
    a(valu("v_lshlrev_b32", v(tA), 4, v(tq)))
    a(valu("v_add_u32", v(VXRQ), XOFF, v(tA)))
    a(valu("v_lshl_add_u32", v(tA), v(th), 9, v(VXRQ)))
    a(valu("v_lshrrev_b32", v(tB), 3, v(tq)))
    a(valu("v_xor_b32", v(tB), s(SWW), v(tB)))
    a(valu("v_lshl_add_u32", v(VXW), v(tB), 2, v(tA)))
    a(salu("s_mov_b32", s(SC), hex(f32bits(C_SCALE))))
    a(salu("s_mov_b32", s(SCP), hex(f32bits(C_SCALE))))
    a(salu("s_mov_b32", s(SCP + 1), hex(f32bits(C_SCALE))))
    a(salu("s_mov_b32", s(SMASK), -1))
    a(salu("s_mov_b32", s(SMASK + 1), 0))
    a(salu("s_mov_b32", s(SQRD), 0))
    a(salu("s_mov_b32", s(STICK), 0))

    def kfrags(j):
        kt, dq = j >> 2, j & 3
        for k in range(4):
            a(ds_read("ds_read_b128", AF + 4 * (16 * kt + 4 * dq + k), 4, vKA + k, (j & 3) * 4096))

    for j in range(4):
        a(waitcnt(vm=16))
        kfrags(j)
        a(waitcnt(lgkm=0))
        kload(4 + j)
    qload(a, 1)
    qload(a, 2)
    qload(a, 3)
    a(valu("v_mov_b32", v(VQ), v(VQB)))
    p.extend(stamp(40))
    for j, w in zip(range(4, 8), (24, 20, 16, 12)):
        a(waitcnt(vm=w))
        kfrags(j)
    a(waitcnt(vm=8, lgkm=0))
    p.extend(stamp(48))
    a(barrier())
    p.extend(stamp(49))
    p.extend(stamp(59, True))
    return p


def q_frag(f):
    return ds_read("ds_read_b128", FB + 4 * (f % NB), 4, VQ, 32 * (f % 16))


def qk_tick(par, doA=True, doB=True, prefetch=True, pub=True, keepmax=False):
    Sc, Sn = ACC[par], ACC[1 - par]
    slots = [[] for _ in range(33)]
    pre = []
    NPK = 8
    if doB:
        pre.append(ds_read("ds_read_b128", XV, 4, VXRQ, (1 - par) * 1024))
        X = [
            valu("v_max3_f32", v(T0), v(XV), v(XV + 1), v(XV + 2)),
            valu("v_max_f32", v(T0), v(T0), v(XV + 3)),
            valu("v_mul_f32", v(MC), s(SC), v(T0)),
        ]
        slots[2] += X
        seq = []
        for pr in range(16):
            r0, r1 = Sc + 2 * pr, Sc + 2 * pr + 1
            g = [
                valu("v_fma_f32", v(r0), v(r0), s(SC), ("neg", v(MC))),
                valu("v_fma_f32", v(r1), v(r1), s(SC), ("neg", v(MC))),
                valu("v_exp_f32", v(r0), v(r0)),
                valu("v_exp_f32", v(r1), v(r1)),
            ]
            if "f" in PKM:
                g = [valu("v_pk_fma_f32", v(r0, 2), v(r0, 2), s(SCP, 2), v(MC, 2),
                          mods=" op_sel_hi:[1,0,0] neg_lo:[0,0,1] neg_hi:[0,0,1]"), comment("")] + g[2:]
            g2 = []
            if "a" in PKM:
                if pr == 0:
                    g2.append(valu("v_pk_add_f32", v(LS2, 2), v(r0, 2), 0))
                else:
                    g2.append(valu("v_pk_add_f32", v(LS2, 2), v(LS2, 2), v(r0, 2)))
                if pr == 15:
                    g2.append(valu("v_add_f32", v(LSUM), v(LS2), v(LS2 + 1)))
            elif pr == 0:
                g2.append(valu("v_add_f32", v(LSUM), v(r0), v(r1)))
            else:
                g2.append(valu("v_add_f32", v(LSUM), v(LSUM), v(r0)))
                g2.append(valu("v_add_f32", v(LSUM), v(LSUM), v(r1)))
            g2.append(valu("v_cvt_pk_bf16_f32", v(PK + pr % NPK), v(r0), v(r1)))
            if pr % 4 == 3:
                g2.append(ds_write("ds_write_b128", VPW, PK + (pr - 3) % NPK, 4, par * 16384 + (pr // 4) * 1024))
            seq.append((g, g2))
        flat = []
        for pr in range(16):
            flat.append(seq[pr][0][:2])
            flat.append(seq[pr][0][2:])
            if pr > 0:
                flat[-2] = flat[-2] + seq[pr - 1][1]
        flat.append(seq[15][1])
        n = len(flat)
        nin = int(ENV("QK_IN", "8")) if doA else n
        for k, grp in enumerate(flat[:nin]):
            slots[3 + k * 28 // nin] += grp
        post = sum(flat[nin:], [])
    else:
        if pub:
            pre.append(valu("v_mov_b32", v(LSUM), 0))
        post = []
    M = []
    if doA:
        M.append(valu("v_max3_f32", v(LMAX), v(Sn), v(Sn + 1), v(Sn + 2)))
        M.append(valu("v_max3_f32", v(T0), v(Sn + 16), v(Sn + 17), v(Sn + 18)))
        for k in range(6):
            M.append(valu("v_max3_f32", v(LMAX), v(LMAX), v(Sn + 3 + 2 * k), v(Sn + 4 + 2 * k)))
            M.append(valu("v_max3_f32", v(T0), v(T0), v(Sn + 19 + 2 * k), v(Sn + 20 + 2 * k)))
        M.append(valu("v_max3_f32", v(LMAX), v(LMAX), v(Sn + 15), v(Sn + 31)))
        M.append(valu("v_max_f32", v(LMAX), v(LMAX), v(T0)))
    elif not keepmax:
        M.append(valu("v_mov_b32", v(LMAX), 0))
    PUB = [
        perm32swap(LMAX, LSUM),
        valu("v_max_f32", v(T0), v(LMAX), v(LSUM)),
        valu("v_add_f32", v(T1), v(LMAX), v(LSUM)),
        valu("v_cndmask_b32", v(T0), v(T1), v(T0), s(SMASK, 2)),
        ds_write("ds_write_b32", VXW, T0, 1, par * 1024),
    ]
    QUPD = [
        salu("s_add_u32", s(SQRD), s(SQRD), QSL),
        scmp("s_cmp_eq_u32", s(SQRD), NQ * QSL),
        salu("s_cselect_b32", s(SQRD), 0, s(SQRD)),
        valu("v_add_u32", v(VQ), s(SQRD), v(VQB)),
    ]
    out = list(pre)
    if doA:
        upd_at = 2 * (16 - LA) - 1
        for i in range(32):
            kk, kt = i >> 1, i & 1
            d = Sn + 16 * kt
            if "A" not in ABL:
                out.append(mfma(d, AF + 4 * (16 * kt + kk), FB + 4 * (kk % NB), None if kk == 0 else d))
            if kt == 1:
                f = kk + LA
                if f == 16:
                    out += QUPD
                if f < 16 or prefetch:
                    out.append(q_frag(f))
            out += slots[i]
    else:
        for i in range(32):
            out += slots[i]
    k = min(len(post), 14)
    out += post[:k]
    rest = post[k:]
    mi = 0
    for j, ins in enumerate(rest):
        out.append(ins)
        if j % 3 == 2 and mi < len(M):
            out.append(M[mi]); mi += 1
    out += M[mi:] + (PUB if pub else [])
    return out


def pv_prologue():
    p = []
    a = p.append
    vVD, vVA = 208, 209
    srd(a, SRD_A, SPTR + 4, ST1, 131072)
    srd(a, SRD_O, SPTR + 6, ST0, 0)
    a(salu("s_lshl_b32", s(ST2), s(SWW), 7))
    a(valu("v_lshrrev_b32", v(tA), 3, v(VL)))
    a(valu("v_and_b32", v(tB), 7, v(VL)))
    a(valu("v_lshlrev_b32", v(tC), 9, v(tA)))
    a(valu("v_lshl_add_u32", v(tC), v(tB), 4, v(tC)))
    a(valu("v_add_u32", v(VOS), s(ST2), v(tC)))
    a(valu("v_bfe_u32", v(tC), v(VL), 4, 1))
    a(valu("v_lshlrev_b32", v(tC), 6, v(tC)))
    a(valu("v_xor_b32", v(vVD), v(tC), v(VOS)))
    a(salu("s_lshl_b32", s(ST2), s(SWW), 12))
    a(salu("s_add_u32", s(ST2), s(ST2), OOFF))
    a(valu("v_xor_b32", v(tC), v(tA), v(tB)))
    a(valu("v_lshlrev_b32", v(tC), 4, v(tC)))
    a(valu("v_lshl_add_u32", v(tC), v(tA), 7, v(tC)))
    a(valu("v_add_u32", v(VOR), s(ST2), v(tC)))
    a(valu("v_and_b32", v(tC), 7, v(tq)))
    a(valu("v_lshlrev_b32", v(tB), 1, v(th)))
    a(valu("v_xor_b32", v(tC), v(tC), v(tB)))
    a(valu("v_lshlrev_b32", v(tC), 4, v(tC)))
    a(valu("v_lshl_add_u32", v(tC), v(tq), 7, v(tC)))
    for dt in range(2):
        for e in range(2):
            a(valu("v_xor_b32", v(tB), 64 * dt + 16 * e, v(tC)))
            a(valu("v_add_u32", v(VOW + 2 * dt + e), s(ST2), v(tB)))
    a(valu("v_lshlrev_b32", v(tA), 4, v(VL)))
    a(valu("v_add_u32", v(VPR), POFF, v(tA)))
    a(valu("v_lshlrev_b32", v(tA), 4, v(tq)))
    a(valu("v_add_u32", v(VXRP), XOFF + 512, v(tA)))
    a(valu("v_bfe_u32", v(tA), v(VL), 2, 2))
    a(valu("v_lshl_add_u32", v(tA), v(th), 2, v(tA)))
    a(valu("v_lshlrev_b32", v(tA), 7, v(tA)))
    a(valu("v_bfe_u32", v(tB), v(VL), 3, 1))
    a(valu("v_lshl_add_u32", v(tA), v(tB), 6, v(tA)))
    a(valu("v_and_b32", v(tB), 1, v(VL)))
    a(valu("v_lshl_add_u32", v(tA), v(tB), 5, v(tA)))
    a(valu("v_bfe_u32", v(tB), v(VL), 4, 1))
    a(valu("v_lshl_add_u32", v(tA), v(tB), 4, v(tA)))
    a(valu("v_bfe_u32", v(tB), v(VL), 1, 1))
    a(valu("v_lshl_add_u32", v(tA), v(tB), 3, v(tA)))
    a(valu("v_xor_b32", v(tB), 64, v(tA)))
    a(valu("v_add_u32", v(vVA), s(ST2), v(tA)))
    a(valu("v_add_u32", v(vVA + 1), s(ST2), v(tB)))
    a(salu("s_mov_b32", s(ST0), s(ST2)))
    a(valu("v_add_u32", v(vVA + 2), s(SQB), v(tA)))
    a(valu("v_add_u32", v(vVA + 3), s(SQB), v(tB)))
    a(salu("s_mov_b32", s(SQSO), 9 * 16384))
    a(salu("s_add_u32", s(SQM0), s(SQB), 3 * QSL))
    a(salu("s_add_u32", s(SQLIM), s(SQB), NQ * QSL))
    a(salu("s_mov_b32", s(SOSO), 0))
    a(salu("s_mov_b32", s(STICK), 4))
    VLOC = {0: 4, 1: 5, 2: "o", 3: 0, 4: 1, 5: 2, 6: 3, 7: "o"}

    def vdest(j):
        loc = VLOC[j]
        if loc == "o":
            return ST0, 0, vVA
        return SQB, loc * QSL, vVA + 2

    def vload(j):
        sb, off, _ = vdest(j)
        for n in range(4):
            a(salu("s_add_u32", "m0", s(sb), off + n * 1024))
            a(salu("s_mov_b32", s(ST2), (32 * j + 8 * n) * 512))
            a(buf_lds(vVD, SRD_A, s(ST2), LD_MODS))

    def vproc(j, first):
        _, off, ar = vdest(j)
        if off >= 65536 - 4096:
            a(valu("v_add_u32", v(vVA + 4), off, v(ar)))
            a(valu("v_add_u32", v(vVA + 5), off, v(ar + 1)))
            ar, off = vVA + 4, 0
        for b in range(2):
            for dt in range(2):
                for aa in range(2):
                    a(ds_read("ds_read_b64_tr_b16", AF + 4 * (16 * dt + 2 * j + b) + 2 * aa, 2, ar + dt,
                              off + (16 * b + 8 * aa) * 128))
        for blk in range(2):
            for b in range(2):
                a(ds_read("ds_read_b128", FB + 4 * (2 * blk + b), 4, VPR, blk * 16384 + (2 * j + b) * 1024))
        for blk in range(2):
            for b in range(2):
                for dt in range(2):
                    d = ACC[blk] + 16 * dt
                    a(mfma(d, AF + 4 * (16 * dt + 2 * j + b), FB + 4 * (2 * blk + b), None if (first and b == 0) else d))
        p.extend(stamp(41 + j))

    def dummy_st():
        for _ in range(4):
            a(buf_store(PK, VOS, SRD_O, 0))

    p.extend(stamp(51))
    a(raw(f"s_setprio {ENV('PV_PRIO', '0')}", "salu"))
    a(barrier())
    p.extend(stamp(49))
    p.extend(stamp(59, True))
    vload(0); vload(1); vload(2)
    a(barrier())
    vload(3)
    a(barrier())
    vload(4)
    a(barrier())
    vload(5)
    for blk in range(2):
        a(ds_read("ds_read_b128", XV, 4, VXRP, blk * 1024))
        a(valu("v_add_f32", v(XV), v(XV), v(XV + 1)))
        a(valu("v_add_f32", v(XV + 2), v(XV + 2), v(XV + 3)))
        a(valu("v_add_f32", v(XV), v(XV), v(XV + 2)))
        a(valu("v_rcp_f32", v(INV[blk]), v(XV)))
    a(waitcnt(vm=20)); vproc(0, True); qload(a, 4)
    a(barrier())
    vload(6)
    a(waitcnt(vm=24)); vproc(1, False)
    a(waitcnt(vm=20)); vproc(2, False); vload(7); qload(a, 5)
    if ENV("LATEQ"):
        a(waitcnt(vm=24)); vproc(3, False)
        a(waitcnt(vm=20)); vproc(4, False)
        a(waitcnt(vm=16)); vproc(5, False)
        a(waitcnt(vm=8)); vproc(6, False)
        a(waitcnt(vm=4)); vproc(7, False)
        a(barrier())
        qload(a, 6); dummy_st(); qload(a, 7); dummy_st(); qload(a, 8)
    else:
        a(waitcnt(vm=24)); vproc(3, False); qload(a, 6); dummy_st()
        a(waitcnt(vm=28)); vproc(4, False); qload(a, 7); dummy_st()
        a(waitcnt(vm=32)); vproc(5, False); qload(a, 8)
        a(waitcnt(vm=28)); vproc(6, False)
        a(waitcnt(vm=24)); vproc(7, False)
        a(barrier())
    a(salu("s_mov_b32", s(SRD_O + 2), 262144))
    p.extend(pv_final(0))
    a(barrier())
    p.extend(stamp(3) + stamp(23, True))
    return p


def pv_final(par_o):
    E = pv_E(par_o, INV[par_o])
    hdr, rd, st = pv_D()
    if NPKB == 4:
        return E + hdr + rd + sum(st, [])
    return E + hdr + rd[:3] + st[0] + [rd[3]] + sum(st[1:], [])


def pv_E(par_o, inv):
    O = ACC[par_o]
    E = []
    for c in range(4):
        b = O + 8 * c
        if "m" in PKM:
            for r in range(0, 8, 2):
                sel = " op_sel_hi:[1,0]" if inv % 2 == 0 else " op_sel:[0,1] op_sel_hi:[1,1]"
                E.append(valu("v_pk_mul_f32", v(b + r, 2), v(b + r, 2), v(inv & ~1, 2), mods=sel))
                E.append(comment(""))
        else:
            for r in range(8):
                E.append(valu("v_mul_f32", v(b + r), v(b + r), v(inv)))
        for r in range(4):
            E.append(valu("v_cvt_pk_bf16_f32", v(PK + 4 * (c % NPKB) + r), v(b + 2 * r), v(b + 2 * r + 1)))
        E.append(ds_write("ds_write_b128", VOW + c, PK + 4 * (c % NPKB), 4))
    return E


NPKB = 3 if DIAG else 4


def pv_D():
    hdr = [
        salu("s_mov_b32", s(SOE), s(SOSO)),
        salu("s_add_u32", s(SOSO), s(SOSO), 16384),
    ]
    rd = [ds_read("ds_read_b128", PK + 4 * (n % NPKB), 4, VOR, 1024 * n) for n in range(4)]
    st = []
    for n in range(4):
        g = [buf_store(PK + 4 * (n % NPKB), VOS, SRD_O, s(SOE), ST_MODS)]
        if n < 3:
            g.append(salu("s_add_u32", s(SOE), s(SOE), 4096))
        st.append(g)
    return hdr, rd, st


def pv_tick(par, mode=None):
    Oc = ACC[1 - par]
    slots = [[] for _ in range(33)]

    def p_frag(m):
        return ds_read("ds_read_b128", FB + 4 * (m % NB), 4, VPR, (1 - par) * 16384 + m * 1024)

    pre = [p_frag(m) for m in range(LA)]
    pre.append(ds_read("ds_read_b128", XV, 4, VXRP, (1 - par) * 1024))
    E = pv_E(par, INV[par])
    hdr, rd, st = pv_D()
    X = [
        valu("v_add_f32", v(XV), v(XV), v(XV + 1)),
        valu("v_add_f32", v(XV + 2), v(XV + 2), v(XV + 3)),
        valu("v_add_f32", v(XV), v(XV), v(XV + 2)),
        valu("v_rcp_f32", v(INV[1 - par]), v(XV)),
    ]
    qd = [
        scmp("s_cmp_lt_u32", s(SQSO), 262144),
        salu("s_cselect_b32", s(SRD_Q + 2), 262144, 0),
        salu("s_cselect_b32", s(SQE), s(SQSO), 0),
        salu("s_add_u32", s(SQSO), s(SQSO), 16384),
    ]
    ql = []
    for n in range(4):
        g = [salu("s_add_u32", "m0", s(SQM0), n * 1056)]
        if n:
            g.append(salu("s_add_u32", s(SQE), s(SQE), 1024))
        else:
            g.append(nop(1))
        g.append(buf_lds(VQD, SRD_Q, s(SQE), LD_MODS))
        ql.append(g)
    qu = [
        salu("s_add_u32", s(SQM0), s(SQM0), QSL),
        scmp("s_cmp_eq_u32", s(SQM0), s(SQLIM)),
        salu("s_cselect_b32", s(SQM0), s(SQB), s(SQM0)),
    ]
    mode = mode or ENV("PV_MODE", "1")
    if mode == "0":
        npre = 13
        pre += E[:npre]
        pre += qd
        rest = E[npre:]
        for k, ins in enumerate(rest):
            slots[k * 13 // len(rest)].append(ins)
        for n in range(4):
            slots[1 + 3 * n] += ql[n]
        slots[11] += qu
        slots[13] += X
        if NPKB == 4:
            slots[14] += rd[:2]
            slots[15] += rd[2:] + hdr
            for n in range(4):
                slots[18 + 3 * n] += st[n]
        else:
            slots[14] += rd[:3] + hdr
            slots[18] += st[0] + [rd[3]]
            for n in range(1, 4):
                slots[18 + 3 * n] += st[n]
    else:
        pre += qd
        for c in range(4):
            pre += E[13 * c:13 * c + 13] + ql[c]
        pre += qu
        if NPKB == 4:
            pre += rd + X + hdr
            sts = st
        else:
            pre += rd[:3] + X + hdr
            sts = [st[0] + [rd[3]]] + st[1:]
        if mode == "1":
            pre += sum(sts, [])
        else:
            for n in range(4):
                slots[2 * n] += sts[n]
    out = list(pre)
    for i in range(32):
        m, dt = i >> 1, i & 1
        d = Oc + 16 * dt
        if "A" not in ABL:
            out.append(mfma(d, AF + 4 * (16 * dt + m), FB + 4 * (m % NB), None if m == 0 else d))
        if dt == 1 and m + LA < 16:
            out.append(p_frag(m + LA))
        out += slots[i]
    out.append(waitcnt(vm=28))
    return out


def pv_last():
    par = 0
    Oc = ACC[1]

    def p_frag(f):
        return ds_read("ds_read_b128", FB + 4 * (f % NB), 4, VPR, 16384 + (f % 16) * 1024)

    L2 = 7
    pre = [p_frag(f) for f in range(L2)]
    pre.append(ds_read("ds_read_b128", XV, 4, VXRP, 1024))
    X = [
        valu("v_add_f32", v(XV), v(XV), v(XV + 1)),
        valu("v_add_f32", v(XV + 2), v(XV + 2), v(XV + 3)),
        valu("v_add_f32", v(XV), v(XV), v(XV + 2)),
        valu("v_rcp_f32", v(INV[1]), v(XV)),
    ]
    E14 = pv_E(0, INV[0])
    hdr, rd, st = pv_D()
    E15 = pv_E(1, INV[1])
    hdr2, rd2, st2 = pv_D()
    slots = [[] for _ in range(33)]
    pre += E14[:13]
    rest = E14[13:]
    for k, ins in enumerate(rest):
        slots[k * 9 // len(rest)].append(ins)
    slots[9] += X + hdr
    nb = NPKB
    if nb == 4:
        slots[10] += rd
        for n in range(4):
            slots[13 + 2 * n] += st[n]
    else:
        slots[10] += rd[:3]
        slots[13] += st[0] + [rd[3]]
        for n in range(1, 4):
            slots[13 + 2 * n] += st[n]
    h = E15[:26]
    for k, ins in enumerate(h):
        slots[21 + k * 10 // len(h)].append(ins)
    out = list(pre)
    for i in range(32):
        dt, m = i >> 4, i & 15
        d = Oc + 16 * dt
        out.append(mfma(d, AF + 4 * (16 * dt + m), FB + 4 * (i % NB), None if m == 0 else d))
        if i + L2 < 32:
            out.append(p_frag(i + L2))
        out += slots[i]
    out += E15[26:] + hdr2
    if nb == 4:
        out += rd2 + sum(st2, [])
    else:
        out += rd2[:3] + st2[0] + [rd2[3]] + sum(st2[1:], [])
    return out


def ablate(seq):
    out = []
    for x in seq:
        if "V" in ABL and x.kind in ("valu", "trans", "perm") and not (x.wr & set(V(VQ))):
            continue
        if "T" in ABL and x.kind == "trans":
            continue
        if "W" in ABL and x.kind == "dsw":
            continue
        if "M" in ABL and (x.kind in ("vmem_lds", "vmem_st") or (x.kind == "wait" and x.tag[0] is not None)):
            continue
        if "F" in ABL and x.kind == "dsr":
            continue
        if "S" in ABL and x.kind == "mfma":
            import re
            m = re.match(r"v_mfma_f32_32x32x16_bf16 v\[(\d+):\d+\], v\[(\d+):\d+\], v\[(\d+):\d+\], (.*)", x.text)
            d, a_, b_ = int(m.group(1)), int(m.group(2)), int(m.group(3))
            first = m.group(4) == "0"
            odd = (a_ // 4) & 1
            for hh in range(2):
                dd = d + 8 * odd + 4 * hh
                c = "0" if (a_ // 4) % 16 < 2 else vr(dd, 4)
                out.append(I(f"v_mfma_f32_16x16x32_bf16 {vr(dd,4)}, {vr(a_ ^ (4*hh),4)}, {vr(b_,4)}, {c}", "mfma", x.rd, x.wr, x.wr))
            continue
        out.append(x)
    return out


def finalize(seq, q0=None, hist=None):
    s1, q = insert_lgkm_waits(seq, q0)
    return pad_hazards(s1, hist), q


def build():
    T = []
    head = common_head()
    head, _ = finalize(head)
    T.append(render(head))

    pro = qk_prologue() + [q_frag(f) for f in range(LA)]
    inc = [salu("s_add_u32", s(STICK), s(STICK), 1)]
    tm1 = qk_tick(1, doA=True, doB=False) + [waitcnt(vm=4), barrier()] + tick_stamps() + inc
    pro, q = finalize(pro + tm1, None, head[-30:])
    T.append(render(pro))

    pf = [waitcnt(lgkm=0)] + [q_frag(f) for f in range(LA)] + [waitcnt(lgkm=0)]
    b0 = ablate(qk_tick(0)) + [waitcnt(vm=0), barrier()] + tick_stamps()
    b1 = ablate(qk_tick(1)) + [barrier()] + tick_stamps()
    body_a, qa = insert_lgkm_waits(b0, q)
    body_b, qb = insert_lgkm_waits(b1, qa)
    tb, t0 = [i.text for i in qb], [i.text for i in q]
    assert DIAG or ABL or t0[len(t0) - len(tb):] == tb, (t0, tb)
    mid = [scmp("s_cmp_eq_u32", s(STICK), 15), raw("s_cbranch_scc1 L_qk_tail", "branch")] + inc + [label("L_qk_l1")]
    end = [scmp("s_cmp_eq_u32", s(STICK), 2), raw("s_cbranch_scc1 L_qk_special", "branch"),
           scmp("s_cmp_lg_u32", s(STICK), 4), raw("s_cbranch_scc1 L_qk_r1", "branch")] + pf + [label("L_qk_r1")] + \
        inc + [raw("s_branch L_qk_loop", "branch")]
    loop = body_a + mid + body_b + end
    h1 = pad_hazards(loop, pro[-40:])
    h2 = pad_hazards(h1, h1[-40:])
    assert len(h1) == len(h2)
    T.append(".p2align 6\nL_qk_loop:\n" + render(h1))
    sp = inc + qk_tick(0, doA=True, doB=False, prefetch=False, pub=False) + [barrier(), barrier()] + \
        qk_tick(0, doA=False, doB=True, keepmax=True) + [barrier()] + tick_stamps() + pf + inc + \
        [nop(8), raw("s_branch L_qk_l1", "branch")]
    sp, _ = finalize(sp, qb, [])
    T.append("L_qk_special:\n    s_nop 7\n    s_nop 7\n" + render(sp))
    tail = inc + [raw("s_setprio 0", "salu")] + qk_tick(1, doA=False, doB=True) + [barrier()] + tick_stamps() + diag_end()
    tail, _ = finalize(tail, qa, [])
    T.append("L_qk_tail:\n    s_nop 7\n    s_nop 7\n" + render(tail) + "\n    s_endpgm")

    pp = pv_prologue()
    pp, q = finalize(pp, None, head[-30:])
    assert len(q) == 0 or DIAG
    T.append("L_pv:\n" + render(pp))
    c1 = ablate(pv_tick(1)) + [barrier()] + tick_stamps() + inc
    c0 = ablate(pv_tick(0)) + [barrier()] + tick_stamps() + inc
    l1, q1 = insert_lgkm_waits(c1, [])
    l0, q2 = insert_lgkm_waits(c0, q1)
    loop = l1 + l0 + [scmp("s_cmp_lt_u32", s(STICK), 16), raw("s_cbranch_scc1 L_pv_loop", "branch")]
    assert len(q2) == 0 or ABL, [i.text for i in q2]
    h1 = pad_hazards(loop, pp[-40:])
    h2 = pad_hazards(h1, h1[-40:])
    assert len(h1) == len(h2)
    T.append(".p2align 6\nL_pv_loop:\n" + render(h1))
    tm = ENV("PV_TAILMODE", "0")

    def strip_q(seq):
        return [x for x in seq if not (x.kind == "vmem_lds" or "m0" in x.wr or (x.kind == "wait" and x.tag[0] is not None))]

    if ENV("TAIL2", "1") == "1":
        fin = stamp(58) + stamp(57, True) + [raw("s_setprio 2", "salu")] + strip_q(pv_tick(1, tm)) + [barrier()] + \
            tick_stamps() + inc + pv_last() + diag_end()
    else:
        fin = stamp(58) + stamp(57, True) + strip_q(pv_tick(1, tm)) + [barrier()] + tick_stamps() + inc + \
            strip_q(pv_tick(0, tm)) + tick_stamps() + pv_final(1) + diag_end()
    fin, _ = finalize(fin, [], h1[-40:])
    T.append(render(fin))
    return "\n".join(T)


HEADER = """; Kernarg layout for this problem (48 bytes, ptrs only, base s[0:1]):
; @launch grid=(256,1,1) block=(512,1,1) lds={lds}
.amdgcn_target "amdgcn-amd-amdhsa--gfx950"
.text
.globl {name}_kernel
.p2align 8
.type {name}_kernel,@function
{name}_kernel:
"""

FOOTER = """
L_end:
    s_endpgm
.section .rodata,"a"
.p2align 6
.amdhsa_kernel {name}_kernel
  .amdhsa_next_free_vgpr 256
  .amdhsa_next_free_sgpr 64
  .amdhsa_accum_offset 256
  .amdhsa_group_segment_fixed_size 0
  .amdhsa_kernarg_size 48
  .amdhsa_user_sgpr_count 2
  .amdhsa_user_sgpr_kernarg_segment_ptr 1
  .amdhsa_system_sgpr_workgroup_id_x 1
.end_amdhsa_kernel
"""


def main():
    txt = HEADER.format(name=NAME, lds=LDS_BYTES) + build() + FOOTER.format(name=NAME)
    out = sys.argv[1] if len(sys.argv) > 1 else f"cdna_kernels/{NAME}.s"
    open(out, "w").write(txt)
    print(f"wrote {out}: {txt.count(chr(10))} lines")


if __name__ == "__main__":
    main()
```

```python
def V(n, cnt=1):
    return [("v", n + i) for i in range(cnt)]


def S(n, cnt=1):
    return [("s", n + i) for i in range(cnt)]


def vr(n, cnt=1):
    return f"v{n}" if cnt == 1 else f"v[{n}:{n + cnt - 1}]"


def sr(n, cnt=1):
    return f"s{n}" if cnt == 1 else f"s[{n}:{n + cnt - 1}]"


class I:
    __slots__ = ("text", "kind", "rd", "wr", "c_rd", "tag", "nws")

    def __init__(self, text, kind, rd=(), wr=(), c_rd=(), tag=None, nws=1):
        self.text = text
        self.kind = kind
        self.rd = set(rd)
        self.wr = set(wr)
        self.c_rd = set(c_rd)
        self.tag = tag
        self.nws = nws

    def __repr__(self):
        return self.text


def _regs(op):
    if isinstance(op, tuple):
        k, n, c = op
        return [(k, n + i) for i in range(c)]
    return []


def _txt(op):
    if isinstance(op, tuple):
        k, n, c = op
        return f"{k}{n}" if c == 1 else f"{k}[{n}:{n + c - 1}]"
    return str(op)


def v(n, c=1):
    return ("v", n, c)


def s(n, c=1):
    return ("s", n, c)


TRANS = ("v_exp_f32", "v_rcp_f32", "v_log_f32", "v_rsq_f32", "v_sqrt_f32")


def valu(op, dst, *srcs, mods=""):
    kind = "trans" if op in TRANS else "valu"
    rd = []
    for x in srcs:
        if isinstance(x, tuple) and len(x) == 2 and x[0] == "neg":
            rd += _regs(x[1])
        else:
            rd += _regs(x)
    if op in ("v_fmac_f32",):
        rd += _regs(dst)

    def t(x):
        if isinstance(x, tuple) and len(x) == 2 and x[0] == "neg":
            return "-" + _txt(x[1])
        return _txt(x)

    text = f"{op} {_txt(dst)}, " + ", ".join(t(x) for x in srcs) + mods
    return I(text, kind, rd, _regs(dst))


def salu(op, dst, *srcs):
    rd = []
    for x in srcs:
        rd += _regs(x)
        if x == "m0":
            rd.append("m0")
    wr = _regs(dst) if isinstance(dst, tuple) else ([dst] if dst == "m0" else [])
    parts = ([_txt(dst)] if dst is not None else []) + [_txt(x) for x in srcs]
    return I(f"{op} " + ", ".join(parts), "salu", rd, wr)


def scmp(op, a, b):
    return I(f"{op} {_txt(a)}, {_txt(b)}", "salu", _regs(a) + _regs(b), [])


def mfma(d, a, b, c):
    ctxt = vr(c, 16) if c is not None else "0"
    crd = V(c, 16) if c is not None else []
    return I(
        f"v_mfma_f32_32x32x16_bf16 {vr(d, 16)}, {vr(a, 4)}, {vr(b, 4)}, {ctxt}",
        "mfma",
        V(a, 4) + V(b, 4) + crd,
        V(d, 16),
        c_rd=crd,
    )


def mfma16(d, a, b, c):
    ctxt = vr(c, 4) if c is not None else "0"
    crd = V(c, 4) if c is not None else []
    i = I(
        f"v_mfma_f32_16x16x32_bf16 {vr(d, 4)}, {vr(a, 4)}, {vr(b, 4)}, {ctxt}",
        "mfma",
        V(a, 4) + V(b, 4) + crd,
        V(d, 4),
        c_rd=crd,
    )
    i.tag = 4
    return i


def perm16swap(a, b):
    return I(f"v_permlane16_swap_b32 v{a}, v{b}", "perm", V(a) + V(b), V(a) + V(b))


def ds_read(op, dst, cnt, addr, off=0):
    assert 0 <= off < 65536, off
    o = f" offset:{off}" if off else ""
    return I(f"{op} {vr(dst, cnt)}, v{addr}{o}", "dsr", V(addr), V(dst, cnt))


def ds_write(op, addr, src, cnt, off=0):
    assert 0 <= off < 65536, off
    o = f" offset:{off}" if off else ""
    return I(f"{op} v{addr}, {vr(src, cnt)}{o}", "dsw", V(addr) + V(src, cnt), [])


def buf_lds(voff, srd, soff, mods=""):
    so = _txt(soff)
    return I(
        f"buffer_load_dwordx4 v{voff}, {sr(srd, 4)}, {so} offen{mods} lds",
        "vmem_lds",
        V(voff) + S(srd, 4) + _regs(soff) + ["m0"],
        [],
    )


def buf_store(data, voff, srd, soff, mods=""):
    so = _txt(soff)
    return I(
        f"buffer_store_dwordx4 {vr(data, 4)}, v{voff}, {sr(srd, 4)}, {so} offen{mods}",
        "vmem_st",
        V(data, 4) + V(voff) + S(srd, 4) + _regs(soff),
        [],
    )


def perm32swap(a, b):
    return I(f"v_permlane32_swap_b32 v{a}, v{b}", "perm", V(a) + V(b), V(a) + V(b))


def rfl(sd, vs):
    return I(f"v_readfirstlane_b32 s{sd}, v{vs}", "rfl", V(vs), S(sd))


def waitcnt(vm=None, lgkm=None):
    parts = []
    if vm is not None:
        assert 0 <= vm <= 63
        parts.append(f"vmcnt({vm})")
    if lgkm is not None:
        assert 0 <= lgkm <= 15
        parts.append(f"lgkmcnt({lgkm})")
    i = I("s_waitcnt " + " ".join(parts), "wait")
    i.tag = (vm, lgkm)
    return i


def barrier():
    return I("s_barrier", "barrier")


def label(name):
    return I(f"{name}:", "label", nws=0)


def nop(n):
    assert 1 <= n <= 16
    return I(f"s_nop {n - 1}", "nop", nws=n)


def raw(text, kind="salu", rd=(), wr=()):
    return I(text, kind, rd, wr)


def comment(text):
    return I(f"; {text}", "label", nws=0)


def insert_lgkm_waits(insts, queue=None):
    out = []
    q = list(queue or [])

    def need(idx):
        n = len(q) - idx - 1
        return min(n, 15)

    for ins in insts:
        if ins.kind == "wait":
            vm, lg = ins.tag
            if lg is not None:
                del q[: max(0, len(q) - lg)]
            out.append(ins)
            continue
        touched = ins.rd | ins.wr
        idx = -1
        for k, op in enumerate(q):
            if op.kind == "dsr" and (op.wr & touched):
                idx = k
            if ins.kind == "barrier" and op.kind == "dsw":
                idx = k
        if idx >= 0:
            n = need(idx)
            if out and out[-1].kind == "wait" and out[-1].tag[1] is None:
                out[-1] = waitcnt(vm=out[-1].tag[0], lgkm=n)
            else:
                out.append(waitcnt(lgkm=n))
            del q[: len(q) - n]
        if ins.kind in ("dsr", "dsw"):
            q.append(ins)
            if len(q) > 15:
                out.append(waitcnt(lgkm=14))
                del q[: len(q) - 1 - 14]
        out.append(ins)
    return out, q


def required_ws(p, c):
    need = 0
    pv = p.kind in ("valu", "trans", "perm", "rfl")
    cv = c.kind in ("valu", "trans", "perm", "rfl")
    pw = p.wr
    if pv and c.kind == "mfma" and (pw & c.rd):
        need = max(need, 2)
    if p.kind == "mfma":
        d = p.wr
        four = p.tag == 4
        W_RD, W_OV, W_WAR = (8, 6, 3) if four else (12, 10, 7)
        if c.kind == "mfma":
            ab = c.rd - c.c_rd
            if d & ab:
                need = max(need, W_RD)
            if d & c.c_rd and c.c_rd != d:
                need = max(need, W_OV)
            if (d & c.wr) and c.wr != d:
                need = max(need, W_RD)
            if c.wr == d and not c.c_rd:
                need = max(need, W_OV)
        else:
            if d & (c.rd | c.wr):
                need = max(need, W_RD)
        if cv and (p.c_rd & c.wr):
            need = max(need, W_WAR)
    if p.kind == "trans" and c.kind in ("valu", "perm", "rfl") and (pw & c.rd):
        need = max(need, 1)
    if p.kind == "trans" and c.kind in ("dsw", "vmem_st") and (pw & c.rd):
        need = max(need, 1)
    if pv and c.kind == "perm" and (pw & c.rd):
        need = max(need, 2)
    if pv and c.kind == "rfl" and (pw & c.rd):
        need = max(need, 1)
    sw = {r for r in pw if isinstance(r, tuple) and r[0] == "s"}
    if pv and sw:
        if c.kind in ("vmem_lds", "vmem_st", "vmem_ld") and (sw & c.rd):
            need = max(need, 5)
        if cv and (sw & c.rd):
            need = max(need, 2)
        if c.kind == "salu" and (sw & c.rd):
            need = max(need, 4)
    if p.kind == "salu" and "m0" in pw and c.kind == "vmem_lds":
        need = max(need, 1)
    if p.kind == "vmem_st" and any(isinstance(r, tuple) and r[0] == "v" for r in (p.rd & c.wr)):
        need = max(need, 2)
    return need


def pad_hazards(insts, history=None, window=24):
    out = list(history or [])
    h = len(out)
    for ins in insts:
        if ins.kind == "label":
            out.append(ins)
            continue
        dist = 0
        short = 0
        k = len(out) - 1
        while k >= 0 and dist < window:
            p = out[k]
            if p.kind != "label":
                r = required_ws(p, ins)
                if r > dist:
                    short = max(short, r - dist)
                dist += p.nws
            k -= 1
        while short > 0:
            n = min(short, 16)
            out.append(nop(n))
            short -= n
        out.append(ins)
    return out[h:]


def render(insts):
    lines = []
    for i in insts:
        if i.kind == "label":
            lines.append(i.text)
        else:
            lines.append("    " + i.text)
    return "\n".join(lines)
```

```python
import struct
import sys
import os

sys.path.insert(0, os.path.dirname(__file__))
from asmlib import *

NAME = "standalone__gqa_softmax__near_ridge"
ENV = os.environ.get
SH = int(ENV("SH", "32"))
S16 = SH == 16
NQT = 2 if S16 else 1

QSL = 16896
NQ = 6
POFF = NQ * QSL
OOFF = POFF + 32768
XOFF = OOFF + 16384
LDS_BYTES = XOFF + 2048
KS = 5 * QSL
P2OFF = QSL
assert KS + 65536 <= XOFF and LDS_BYTES <= 163840

AF = 0
ACC = [128, 160]
FB = 192
NB = 8
VL = 255
PK = 224
XVA, XVB = 232, 224
MC, LSUM, LMAX = [240, 241], [242, 243], [244, 245]
T0, T1 = 246, 247
VQ, VQB, VPW, VXW, VXRQ = 249, 250, 251, 252, 253
ACC2 = 208
XV = 240
if S16:
    INV = [[244, 245], [246, 247]]
    VOW = [248, 254]
else:
    INV = [[244], [245]]
    VOW = [246, 247, 248, 254]
VQD, VPR, VXRP, VOR, VOS = 249, 250, 251, 252, 253

DIAG = int(ENV("DIAG", "0"))
DG = {"v": 238, "t": 239}

SRD_A, SRD_Q, SRD_O = 4, 8, 12
SPTR = 20
SW, SWW = 28, 29
SQSO, SQM0, SQRD, SOSO, STICK, SC, ST0, ST1, ST2 = 30, 31, 32, 33, 34, 35, 36, 37, 38
SMASK = 40
SQE, SOE, SQB, SQLIM = 42, 43, 44, 45
STM = 46
SRD_W = 48
SDL = 52
ST3 = 53

C_SCALE = 1.4426950408889634 / 16.0
LD_MODS = ENV("LD_MODS", " nt")
ST_MODS = ENV("ST_MODS", "")
LA = int(ENV("LA", "5"))
NM = 4 if S16 else 2
NSL = 16 * NM


def f32bits(x):
    return struct.unpack("<I", struct.pack("<f", x))[0]


def stamp(lane, real=False):
    if not DIAG:
        return []
    vd, vt = DG["v"], DG["t"]
    op = "s_memrealtime" if real else "s_memtime"
    o = [raw(f"{op} {sr(STM, 2)}", "smem", wr=S(STM, 2)), waitcnt(lgkm=0)]
    if isinstance(lane, int):
        o.append(I(f"v_writelane_b32 v{vd}, s{STM}, {lane}", "valu", S(STM), V(vd)))
    else:
        o.append(I(f"v_cmp_eq_u32 vcc, s{lane[1]}, v{VL}", "valu", V(VL), []))
        o.append(valu("v_mov_b32", v(vt), s(STM)))
        o.append(nop(2))
        o.append(I(f"v_cndmask_b32 v{vd}, v{vd}, v{vt}, vcc", "valu", V(vd) + V(vt), V(vd)))
    return o


def tick_stamps():
    if DIAG != 1:
        return []
    return stamp(s(STICK)) + [salu("s_add_u32", s(SDL), s(STICK), 20)] + stamp(s(SDL), True)


def diag_end():
    if not DIAG:
        return []
    vd, vt = DG["v"], DG["t"]
    o = stamp(62) + stamp(63, True)
    o += [
        raw(f"s_load_dwordx2 {sr(SRD_W, 2)}, s[0:1], 40", "smem", wr=S(SRD_W, 2)),
        waitcnt(lgkm=0),
        salu("s_mov_b32", s(SRD_W + 2), 256 * 8 * 256),
        salu("s_mov_b32", s(SRD_W + 3), "0x00020000"),
        salu("s_lshl_b32", s(ST0), s(2), 3),
        salu("s_add_u32", s(ST0), s(ST0), s(SW)),
        salu("s_lshl_b32", s(ST0), s(ST0), 8),
        valu("v_lshlrev_b32", v(vt), 2, v(VL)),
        raw(f"buffer_store_dword v{vd}, v{vt}, {sr(SRD_W, 4)}, s{ST0} offen", "vmem_st", rd=V(vd) + V(vt)),
    ]
    return o


def srd(a, base, ptr, off, size):
    a(salu("s_add_u32", s(base), s(ptr), s(off)))
    a(salu("s_addc_u32", s(base + 1), s(ptr + 1), 0))
    a(salu("s_and_b32", s(base + 1), s(base + 1), "0xffff"))
    a(salu("s_mov_b32", s(base + 2), size))
    a(salu("s_mov_b32", s(base + 3), "0x00020000"))


def mm(d, a_, b_, first):
    return (mfma16 if S16 else mfma)(d, a_, b_, None if first else d)


def frag_mfmas(f, acc, buf):
    if S16:
        kstep, qt = f >> 1, f & 1
        return [(acc + 16 * qt + 4 * t, AF + 4 * (8 * t + kstep), kstep == 0) for t in range(4)]
    return [(acc + 16 * t, AF + 4 * (16 * t + f), f == 0) for t in range(2)]


tq, th, tA, tB, tC, tc16, tg = 128, 129, 130, 131, 132, 140, 141


def common_head():
    p = []
    a = p.append
    a(scmp("s_cmp_ge_u32", s(2), 256))
    a(raw("s_cbranch_scc1 L_end", "branch"))
    a(salu("s_and_b32", s(3), s(2), 7))
    a(salu("s_lshl_b32", s(3), s(3), 5))
    a(salu("s_lshr_b32", s(2), s(2), 3))
    a(salu("s_add_u32", s(2), s(2), s(3)))
    if DIAG:
        DG["v"] = 243
        a(valu("v_mov_b32", v(DG["v"]), 0))
        p.extend(stamp(60, True))
        p.extend(stamp(61))
    a(raw(f"s_load_dwordx4 {sr(SPTR, 4)}, s[0:1], 0", "smem", wr=S(SPTR, 4)))
    a(raw(f"s_load_dwordx4 {sr(SPTR + 4, 4)}, s[0:1], 16", "smem", wr=S(SPTR + 4, 4)))
    a(valu("v_and_b32", v(VL), 63, v(0)))
    a(valu("v_lshrrev_b32", v(tA), 6, v(0)))
    a(rfl(SW, tA))
    a(valu("v_and_b32", v(tq), 31, v(VL)))
    a(valu("v_lshrrev_b32", v(th), 5, v(VL)))
    a(salu("s_and_b32", s(SWW), s(SW), 3))
    a(salu("s_lshl_b32", s(ST0), s(2), 18))
    a(salu("s_lshl_b32", s(ST1), s(2), 17))
    a(salu("s_lshl_b32", s(ST2), s(SWW), 12))
    a(valu("v_xor_b32", v(tA), v(tq), v(th)))
    a(valu("v_lshlrev_b32", v(tA), 4, v(tA)))
    a(valu("v_lshl_add_u32", v(tA), v(th), 9, v(tA)))
    a(valu("v_add_u32", v(VQD), s(ST2), v(tA)))
    a(salu("s_mul_i32", s(SQB), s(SWW), 4 * 1056))
    a(raw("s_waitcnt lgkmcnt(0)", "wait0"))
    srd(a, SRD_Q, SPTR + 0, ST0, 262144)
    a(scmp("s_cmp_ge_u32", s(SW), 4))
    a(raw("s_cbranch_scc1 L_pv", "branch"))
    return p


SPC = 56
CODE = {"size": 0, "qk_tail": 0, "pv": 0, "pv_tail": 0}


def code_base(tag):
    return [
        raw(f"s_getpc_b64 {sr(SPC, 2)}", "salu", wr=S(SPC, 2)),
        label(f"L_pc_{tag}"),
        raw(f"s_sub_u32 s{SPC}, s{SPC}, L_pc_{tag}-{NAME}_kernel", "salu", rd=S(SPC), wr=S(SPC)),
        raw(f"s_subb_u32 s{SPC + 1}, s{SPC + 1}, 0", "salu", rd=S(SPC + 1), wr=S(SPC + 1)),
    ]


def code_touch(lo, hi, vaddr, vdst, vl64):
    o = []
    if not int(ENV("CPF", "0")) or hi <= lo:
        return o
    lo &= ~63
    while lo < hi:
        o.append(valu("v_add_u32", v(vaddr), lo, v(vl64)))
        if lo + 4096 > hi:
            o.append(valu("v_min_u32", v(vaddr), (hi - 4) & ~3, v(vaddr)))
        o.append(raw(f"global_load_dword v{vdst}, v{vaddr}, {sr(SPC, 2)}", "vmem_ld", rd=V(vaddr) + S(SPC, 2), wr=[]))
        lo += 4096
    return o


def qload(a, blk):
    for n in range(4):
        a(salu("s_add_u32", "m0", s(SQB), (blk % NQ) * QSL + n * 1056))
        a(salu("s_mov_b32", s(ST2), blk * 16384 + n * 1024))
        a(buf_lds(VQD, SRD_Q, s(ST2), LD_MODS))


def qk_prologue():
    p = []
    a = p.append
    vKe, vKo, vKA = 133, 134, 136
    srd(a, SRD_A, SPTR + 2, ST1, 131072)
    a(valu("v_lshrrev_b32", v(tA), 3, v(VL)))
    a(valu("v_lshlrev_b32", v(tA), 9, v(tA)))
    a(valu("v_and_b32", v(tB), 7, v(VL)))
    a(valu("v_lshrrev_b32", v(tC), 4, v(VL)))
    a(valu("v_xor_b32", v(tB), v(tB), v(tC)))
    a(valu("v_lshl_add_u32", v(vKe), v(tB), 4, v(tA)))
    a(valu("v_xor_b32", v(vKo), 64, v(vKe)))
    a(salu("s_lshl_b32", s(ST0), s(SWW), 15))
    a(salu("s_lshl_b32", s(ST1), s(SWW), 14))
    a(salu("s_add_u32", s(ST1), s(ST1), KS))

    def kload(j):
        u, dq = j >> 2, j & 3
        for n in range(4):
            a(salu("s_add_u32", "m0", s(ST1), (j & 3) * 4096 + n * 1024))
            a(salu("s_add_u32", s(ST2), s(ST0), u * 16384 + n * 4096 + dq * 128))
            a(buf_lds(vKo if n & 1 else vKe, SRD_A, s(ST2), LD_MODS))

    for j in range(4):
        kload(j)
    qload(a, 0)
    if DIAG:
        a(valu("v_mov_b32", v(238), v(DG["v"])))
        DG["v"] = 238
    p.extend(stamp(51))
    a(raw(f"s_setprio {ENV('QK_PRIO', '1')}", "salu"))
    a(valu("v_and_b32", v(tc16), 15, v(VL)))
    a(valu("v_lshrrev_b32", v(tg), 4, v(VL)))
    if S16:
        a(valu("v_lshrrev_b32", v(tA), 1, v(tc16)))
        a(valu("v_xor_b32", v(tA), v(tA), v(tg)))
        a(valu("v_lshlrev_b32", v(tA), 4, v(tA)))
        a(valu("v_lshl_add_u32", v(tA), v(tc16), 7, v(tA)))
        a(valu("v_xor_b32", v(tB), 64, v(tA)))
        a(valu("v_add_u32", v(vKA), s(ST1), v(tA)))
        a(valu("v_add_u32", v(vKA + 1), s(ST1), v(tB)))
        a(valu("v_lshrrev_b32", v(tA), 1, v(tc16)))
        a(valu("v_mul_u32_u24", v(tA), 1056, v(tA)))
        a(valu("v_and_b32", v(tB), 1, v(tc16)))
        a(valu("v_lshl_add_u32", v(tA), v(tB), 9, v(tA)))
        a(valu("v_xor_b32", v(tB), v(tB), v(tg)))
        a(valu("v_lshl_add_u32", v(VQB), v(tB), 4, v(tA)))
        a(valu("v_lshlrev_b32", v(tA), 4, v(tc16)))
        a(valu("v_add_u32", v(VXRQ), XOFF, v(tA)))
        a(valu("v_and_b32", v(tB), 1, v(tg)))
        a(valu("v_lshl_add_u32", v(tA), v(tB), 9, v(VXRQ)))
        a(valu("v_lshl_add_u32", v(tA), v(th), 8, v(tA)))
        a(valu("v_lshlrev_b32", v(tB), 1, v(tB)))
        a(valu("v_lshrrev_b32", v(tC), 3, v(tc16)))
        a(valu("v_xor_b32", v(tB), v(tB), v(tC)))
        a(valu("v_xor_b32", v(tB), s(SWW), v(tB)))
        a(valu("v_lshl_add_u32", v(VXW), v(tB), 2, v(tA)))
        a(salu("s_mov_b32", s(SMASK), "0x0000ffff"))
        a(salu("s_mov_b32", s(SMASK + 1), "0x0000ffff"))
    else:
        a(valu("v_bfe_u32", v(tA), v(tq), 1, 3))
        a(valu("v_xor_b32", v(tA), v(tA), v(th)))
        a(valu("v_lshlrev_b32", v(tA), 4, v(tA)))
        a(valu("v_lshl_add_u32", v(tA), v(tq), 7, v(tA)))
        for k in range(4):
            a(valu("v_xor_b32", v(tB), 32 * k, v(tA)))
            a(valu("v_add_u32", v(vKA + k), s(ST1), v(tB)))
        a(valu("v_lshrrev_b32", v(tA), 1, v(tq)))
        a(valu("v_mul_u32_u24", v(tA), 1056, v(tA)))
        a(valu("v_and_b32", v(tB), 1, v(tq)))
        a(valu("v_lshl_add_u32", v(tA), v(tB), 9, v(tA)))
        a(valu("v_xor_b32", v(tB), v(tB), v(th)))
        a(valu("v_lshl_add_u32", v(VQB), v(tB), 4, v(tA)))
        a(valu("v_lshlrev_b32", v(tA), 4, v(tq)))
        a(valu("v_add_u32", v(VXRQ), XOFF, v(tA)))
        a(valu("v_lshl_add_u32", v(tA), v(th), 9, v(VXRQ)))
        a(valu("v_lshrrev_b32", v(tB), 3, v(tq)))
        a(valu("v_xor_b32", v(tB), s(SWW), v(tB)))
        a(valu("v_lshl_add_u32", v(VXW), v(tB), 2, v(tA)))
        a(salu("s_mov_b32", s(SMASK), -1))
        a(salu("s_mov_b32", s(SMASK + 1), 0))
    a(salu("s_lshl_b32", s(ST2), s(SWW), 12))
    a(salu("s_add_u32", s(ST2), s(ST2), POFF))
    a(valu("v_lshlrev_b32", v(tA), 4, v(VL)))
    a(valu("v_add_u32", v(VPW), s(ST2), v(tA)))
    p.extend(code_base("qk"))
    a(valu("v_lshlrev_b32", v(254), 6, v(VL)))
    a(salu("s_mov_b32", s(SC), hex(f32bits(C_SCALE))))
    a(salu("s_mov_b32", s(SQRD), 0))
    a(salu("s_mov_b32", s(STICK), 0))

    def kfrags(j):
        u, dq = j >> 2, j & 3
        if S16:
            for aa in range(2):
                for b in range(2):
                    a(ds_read("ds_read_b128", AF + 4 * (8 * (2 * u + aa) + 2 * dq + b), 4, vKA + b,
                              (j & 3) * 4096 + 2048 * aa))
        else:
            for k in range(4):
                a(ds_read("ds_read_b128", AF + 4 * (16 * u + 4 * dq + k), 4, vKA + k, (j & 3) * 4096))

    for j in range(4):
        a(waitcnt(vm=16))
        kfrags(j)
        a(waitcnt(lgkm=0))
        kload(4 + j)
    qload(a, 1)
    qload(a, 2)
    a(valu("v_mov_b32", v(VQ), v(VQB)))
    p.extend(stamp(40))
    a(barrier())
    for j, w in zip(range(4, 8), (20, 16, 12, 8)):
        a(waitcnt(vm=w))
        kfrags(j)
    a(waitcnt(lgkm=0))
    p.extend(stamp(48))
    a(barrier())
    p.extend(stamp(49))
    p.extend(stamp(59, True))
    return p


def q_frag(f):
    f2 = f % 16
    off = (f2 & 1) * 8 * 1056 + 64 * (f2 >> 1) if S16 else 32 * f2
    return ds_read("ds_read_b128", FB + 4 * (f % NB), 4, VQ, off)


def qk_tick(par, doA=True, doB=True, prefetch=True, pub=True, keepmax=False, nin=None, keepsum=False):
    Sc, Sn = ACC[par], ACC[1 - par]
    slots = [[] for _ in range(NSL + 1)]
    pre, post = [], []
    if doB:
        X = []
        for qt in range(NQT):
            xv = (XVA, XVB)[qt]
            pre.append(ds_read("ds_read_b128", xv, 4, VXRQ, (1 - par) * 1024 + 256 * qt))
            X += [
                valu("v_max3_f32", v(T0), v(xv), v(xv + 1), v(xv + 2)),
                valu("v_max_f32", v(T0), v(T0), v(xv + 3)),
                valu("v_mul_f32", v(MC[qt]), s(SC), v(T0)),
            ]
        seq = []
        for pr in range(16):
            qt = (pr >> 3) if S16 else 0
            r0, r1 = Sc + 2 * pr, Sc + 2 * pr + 1
            g = [
                valu("v_fma_f32", v(r0), v(r0), s(SC), ("neg", v(MC[qt]))),
                valu("v_fma_f32", v(r1), v(r1), s(SC), ("neg", v(MC[qt]))),
                valu("v_exp_f32", v(r0), v(r0)),
                valu("v_exp_f32", v(r1), v(r1)),
            ]
            g2 = []
            if pr == 0 or (S16 and pr == 8):
                g2.append(valu("v_add_f32", v(LSUM[qt]), v(r0), v(r1)))
            else:
                g2.append(valu("v_add_f32", v(LSUM[qt]), v(LSUM[qt]), v(r0)))
                g2.append(valu("v_add_f32", v(LSUM[qt]), v(LSUM[qt]), v(r1)))
            g2.append(valu("v_cvt_pk_bf16_f32", v(PK + pr % 8), v(r0), v(r1)))
            if pr % 4 == 3:
                gi = pr >> 2
                fi = (2 * (gi & 1) + (gi >> 1)) if S16 else gi
                g2.append(ds_write("ds_write_b128", VPW, PK + (pr - 3) % 8, 4, par * 16384 + fi * 1024))
            seq.append((g, g2))
        flat = []
        for pr in range(16):
            flat.append(seq[pr][0][:2])
            flat.append(seq[pr][0][2:])
            if pr > 0:
                flat[-2] = flat[-2] + seq[pr - 1][1]
        flat.append(seq[15][1])
        if doA:
            nin = int(ENV("QK_IN", "8")) if nin is None else nin
            lo = NSL // 8
            slots[lo - 1] += X
            for k, grp in enumerate(flat[:nin]):
                slots[lo + k * (NSL - lo - 2) // max(nin, 1)] += grp
            post = sum(flat[nin:], [])
        else:
            post = X + sum(flat, [])
    elif pub and not keepsum:
        for qt in range(NQT):
            pre.append(valu("v_mov_b32", v(LSUM[qt]), 0))
    M = []
    if doA:
        if S16:
            for k in range(8):
                for qt in range(2):
                    b, lm = Sn + 16 * qt, LMAX[qt]
                    if k == 0:
                        M.append(valu("v_max3_f32", v(lm), v(b), v(b + 1), v(b + 2)))
                    elif k < 7:
                        M.append(valu("v_max3_f32", v(lm), v(lm), v(b + 1 + 2 * k), v(b + 2 + 2 * k)))
                    else:
                        M.append(valu("v_max_f32", v(lm), v(lm), v(b + 15)))
        else:
            lm = LMAX[0]
            M.append(valu("v_max3_f32", v(lm), v(Sn), v(Sn + 1), v(Sn + 2)))
            M.append(valu("v_max3_f32", v(T1), v(Sn + 16), v(Sn + 17), v(Sn + 18)))
            for k in range(6):
                M.append(valu("v_max3_f32", v(lm), v(lm), v(Sn + 3 + 2 * k), v(Sn + 4 + 2 * k)))
                M.append(valu("v_max3_f32", v(T1), v(T1), v(Sn + 19 + 2 * k), v(Sn + 20 + 2 * k)))
            M.append(valu("v_max3_f32", v(lm), v(lm), v(Sn + 15), v(Sn + 31)))
            M.append(valu("v_max_f32", v(lm), v(lm), v(T1)))
    elif not keepmax:
        for qt in range(NQT):
            M.append(valu("v_mov_b32", v(LMAX[qt]), 0))
    if S16:
        PUB = [
            perm32swap(LMAX[0], LMAX[1]),
            perm32swap(LSUM[0], LSUM[1]),
            valu("v_max_f32", v(LMAX[0]), v(LMAX[0]), v(LMAX[1])),
            valu("v_add_f32", v(LSUM[0]), v(LSUM[0]), v(LSUM[1])),
            perm16swap(LMAX[0], LSUM[0]),
        ]
    else:
        PUB = [perm32swap(LMAX[0], LSUM[0])]
    PUB += [
        valu("v_max_f32", v(T0), v(LMAX[0]), v(LSUM[0])),
        valu("v_add_f32", v(T1), v(LMAX[0]), v(LSUM[0])),
        valu("v_cndmask_b32", v(T0), v(T1), v(T0), s(SMASK, 2)),
        ds_write("ds_write_b32", VXW, T0, 1, par * 1024),
    ]
    QUPD = [
        salu("s_add_u32", s(SQRD), s(SQRD), QSL),
        scmp("s_cmp_eq_u32", s(SQRD), NQ * QSL),
        salu("s_cselect_b32", s(SQRD), 0, s(SQRD)),
        valu("v_add_u32", v(VQ), s(SQRD), v(VQB)),
    ]
    out = list(pre)
    if doA:
        i = 0
        for f in range(16):
            for k, (d, a_, first) in enumerate(frag_mfmas(f, Sn, 0)):
                out.append(mm(d, a_, FB + 4 * (f % NB), first))
                if k == NM - 1:
                    nf = f + LA
                    if nf == 16:
                        out += QUPD
                    if nf < 16 or prefetch:
                        out.append(q_frag(nf))
                out += slots[i]
                i += 1
    k = min(len(post), 14) if doA else 0
    out += post[:k]
    rest = post[k:]
    mi = 0
    for j, ins in enumerate(rest):
        out.append(ins)
        if j % 3 == 2 and mi < len(M):
            out.append(M[mi]); mi += 1
    out += M[mi:] + (PUB if pub else [])
    return out


def pv_addr_late(a):
    x0, x1, x2 = FB, FB + 1, FB + 2
    a(valu("v_lshrrev_b32", v(x0), 3, v(VL)))
    a(valu("v_and_b32", v(x1), 7, v(VL)))
    a(valu("v_xor_b32", v(x1), v(x0), v(x1)))
    a(valu("v_lshlrev_b32", v(x1), 4, v(x1)))
    a(valu("v_lshl_add_u32", v(x1), v(x0), 7, v(x1)))
    a(valu("v_add_u32", v(VOR), s(ST0), v(x1)))
    if S16:
        a(valu("v_and_b32", v(x0), 15, v(VL)))
        a(valu("v_lshrrev_b32", v(x1), 4, v(VL)))
        a(valu("v_lshlrev_b32", v(x1), 1, v(x1)))
        a(valu("v_and_b32", v(x2), 7, v(x0)))
        a(valu("v_xor_b32", v(x1), v(x1), v(x2)))
        a(valu("v_lshlrev_b32", v(x1), 4, v(x1)))
        a(valu("v_lshl_add_u32", v(x1), v(x0), 7, v(x1)))
        a(valu("v_xor_b32", v(x2), 16, v(x1)))
        a(valu("v_add_u32", v(VOW[0]), s(ST0), v(x1)))
        a(valu("v_add_u32", v(VOW[1]), s(ST0), v(x2)))
    else:
        a(valu("v_and_b32", v(x0), 31, v(VL)))
        a(valu("v_lshrrev_b32", v(x1), 5, v(VL)))
        a(valu("v_lshlrev_b32", v(x1), 1, v(x1)))
        a(valu("v_and_b32", v(x2), 7, v(x0)))
        a(valu("v_xor_b32", v(x1), v(x1), v(x2)))
        a(valu("v_lshlrev_b32", v(x1), 4, v(x1)))
        a(valu("v_lshl_add_u32", v(x1), v(x0), 7, v(x1)))
        for c in range(4):
            a(valu("v_xor_b32", v(x2), 64 * (c >> 1) + 16 * (c & 1), v(x1)))
            a(valu("v_add_u32", v(VOW[c]), s(ST0), v(x2)))


def pv_X(slot, inv, xv):
    rd, va = [], []
    for qt in range(NQT):
        x = xv[qt]
        rd.append(ds_read("ds_read_b128", x, 4, VXRP, slot * 1024 + 256 * qt))
        va += [
            valu("v_add_f32", v(x), v(x), v(x + 1)),
            valu("v_add_f32", v(x + 2), v(x + 2), v(x + 3)),
            valu("v_add_f32", v(x), v(x), v(x + 2)),
            valu("v_rcp_f32", v(inv[qt]), v(x)),
        ]
    return rd, va


def pv_E(O, inv, VOW=VOW):
    E = []
    for c in range(4):
        b = O + 8 * c
        iv = inv[c >> 1] if S16 else inv[0]
        for r in range(8):
            E.append(valu("v_mul_f32", v(b + r), v(b + r), v(iv)))
        for r in range(4):
            E.append(valu("v_cvt_pk_bf16_f32", v(b + r), v(b + 2 * r), v(b + 2 * r + 1)))
        if S16:
            E.append(ds_write("ds_write_b128", VOW[c & 1], b, 4, 2048 * (c >> 1)))
        else:
            E.append(ds_write("ds_write_b128", VOW[c], b, 4))
    return E


def pv_D(O, VOR=VOR):
    hdr = [salu("s_mov_b32", s(SOE), s(SOSO)), salu("s_add_u32", s(SOSO), s(SOSO), 16384)]
    rd = [ds_read("ds_read_b128", O + 8 * n + 4, 4, VOR, 1024 * n) for n in range(4)]
    st = []
    for n in range(4):
        g = [buf_store(O + 8 * n + 4, VOS, SRD_O, s(SOE), ST_MODS)]
        if n < 3:
            g.append(salu("s_add_u32", s(SOE), s(SOE), 4096))
        st.append(g)
    return hdr, rd, st


def pv_ED(O, inv):
    hdr, rd, st = pv_D(O)
    return pv_E(O, inv) + hdr + rd + sum(st, [])


def pv_prologue():
    p = []
    a = p.append
    DG["v"] = 243
    vVD, vB0, vB1, vT0, vT1, vP2 = VOR, VOW[0], VOW[1], XV, XV + 1, XV + 2
    inv0 = INV[0]
    p.extend(code_base("pv"))
    a(valu("v_lshlrev_b32", v(AF + 125), 6, v(VL)))
    p.extend(code_touch(0, CODE["size"], AF + 126, AF + 127, AF + 125))
    srd(a, SRD_A, SPTR + 4, ST1, 131072)
    srd(a, SRD_O, SPTR + 6, ST0, 0)
    a(salu("s_lshl_b32", s(ST2), s(SWW), 7))
    a(valu("v_lshrrev_b32", v(tA), 3, v(VL)))
    a(valu("v_and_b32", v(tB), 7, v(VL)))
    a(valu("v_lshlrev_b32", v(tC), 9, v(tA)))
    a(valu("v_lshl_add_u32", v(tC), v(tB), 4, v(tC)))
    a(valu("v_add_u32", v(VOS), s(ST2), v(tC)))
    a(valu("v_bfe_u32", v(tC), v(VL), 4, 1))
    a(valu("v_lshlrev_b32", v(tC), 4 if S16 else 6, v(tC)))
    a(valu("v_xor_b32", v(vVD), v(tC), v(VOS)))
    a(salu("s_lshl_b32", s(ST0), s(SWW), 12))
    a(salu("s_add_u32", s(ST0), s(ST0), OOFF))
    a(valu("v_lshlrev_b32", v(tA), 4, v(VL)))
    a(valu("v_add_u32", v(VPR), POFF, v(tA)))
    a(valu("v_add_u32", v(vP2), P2OFF, v(tA)))
    a(valu("v_and_b32", v(tA), 15 if S16 else 31, v(VL)))
    a(valu("v_lshlrev_b32", v(tA), 4, v(tA)))
    a(valu("v_add_u32", v(VXRP), XOFF + 512, v(tA)))
    if S16:
        a(valu("v_lshrrev_b32", v(tA), 2, v(VL)))
        a(valu("v_lshlrev_b32", v(tA), 7, v(tA)))
        a(valu("v_and_b32", v(tB), 3, v(VL)))
        a(valu("v_lshl_add_u32", v(tA), v(tB), 5, v(tA)))
        a(valu("v_bfe_u32", v(tB), v(VL), 3, 1))
        a(valu("v_lshl_add_u32", v(vB0), v(tB), 4, v(tA)))
        a(valu("v_xor_b32", v(vB1), 16, v(vB0)))
    else:
        a(valu("v_bfe_u32", v(tA), v(VL), 2, 2))
        a(valu("v_lshl_add_u32", v(tA), v(th), 2, v(tA)))
        a(valu("v_lshlrev_b32", v(tA), 7, v(tA)))
        a(valu("v_bfe_u32", v(tB), v(VL), 3, 1))
        a(valu("v_lshl_add_u32", v(tA), v(tB), 6, v(tA)))
        a(valu("v_and_b32", v(tB), 1, v(VL)))
        a(valu("v_lshl_add_u32", v(tA), v(tB), 5, v(tA)))
        a(valu("v_bfe_u32", v(tB), v(VL), 4, 1))
        a(valu("v_lshl_add_u32", v(tA), v(tB), 4, v(tA)))
        a(valu("v_bfe_u32", v(tB), v(VL), 1, 1))
        a(valu("v_lshl_add_u32", v(vB0), v(tB), 3, v(tA)))
        a(valu("v_xor_b32", v(vB1), 64, v(vB0)))
    a(salu("s_mov_b32", s(SQSO), 10 * 16384))
    a(salu("s_add_u32", s(SQM0), s(SQB), 4 * QSL))
    a(salu("s_add_u32", s(SQLIM), s(SQB), NQ * QSL))
    a(salu("s_mov_b32", s(SOSO), 0))
    a(salu("s_mov_b32", s(STICK), 5))
    VLOC = {0: 3, 1: 4, 2: 5, 3: "o", 4: 0, 5: 2, 6: "o", 7: 0}

    def vdest(j):
        loc = VLOC[j]
        return (ST0, 0) if loc == "o" else (SQB, loc * QSL)

    def vload(j):
        sb, off = vdest(j)
        for n in range(4):
            a(salu("s_add_u32", "m0", s(sb), off + n * 1024))
            a(salu("s_mov_b32", s(ST2), (32 * j + 8 * n) * 512))
            a(buf_lds(vVD, SRD_A, s(ST2), LD_MODS))

    accs = [ACC2, ACC[1], ACC[0]]
    inited = set()

    def vfrag(j):
        sb, off = vdest(j)
        a(salu("s_add_u32", s(ST3), s(sb), off))
        a(valu("v_add_u32", v(vT0), s(ST3), v(vB0)))
        a(valu("v_add_u32", v(vT1), s(ST3), v(vB1)))
        if S16:
            for dt in range(4):
                for aa in range(2):
                    a(ds_read("ds_read_b64_tr_b16", AF + 4 * (8 * dt + j) + 2 * aa, 2, (vT0, vT1)[dt >> 1],
                              16 * aa * 128 + 8 * (dt & 1)))
        else:
            for b in range(2):
                for dt in range(2):
                    for aa in range(2):
                        a(ds_read("ds_read_b64_tr_b16", AF + 4 * (16 * dt + 2 * j + b) + 2 * aa, 2, (vT0, vT1)[dt],
                                  (16 * b + 8 * aa) * 128))
        a(waitcnt(lgkm=0))
        p.extend(stamp(41 + j))

    def vmm(j):
        def pf(blk, b):
            buf = FB + 4 * ((2 * blk + b) % 4)
            if blk < 2:
                return ds_read("ds_read_b128", buf, 4, VPR, blk * 16384 + (2 * j + b) * 1024)
            return ds_read("ds_read_b128", buf, 4, vP2, (2 * j + b) * 1024)

        for blk in range(2):
            for b in range(2):
                a(pf(blk, b))
        for blk in range(3):
            for b in range(2):
                buf = FB + 4 * ((2 * blk + b) % 4)
                for (d, a_, _) in frag_mfmas(2 * j + b, accs[blk], 0):
                    a(mm(d, a_, buf, d not in inited))
                    inited.add(d)
                if blk == 0:
                    a(pf(2, b))

    def dummy_st():
        for _ in range(4):
            a(buf_store(AF, VOS, SRD_O, 0))

    p.extend(stamp(51))
    a(raw(f"s_setprio {ENV('PV_PRIO', '0')}", "salu"))
    a(barrier())
    vload(0); vload(1)
    a(barrier())
    p.extend(stamp(49))
    p.extend(stamp(59, True))
    vload(2); vload(3)
    a(barrier())
    vload(4)
    a(waitcnt(vm=16)); vfrag(0); qload(a, 3)
    a(barrier())
    rd, va = pv_X(0, inv0, [FB, FB + 4])
    p.extend(rd + va)
    a(waitcnt(vm=16)); vfrag(1); qload(a, 4)
    a(barrier())
    vload(5)
    rd, va = pv_X(1, INV[1], [FB, FB + 4])
    p.extend(rd + va)
    a(waitcnt(vm=20)); vfrag(2)
    a(barrier())
    a(waitcnt(vm=16)); vfrag(3); vload(6)
    vmm(0); vmm(1)
    a(waitcnt(vm=16)); vfrag(4); vload(7); qload(a, 5)
    vmm(2)
    a(waitcnt(vm=20))
    a(barrier())
    vmm(3); vmm(4)
    a(waitcnt(vm=16))
    a(barrier())
    qload(a, 9)
    a(waitcnt(vm=16)); vfrag(5); qload(a, 8); vmm(5)
    a(waitcnt(vm=16)); vfrag(6); vmm(6)
    a(waitcnt(vm=12)); vfrag(7); qload(a, 6); vmm(7)
    a(waitcnt(vm=12))
    a(barrier())
    p.extend(stamp(52))
    pv_addr_late(a)
    W2 = [FB + 4 + c for c in range(len(VOW))]
    R2 = FB + 8
    for c in range(len(VOW)):
        a(valu("v_subrev_u32", v(W2[c]), OOFF - POFF, v(VOW[c])))
    a(valu("v_subrev_u32", v(R2), OOFF - POFF, v(VOR)))
    E0 = pv_E(ACC2, inv0)
    E1 = pv_E(ACC[1], INV[1], W2)
    h0, r0, s0 = pv_D(ACC2)
    h1, r1, s1 = pv_D(ACC[1], R2)
    qload(a, 7)
    p.extend(E0 + r0)
    p.extend(E1 + r1)
    rd, va = pv_X(0, INV[0], [FB + 12, FB + 0])
    p.extend(rd + va)
    p.extend(stamp(56))
    a(waitcnt(lgkm=0))
    a(barrier())
    a(salu("s_mov_b32", s(SRD_O + 2), 262144))
    p.extend(h0 + sum(s0, []) + h1 + sum(s1, []))
    if DIAG:
        a(valu("v_mov_b32", v(238), v(DG["v"])))
        DG["v"] = 238
    p.extend(stamp(3) + stamp(23, True))
    return p


def pv_tick(par, mode=None, noq=False):
    Oc = ACC[1 - par]
    slots = [[] for _ in range(NSL + 1)]

    def p_frag(m):
        return ds_read("ds_read_b128", FB + 4 * (m % NB), 4, VPR, (1 - par) * 16384 + m * 1024)

    xrd, X = pv_X(1 - par, INV[1 - par], [XV, 224])
    pre = [p_frag(m) for m in range(LA)] + xrd
    E = pv_E(ACC[par], INV[par])
    hdr, rd, st = pv_D(ACC[par])
    qd, ql, qu = [], [[], [], [], []], []
    if not noq:
        qd = [
            scmp("s_cmp_lt_u32", s(SQSO), 262144),
            salu("s_cselect_b32", s(SRD_Q + 2), 262144, 0),
            salu("s_cselect_b32", s(SQE), s(SQSO), 0),
            salu("s_add_u32", s(SQSO), s(SQSO), 16384),
        ]
        ql = []
        for n in range(4):
            g = [salu("s_add_u32", "m0", s(SQM0), n * 1056)]
            g.append(salu("s_add_u32", s(SQE), s(SQE), 1024) if n else nop(1))
            g.append(buf_lds(VQD, SRD_Q, s(SQE), LD_MODS))
            ql.append(g)
        qu = [
            salu("s_add_u32", s(SQM0), s(SQM0), QSL),
            scmp("s_cmp_eq_u32", s(SQM0), s(SQLIM)),
            salu("s_cselect_b32", s(SQM0), s(SQB), s(SQM0)),
        ]
    mode = mode or ENV("PV_MODE", "1")
    u = NSL // 32
    if mode == "0":
        pre += E[:13] + qd
        rest = E[13:]
        for k, ins in enumerate(rest):
            slots[k * 13 * u // len(rest)].append(ins)
        for n in range(4):
            slots[(1 + 3 * n) * u] += ql[n]
        slots[11 * u] += qu
        slots[13 * u] += X
        slots[14 * u] += rd[:2]
        slots[15 * u] += rd[2:] + hdr
        for n in range(4):
            slots[(18 + 3 * n) * u] += st[n]
    else:
        pre += qd
        for c in range(4):
            pre += E[13 * c:13 * c + 13] + ql[c]
        pre += qu + rd + X + hdr + sum(st, [])
    out = list(pre)
    i = 0
    for f in range(16):
        for k, (d, a_, first) in enumerate(frag_mfmas(f, Oc, 0)):
            out.append(mm(d, a_, FB + 4 * (f % NB), first))
            if k == NM - 1 and f + LA < 16:
                out.append(p_frag(f + LA))
            out += slots[i]
            i += 1
    return out


def pv_last():
    Oc = ACC[1]
    seq = []
    if S16:
        for qt in range(2):
            for U in range(8):
                seq.append((2 * U + qt, frag_mfmas(2 * U + qt, Oc, 0)))
    else:
        for dt in range(2):
            for m in range(16):
                seq.append((m, [frag_mfmas(m, Oc, 0)[dt]]))
    n = len(seq)

    def p_frag(k):
        return ds_read("ds_read_b128", FB + 4 * (k % NB), 4, VPR, 16384 + seq[k][0] * 1024)

    L2 = 5 if S16 else 7
    xrd, X = pv_X(1, INV[1], [XV, 224])
    pre = [p_frag(k) for k in range(L2)] + xrd
    E14 = pv_E(ACC[0], INV[0])
    hdr, rd, st = pv_D(ACC[0])
    E15 = pv_E(Oc, INV[1])
    hdr2, rd2, st2 = pv_D(Oc)
    slots = [[] for _ in range(33)]
    pre += E14[:13]
    rest = E14[13:]
    for k, ins in enumerate(rest):
        slots[k * 9 // len(rest)].append(ins)
    slots[9] += X + hdr
    slots[10] += rd
    for k in range(4):
        slots[13 + 2 * k] += st[k]
    h = E15[:26]
    for k, ins in enumerate(h):
        slots[21 + k * 10 // len(h)].append(ins)
    out = list(pre)
    cnt = 0
    per = NSL // 32
    for k, (f, ms) in enumerate(seq):
        for j, (d, a_, first) in enumerate(ms):
            out.append(mm(d, a_, FB + 4 * (k % NB), first))
            if j == len(ms) - 1 and k + L2 < n:
                out.append(p_frag(k + L2))
            cnt += 1
            if cnt % per == 0:
                out += slots[cnt // per - 1]
    out += E15[26:] + hdr2 + rd2 + sum(st2, [])
    return out


def finalize(seq, q0=None, hist=None):
    s1, q = insert_lgkm_waits(seq, q0)
    return pad_hazards(s1, hist), q


def build():
    T = []
    head, _ = finalize(common_head())
    T.append(render(head))
    inc = [salu("s_add_u32", s(STICK), s(STICK), 1)]

    pro = qk_prologue() + [q_frag(f) for f in range(LA)]
    NE = int(ENV("QK_EARLY_IN", "33"))
    pf = [waitcnt(lgkm=0)] + [q_frag(f) for f in range(LA)]
    np_ = dict(prefetch=False)
    early = qk_tick(1, doB=False, **np_) + [waitcnt(vm=4), barrier()] + tick_stamps() + inc + pf
    early += qk_tick(0, nin=NE, **np_) + [waitcnt(vm=0), barrier()] + tick_stamps() + inc + pf
    early += qk_tick(1, nin=NE, **np_) + [barrier()] + tick_stamps() + inc
    early += [valu("v_subrev_u32", v(VPW), POFF - P2OFF, v(VPW))]
    early += qk_tick(0, doA=False, pub=False, keepmax=True) + [barrier(), barrier()] + pf
    early += [valu("v_add_u32", v(VPW), POFF - P2OFF, v(VPW))]
    early += qk_tick(0, doB=False, keepsum=True, **np_) + [barrier()] + tick_stamps() + inc + pf
    early += qk_tick(1, doB=False, pub=False, **np_) + [barrier()]
    early += qk_tick(1, doA=False, keepmax=True) + [barrier()] + tick_stamps() + pf + inc
    pro, q = finalize(pro + early, None, head[-30:])
    T.append(render(pro))
    b0 = qk_tick(0) + [barrier()] + tick_stamps()
    touch = code_touch(CODE["qk_tail"], CODE["pv"], 237, 248, 254) + code_touch(CODE["pv_tail"], CODE["size"], 237, 248, 254)
    b1 = qk_tick(1) + touch + [barrier()] + tick_stamps()
    body_a, qa = insert_lgkm_waits(b0, q)
    body_b, qb = insert_lgkm_waits(b1, qa)
    tb, t0 = [i.text for i in qb], [i.text for i in q]
    assert DIAG or t0[len(t0) - len(tb):] == tb, (t0, tb)
    mid = [scmp("s_cmp_eq_u32", s(STICK), 15), raw("s_cbranch_scc1 L_qk_tail", "branch"),
           scmp("s_cmp_lg_u32", s(STICK), 5), raw("s_cbranch_scc1 L_qk_r0", "branch")] + pf + \
        [waitcnt(lgkm=0), label("L_qk_r0")] + inc
    end = inc + [raw("s_branch L_qk_loop", "branch")]
    loop = body_a + mid + body_b + end
    h1 = pad_hazards(loop, pro[-40:])
    h2 = pad_hazards(h1, h1[-40:])
    assert len(h1) == len(h2)
    T.append(".p2align 6\nL_qk_loop:\n" + render(h1))
    tail = inc + [raw("s_setprio 0", "salu")] + qk_tick(1, doA=False, doB=True) + [barrier()] + tick_stamps() + diag_end()
    tail, _ = finalize(tail, qa, [])
    T.append("L_qk_tail:\n    s_nop 7\n    s_nop 7\n" + render(tail) + "\n    s_endpgm")

    pp, q = finalize(pv_prologue(), None, head[-30:])
    assert len(q) == 0 or DIAG
    T.append("L_pv:\n" + render(pp))
    def vmw(k):
        return [waitcnt(vm=28), scmp("s_cmp_gt_u32", s(STICK), 5), raw(f"s_cbranch_scc1 L_pv_w{k}", "branch"),
                waitcnt(vm=16), label(f"L_pv_w{k}")]

    c0 = pv_tick(0) + vmw(0) + [barrier()] + tick_stamps() + inc
    c1 = pv_tick(1) + vmw(1) + [barrier()] + tick_stamps() + inc
    l0, q1 = insert_lgkm_waits(c0, [])
    l1, q2 = insert_lgkm_waits(c1, q1)
    assert len(q1) == 0 and len(q2) == 0
    loop = l0 + [scmp("s_cmp_eq_u32", s(STICK), 16), raw("s_cbranch_scc1 L_pv_tail", "branch")] + l1 + \
        [raw("s_branch L_pv_loop", "branch")]
    h1 = pad_hazards(loop, pp[-40:])
    h2 = pad_hazards(h1, h1[-40:])
    assert len(h1) == len(h2)
    T.append(".p2align 6\nL_pv_loop:\n" + render(h1))
    fin = stamp(58) + stamp(57, True) + [raw("s_setprio 2", "salu")] + pv_tick(1, "0", noq=True) + [barrier()] + \
        tick_stamps() + inc + pv_last() + diag_end()
    fin, _ = finalize(fin, [], [])
    T.append("L_pv_tail:\n    s_nop 7\n    s_nop 7\n" + render(fin))
    return "\n".join(T)


HEADER = """; Kernarg layout for this problem (48 bytes, ptrs only, base s[0:1]):
; @launch grid=(256,1,1) block=(512,1,1) lds={lds}
.amdgcn_target "amdgcn-amd-amdhsa--gfx950"
.text
.globl {name}_kernel
.p2align 8
.type {name}_kernel,@function
{name}_kernel:
"""

FOOTER = """
L_end:
    s_endpgm
.section .rodata,"a"
.p2align 6
.amdhsa_kernel {name}_kernel
  .amdhsa_next_free_vgpr 256
  .amdhsa_next_free_sgpr 64
  .amdhsa_accum_offset 256
  .amdhsa_group_segment_fixed_size 0
  .amdhsa_kernarg_size 48
  .amdhsa_user_sgpr_count 2
  .amdhsa_user_sgpr_kernarg_segment_ptr 1
  .amdhsa_system_sgpr_workgroup_id_x 1
.end_amdhsa_kernel
"""


def assemble_sizes(path):
    import subprocess
    subprocess.run(["clang", "-x", "assembler", "-target", "amdgcn-amd-amdhsa", "-mcpu=gfx950",
                    "-c", path, "-o", path + ".o"], check=True)
    out = subprocess.run(["llvm-objdump", "-t", path + ".o"], capture_output=True, text=True).stdout
    sym = {}
    for line in out.splitlines():
        f = line.split()
        if len(f) >= 5 and f[-1].startswith("L_"):
            sym[f[-1]] = int(f[0], 16)
    os.remove(path + ".o")
    return sym


def main():
    out = sys.argv[1] if len(sys.argv) > 1 else f"cdna_kernels/{NAME}.s"
    prev = None
    for it in range(6):
        txt = HEADER.format(name=NAME, lds=LDS_BYTES) + build() + FOOTER.format(name=NAME)
        open(out, "w").write(txt)
        sym = assemble_sizes(out)
        cur = dict(size=sym["L_end"] + 4, qk_tail=sym["L_qk_tail"], pv=sym["L_pv"], pv_tail=sym["L_pv_tail"])
        if cur == prev:
            break
        prev = cur
        CODE.update(cur)
    else:
        raise RuntimeError("code size did not converge")
    print(f"wrote {out}: {txt.count(chr(10))} lines, code {cur}")


if __name__ == "__main__":
    main()
```

```python
import struct
import sys
import os

sys.path.insert(0, os.path.dirname(__file__))
from asmlib import *

NAME = "standalone__gqa_softmax__near_ridge"
ENV = os.environ.get
SH = int(ENV("SH", "16"))
S16 = SH == 16
NQT = 2 if S16 else 1

QSL = 16896
NQ = 6
POFF = NQ * QSL
OOFF = POFF + 32768
XOFF = OOFF + 16384
LDS_BYTES = XOFF + 2048
KS = 5 * QSL
P2OFF = QSL
assert KS + 65536 <= XOFF and LDS_BYTES <= 163840

AF = 0
ACC = [128, 160]
FB = 192
NB = 8
VL = 255
PK = 224
XVA, XVB = 232, 224
MC, LSUM, LMAX = [240, 241], [242, 243], [244, 245]
T0, T1 = 246, 247
VQ, VQB, VPW, VXW, VXRQ = 249, 250, 251, 252, 253
ACC2 = 208
XV = 240
if S16:
    INV = [[244, 245], [246, 247]]
    VOW = [248, 254]
else:
    INV = [[244], [245]]
    VOW = [246, 247, 248, 254]
VQD, VPR, VXRP, VOR, VOS = 249, 250, 251, 252, 253

DIAG = int(ENV("DIAG", "0"))
DG = {"v": 238, "t": 239}

SRD_A, SRD_Q, SRD_O = 4, 8, 12
SPTR = 20
SW, SWW = 28, 29
SQSO, SQM0, SQRD, SOSO, STICK, SC, ST0, ST1, ST2 = 30, 31, 32, 33, 34, 35, 36, 37, 38
SMASK = 40
SQE, SOE, SQB, SQLIM = 42, 43, 44, 45
STM = 46
SRD_W = 48
SDL = 52
ST3 = 53
SROT = 54
SQP, SOP = 55, 58

C_SCALE = 1.4426950408889634 / 16.0
LD_MODS = ENV("LD_MODS", " nt")
ST_MODS = ENV("ST_MODS", "")
LA = int(ENV("LA", "5"))
ROT = int(ENV("ROT", "0"))
NM = 4 if S16 else 2
NSL = 16 * NM


def f32bits(x):
    return struct.unpack("<I", struct.pack("<f", x))[0]


def stamp(lane, real=False):
    if not DIAG:
        return []
    vd, vt = DG["v"], DG["t"]
    op = "s_memrealtime" if real else "s_memtime"
    o = [raw(f"{op} {sr(STM, 2)}", "smem", wr=S(STM, 2)), waitcnt(lgkm=0)]
    if isinstance(lane, int):
        o.append(I(f"v_writelane_b32 v{vd}, s{STM}, {lane}", "valu", S(STM), V(vd)))
    else:
        o.append(I(f"v_cmp_eq_u32 vcc, s{lane[1]}, v{VL}", "valu", V(VL), []))
        o.append(valu("v_mov_b32", v(vt), s(STM)))
        o.append(nop(2))
        o.append(I(f"v_cndmask_b32 v{vd}, v{vd}, v{vt}, vcc", "valu", V(vd) + V(vt), V(vd)))
    return o


def tick_stamps():
    if DIAG != 1:
        return []
    return stamp(s(STICK)) + [salu("s_add_u32", s(SDL), s(STICK), 20)] + stamp(s(SDL), True)


def diag_end():
    if not DIAG:
        return []
    vd, vt = DG["v"], DG["t"]
    o = stamp(62) + stamp(63, True)
    o += [
        raw(f"s_load_dwordx2 {sr(SRD_W, 2)}, s[0:1], 40", "smem", wr=S(SRD_W, 2)),
        waitcnt(lgkm=0),
        salu("s_mov_b32", s(SRD_W + 2), 256 * 8 * 256),
        salu("s_mov_b32", s(SRD_W + 3), "0x00020000"),
        salu("s_lshl_b32", s(ST0), s(2), 3),
        salu("s_add_u32", s(ST0), s(ST0), s(SW)),
        salu("s_lshl_b32", s(ST0), s(ST0), 8),
        valu("v_lshlrev_b32", v(vt), 2, v(VL)),
        raw(f"buffer_store_dword v{vd}, v{vt}, {sr(SRD_W, 4)}, s{ST0} offen", "vmem_st", rd=V(vd) + V(vt)),
    ]
    return o


def srd(a, base, ptr, off, size):
    a(salu("s_add_u32", s(base), s(ptr), s(off)))
    a(salu("s_addc_u32", s(base + 1), s(ptr + 1), 0))
    a(salu("s_and_b32", s(base + 1), s(base + 1), "0xffff"))
    a(salu("s_mov_b32", s(base + 2), size))
    a(salu("s_mov_b32", s(base + 3), "0x00020000"))


def mm(d, a_, b_, first):
    return (mfma16 if S16 else mfma)(d, a_, b_, None if first else d)


def frag_mfmas(f, acc, buf):
    if S16:
        kstep, qt = f >> 1, f & 1
        return [(acc + 16 * qt + 4 * t, AF + 4 * (8 * t + kstep), kstep == 0) for t in range(4)]
    return [(acc + 16 * t, AF + 4 * (16 * t + f), f == 0) for t in range(2)]


tq, th, tA, tB, tC, tc16, tg = 128, 129, 130, 131, 132, 140, 141


def common_head():
    p = []
    a = p.append
    a(scmp("s_cmp_ge_u32", s(2), 256))
    a(raw("s_cbranch_scc1 L_end", "branch"))
    a(salu("s_and_b32", s(3), s(2), 7))
    a(salu("s_lshl_b32", s(3), s(3), 5))
    a(salu("s_lshr_b32", s(2), s(2), 3))
    a(salu("s_add_u32", s(2), s(2), s(3)))
    if DIAG:
        DG["v"] = 243
        a(valu("v_mov_b32", v(DG["v"]), 0))
        p.extend(stamp(60, True))
        p.extend(stamp(61))
    a(raw(f"s_load_dwordx4 {sr(SPTR, 4)}, s[0:1], 0", "smem", wr=S(SPTR, 4)))
    a(raw(f"s_load_dwordx4 {sr(SPTR + 4, 4)}, s[0:1], 16", "smem", wr=S(SPTR + 4, 4)))
    a(valu("v_and_b32", v(VL), 63, v(0)))
    a(valu("v_lshrrev_b32", v(tA), 6, v(0)))
    a(rfl(SW, tA))
    a(valu("v_and_b32", v(tq), 31, v(VL)))
    a(valu("v_lshrrev_b32", v(th), 5, v(VL)))
    a(salu("s_and_b32", s(SWW), s(SW), 3))
    a(salu("s_lshl_b32", s(ST0), s(2), 18))
    a(salu("s_lshl_b32", s(ST1), s(2), 17))
    a(salu("s_lshl_b32", s(ST2), s(SWW), 12))
    a(valu("v_xor_b32", v(tA), v(tq), v(th)))
    a(valu("v_lshlrev_b32", v(tA), 4, v(tA)))
    a(valu("v_lshl_add_u32", v(tA), v(th), 9, v(tA)))
    a(valu("v_add_u32", v(VQD), s(ST2), v(tA)))
    a(salu("s_mul_i32", s(SQB), s(SWW), 4 * 1056))
    if ROT:
        a(salu("s_mul_i32", s(SROT), s(2), ROT))
        a(salu("s_and_b32", s(SROT), s(SROT), 15))
        a(salu("s_lshl_b32", s(SROT), s(SROT), 14))
    a(raw("s_waitcnt lgkmcnt(0)", "wait0"))
    srd(a, SRD_Q, SPTR + 0, ST0, 262144)
    a(scmp("s_cmp_ge_u32", s(SW), 4))
    a(raw("s_cbranch_scc1 L_pv", "branch"))
    return p


SPC = 56
CODE = {"size": 0, "qk_tail": 0, "pv": 0, "pv_tail": 0}


def code_base(tag):
    return [
        raw(f"s_getpc_b64 {sr(SPC, 2)}", "salu", wr=S(SPC, 2)),
        label(f"L_pc_{tag}"),
        raw(f"s_sub_u32 s{SPC}, s{SPC}, L_pc_{tag}-{NAME}_kernel", "salu", rd=S(SPC), wr=S(SPC)),
        raw(f"s_subb_u32 s{SPC + 1}, s{SPC + 1}, 0", "salu", rd=S(SPC + 1), wr=S(SPC + 1)),
    ]


def code_touch(lo, hi, vaddr, vdst, vl64):
    o = []
    if not int(ENV("CPF", "0")) or hi <= lo:
        return o
    lo &= ~63
    while lo < hi:
        o.append(valu("v_add_u32", v(vaddr), lo, v(vl64)))
        if lo + 4096 > hi:
            o.append(valu("v_min_u32", v(vaddr), (hi - 4) & ~3, v(vaddr)))
        o.append(raw(f"global_load_dword v{vdst}, v{vaddr}, {sr(SPC, 2)}", "vmem_ld", rd=V(vaddr) + S(SPC, 2), wr=[]))
        lo += 4096
    return o


def qload(a, blk):
    if ROT:
        a(salu("s_add_u32", s(SQP), s(SROT), blk * 16384))
        a(salu("s_and_b32", s(SQP), s(SQP), 262143))
    for n in range(4):
        a(salu("s_add_u32", "m0", s(SQB), (blk % NQ) * QSL + n * 1056))
        if ROT:
            a(salu("s_add_u32", s(ST2), s(SQP), n * 1024))
        else:
            a(salu("s_mov_b32", s(ST2), blk * 16384 + n * 1024))
        a(buf_lds(VQD, SRD_Q, s(ST2), LD_MODS))


def qk_prologue():
    p = []
    a = p.append
    vKe, vKo, vKA = 133, 134, 136
    srd(a, SRD_A, SPTR + 2, ST1, 131072)
    a(valu("v_lshrrev_b32", v(tA), 3, v(VL)))
    a(valu("v_lshlrev_b32", v(tA), 9, v(tA)))
    a(valu("v_and_b32", v(tB), 7, v(VL)))
    a(valu("v_lshrrev_b32", v(tC), 4, v(VL)))
    a(valu("v_xor_b32", v(tB), v(tB), v(tC)))
    a(valu("v_lshl_add_u32", v(vKe), v(tB), 4, v(tA)))
    a(valu("v_xor_b32", v(vKo), 64, v(vKe)))
    a(salu("s_lshl_b32", s(ST0), s(SWW), 15))
    a(salu("s_lshl_b32", s(ST1), s(SWW), 14))
    a(salu("s_add_u32", s(ST1), s(ST1), KS))

    def kload(j):
        u, dq = j >> 2, j & 3
        for n in range(4):
            a(salu("s_add_u32", "m0", s(ST1), (j & 3) * 4096 + n * 1024))
            a(salu("s_add_u32", s(ST2), s(ST0), u * 16384 + n * 4096 + dq * 128))
            a(buf_lds(vKo if n & 1 else vKe, SRD_A, s(ST2), LD_MODS))

    for j in range(4):
        kload(j)
    qload(a, 0)
    if DIAG:
        a(valu("v_mov_b32", v(238), v(DG["v"])))
        DG["v"] = 238
    p.extend(stamp(51))
    a(raw(f"s_setprio {ENV('QK_PRIO', '1')}", "salu"))
    a(valu("v_and_b32", v(tc16), 15, v(VL)))
    a(valu("v_lshrrev_b32", v(tg), 4, v(VL)))
    if S16:
        a(valu("v_lshrrev_b32", v(tA), 1, v(tc16)))
        a(valu("v_xor_b32", v(tA), v(tA), v(tg)))
        a(valu("v_lshlrev_b32", v(tA), 4, v(tA)))
        a(valu("v_lshl_add_u32", v(tA), v(tc16), 7, v(tA)))
        a(valu("v_xor_b32", v(tB), 64, v(tA)))
        a(valu("v_add_u32", v(vKA), s(ST1), v(tA)))
        a(valu("v_add_u32", v(vKA + 1), s(ST1), v(tB)))
        a(valu("v_lshrrev_b32", v(tA), 1, v(tc16)))
        a(valu("v_mul_u32_u24", v(tA), 1056, v(tA)))
        a(valu("v_and_b32", v(tB), 1, v(tc16)))
        a(valu("v_lshl_add_u32", v(tA), v(tB), 9, v(tA)))
        a(valu("v_xor_b32", v(tB), v(tB), v(tg)))
        a(valu("v_lshl_add_u32", v(VQB), v(tB), 4, v(tA)))
        a(valu("v_lshlrev_b32", v(tA), 4, v(tc16)))
        a(valu("v_add_u32", v(VXRQ), XOFF, v(tA)))
        a(valu("v_and_b32", v(tB), 1, v(tg)))
        a(valu("v_lshl_add_u32", v(tA), v(tB), 9, v(VXRQ)))
        a(valu("v_lshl_add_u32", v(tA), v(th), 8, v(tA)))
        a(valu("v_lshlrev_b32", v(tB), 1, v(tB)))
        a(valu("v_lshrrev_b32", v(tC), 3, v(tc16)))
        a(valu("v_xor_b32", v(tB), v(tB), v(tC)))
        a(valu("v_xor_b32", v(tB), s(SWW), v(tB)))
        a(valu("v_lshl_add_u32", v(VXW), v(tB), 2, v(tA)))
        a(salu("s_mov_b32", s(SMASK), "0x0000ffff"))
        a(salu("s_mov_b32", s(SMASK + 1), "0x0000ffff"))
    else:
        a(valu("v_bfe_u32", v(tA), v(tq), 1, 3))
        a(valu("v_xor_b32", v(tA), v(tA), v(th)))
        a(valu("v_lshlrev_b32", v(tA), 4, v(tA)))
        a(valu("v_lshl_add_u32", v(tA), v(tq), 7, v(tA)))
        for k in range(4):
            a(valu("v_xor_b32", v(tB), 32 * k, v(tA)))
            a(valu("v_add_u32", v(vKA + k), s(ST1), v(tB)))
        a(valu("v_lshrrev_b32", v(tA), 1, v(tq)))
        a(valu("v_mul_u32_u24", v(tA), 1056, v(tA)))
        a(valu("v_and_b32", v(tB), 1, v(tq)))
        a(valu("v_lshl_add_u32", v(tA), v(tB), 9, v(tA)))
        a(valu("v_xor_b32", v(tB), v(tB), v(th)))
        a(valu("v_lshl_add_u32", v(VQB), v(tB), 4, v(tA)))
        a(valu("v_lshlrev_b32", v(tA), 4, v(tq)))
        a(valu("v_add_u32", v(VXRQ), XOFF, v(tA)))
        a(valu("v_lshl_add_u32", v(tA), v(th), 9, v(VXRQ)))
        a(valu("v_lshrrev_b32", v(tB), 3, v(tq)))
        a(valu("v_xor_b32", v(tB), s(SWW), v(tB)))
        a(valu("v_lshl_add_u32", v(VXW), v(tB), 2, v(tA)))
        a(salu("s_mov_b32", s(SMASK), -1))
        a(salu("s_mov_b32", s(SMASK + 1), 0))
    a(salu("s_lshl_b32", s(ST2), s(SWW), 12))
    a(salu("s_add_u32", s(ST2), s(ST2), POFF))
    a(valu("v_lshlrev_b32", v(tA), 4, v(VL)))
    a(valu("v_add_u32", v(VPW), s(ST2), v(tA)))
    p.extend(code_base("qk"))
    a(valu("v_lshlrev_b32", v(254), 6, v(VL)))
    a(salu("s_mov_b32", s(SC), hex(f32bits(C_SCALE))))
    a(salu("s_mov_b32", s(SQRD), 0))
    a(salu("s_mov_b32", s(STICK), 0))

    def kfrags(j):
        u, dq = j >> 2, j & 3
        if S16:
            for aa in range(2):
                for b in range(2):
                    a(ds_read("ds_read_b128", AF + 4 * (8 * (2 * u + aa) + 2 * dq + b), 4, vKA + b,
                              (j & 3) * 4096 + 2048 * aa))
        else:
            for k in range(4):
                a(ds_read("ds_read_b128", AF + 4 * (16 * u + 4 * dq + k), 4, vKA + k, (j & 3) * 4096))

    for j in range(4):
        a(waitcnt(vm=16))
        kfrags(j)
        a(waitcnt(lgkm=0))
        kload(4 + j)
    qload(a, 1)
    qload(a, 2)
    a(valu("v_mov_b32", v(VQ), v(VQB)))
    p.extend(stamp(40))
    a(barrier())
    for j, w in zip(range(4, 8), (20, 16, 12, 8)):
        a(waitcnt(vm=w))
        kfrags(j)
    a(waitcnt(lgkm=0))
    p.extend(stamp(48))
    a(barrier())
    p.extend(stamp(49))
    p.extend(stamp(59, True))
    return p


def q_frag(f):
    f2 = f % 16
    off = (f2 & 1) * 8 * 1056 + 64 * (f2 >> 1) if S16 else 32 * f2
    return ds_read("ds_read_b128", FB + 4 * (f % NB), 4, VQ, off)


def qk_tick(par, doA=True, doB=True, prefetch=True, pub=True, keepmax=False, nin=None, keepsum=False):
    Sc, Sn = ACC[par], ACC[1 - par]
    slots = [[] for _ in range(NSL + 1)]
    pre, post = [], []
    if doB:
        X = []
        for qt in range(NQT):
            xv = (XVA, XVB)[qt]
            pre.append(ds_read("ds_read_b128", xv, 4, VXRQ, (1 - par) * 1024 + 256 * qt))
            X += [
                valu("v_max3_f32", v(T0), v(xv), v(xv + 1), v(xv + 2)),
                valu("v_max_f32", v(T0), v(T0), v(xv + 3)),
                valu("v_mul_f32", v(MC[qt]), s(SC), v(T0)),
            ]
        seq = []
        for pr in range(16):
            qt = (pr >> 3) if S16 else 0
            r0, r1 = Sc + 2 * pr, Sc + 2 * pr + 1
            g = [
                valu("v_fma_f32", v(r0), v(r0), s(SC), ("neg", v(MC[qt]))),
                valu("v_fma_f32", v(r1), v(r1), s(SC), ("neg", v(MC[qt]))),
                valu("v_exp_f32", v(r0), v(r0)),
                valu("v_exp_f32", v(r1), v(r1)),
            ]
            g2 = []
            if pr == 0 or (S16 and pr == 8):
                g2.append(valu("v_add_f32", v(LSUM[qt]), v(r0), v(r1)))
            else:
                g2.append(valu("v_add_f32", v(LSUM[qt]), v(LSUM[qt]), v(r0)))
                g2.append(valu("v_add_f32", v(LSUM[qt]), v(LSUM[qt]), v(r1)))
            g2.append(valu("v_cvt_pk_bf16_f32", v(PK + pr % 8), v(r0), v(r1)))
            if pr % 4 == 3:
                gi = pr >> 2
                fi = (2 * (gi & 1) + (gi >> 1)) if S16 else gi
                g2.append(ds_write("ds_write_b128", VPW, PK + (pr - 3) % 8, 4, par * 16384 + fi * 1024))
            seq.append((g, g2))
        flat = []
        for pr in range(16):
            flat.append(seq[pr][0][:2])
            flat.append(seq[pr][0][2:])
            if pr > 0:
                flat[-2] = flat[-2] + seq[pr - 1][1]
        flat.append(seq[15][1])
        if doA:
            nin = int(ENV("QK_IN", "8")) if nin is None else nin
            lo = NSL // 8
            slots[lo - 1] += X
            for k, grp in enumerate(flat[:nin]):
                slots[lo + k * (NSL - lo - 2) // max(nin, 1)] += grp
            post = sum(flat[nin:], [])
        else:
            post = X + sum(flat, [])
    elif pub and not keepsum:
        for qt in range(NQT):
            pre.append(valu("v_mov_b32", v(LSUM[qt]), 0))
    M = []
    if doA:
        if S16:
            for k in range(8):
                for qt in range(2):
                    b, lm = Sn + 16 * qt, LMAX[qt]
                    if k == 0:
                        M.append(valu("v_max3_f32", v(lm), v(b), v(b + 1), v(b + 2)))
                    elif k < 7:
                        M.append(valu("v_max3_f32", v(lm), v(lm), v(b + 1 + 2 * k), v(b + 2 + 2 * k)))
                    else:
                        M.append(valu("v_max_f32", v(lm), v(lm), v(b + 15)))
        else:
            lm = LMAX[0]
            M.append(valu("v_max3_f32", v(lm), v(Sn), v(Sn + 1), v(Sn + 2)))
            M.append(valu("v_max3_f32", v(T1), v(Sn + 16), v(Sn + 17), v(Sn + 18)))
            for k in range(6):
                M.append(valu("v_max3_f32", v(lm), v(lm), v(Sn + 3 + 2 * k), v(Sn + 4 + 2 * k)))
                M.append(valu("v_max3_f32", v(T1), v(T1), v(Sn + 19 + 2 * k), v(Sn + 20 + 2 * k)))
            M.append(valu("v_max3_f32", v(lm), v(lm), v(Sn + 15), v(Sn + 31)))
            M.append(valu("v_max_f32", v(lm), v(lm), v(T1)))
    elif not keepmax:
        for qt in range(NQT):
            M.append(valu("v_mov_b32", v(LMAX[qt]), 0))
    if S16:
        PUB = [
            perm32swap(LMAX[0], LMAX[1]),
            perm32swap(LSUM[0], LSUM[1]),
            valu("v_max_f32", v(LMAX[0]), v(LMAX[0]), v(LMAX[1])),
            valu("v_add_f32", v(LSUM[0]), v(LSUM[0]), v(LSUM[1])),
            perm16swap(LMAX[0], LSUM[0]),
        ]
    else:
        PUB = [perm32swap(LMAX[0], LSUM[0])]
    PUB += [
        valu("v_max_f32", v(T0), v(LMAX[0]), v(LSUM[0])),
        valu("v_add_f32", v(T1), v(LMAX[0]), v(LSUM[0])),
        valu("v_cndmask_b32", v(T0), v(T1), v(T0), s(SMASK, 2)),
        ds_write("ds_write_b32", VXW, T0, 1, par * 1024),
    ]
    QUPD = [
        salu("s_add_u32", s(SQRD), s(SQRD), QSL),
        scmp("s_cmp_eq_u32", s(SQRD), NQ * QSL),
        salu("s_cselect_b32", s(SQRD), 0, s(SQRD)),
        valu("v_add_u32", v(VQ), s(SQRD), v(VQB)),
    ]
    out = list(pre)
    if doA:
        i = 0
        for f in range(16):
            for k, (d, a_, first) in enumerate(frag_mfmas(f, Sn, 0)):
                out.append(mm(d, a_, FB + 4 * (f % NB), first))
                if k == NM - 1:
                    nf = f + LA
                    if nf == 16:
                        out += QUPD
                    if nf < 16 or prefetch:
                        out.append(q_frag(nf))
                out += slots[i]
                i += 1
    k = min(len(post), 14) if doA else 0
    out += post[:k]
    rest = post[k:]
    mi = 0
    for j, ins in enumerate(rest):
        out.append(ins)
        if j % 3 == 2 and mi < len(M):
            out.append(M[mi]); mi += 1
    out += M[mi:] + (PUB if pub else [])
    return out


def pv_addr_late(a):
    x0, x1, x2 = FB, FB + 1, FB + 2
    a(valu("v_lshrrev_b32", v(x0), 3, v(VL)))
    a(valu("v_and_b32", v(x1), 7, v(VL)))
    a(valu("v_xor_b32", v(x1), v(x0), v(x1)))
    a(valu("v_lshlrev_b32", v(x1), 4, v(x1)))
    a(valu("v_lshl_add_u32", v(x1), v(x0), 7, v(x1)))
    a(valu("v_add_u32", v(VOR), s(ST0), v(x1)))
    if S16:
        a(valu("v_and_b32", v(x0), 15, v(VL)))
        a(valu("v_lshrrev_b32", v(x1), 4, v(VL)))
        a(valu("v_lshlrev_b32", v(x1), 1, v(x1)))
        a(valu("v_and_b32", v(x2), 7, v(x0)))
        a(valu("v_xor_b32", v(x1), v(x1), v(x2)))
        a(valu("v_lshlrev_b32", v(x1), 4, v(x1)))
        a(valu("v_lshl_add_u32", v(x1), v(x0), 7, v(x1)))
        a(valu("v_xor_b32", v(x2), 16, v(x1)))
        a(valu("v_add_u32", v(VOW[0]), s(ST0), v(x1)))
        a(valu("v_add_u32", v(VOW[1]), s(ST0), v(x2)))
    else:
        a(valu("v_and_b32", v(x0), 31, v(VL)))
        a(valu("v_lshrrev_b32", v(x1), 5, v(VL)))
        a(valu("v_lshlrev_b32", v(x1), 1, v(x1)))
        a(valu("v_and_b32", v(x2), 7, v(x0)))
        a(valu("v_xor_b32", v(x1), v(x1), v(x2)))
        a(valu("v_lshlrev_b32", v(x1), 4, v(x1)))
        a(valu("v_lshl_add_u32", v(x1), v(x0), 7, v(x1)))
        for c in range(4):
            a(valu("v_xor_b32", v(x2), 64 * (c >> 1) + 16 * (c & 1), v(x1)))
            a(valu("v_add_u32", v(VOW[c]), s(ST0), v(x2)))


def pv_X(slot, inv, xv):
    rd, va = [], []
    for qt in range(NQT):
        x = xv[qt]
        rd.append(ds_read("ds_read_b128", x, 4, VXRP, slot * 1024 + 256 * qt))
        va += [
            valu("v_add_f32", v(x), v(x), v(x + 1)),
            valu("v_add_f32", v(x + 2), v(x + 2), v(x + 3)),
            valu("v_add_f32", v(x), v(x), v(x + 2)),
            valu("v_rcp_f32", v(inv[qt]), v(x)),
        ]
    return rd, va


def pv_E(O, inv, VOW=VOW):
    E = []
    for c in range(4):
        b = O + 8 * c
        iv = inv[c >> 1] if S16 else inv[0]
        for r in range(8):
            E.append(valu("v_mul_f32", v(b + r), v(b + r), v(iv)))
        for r in range(4):
            E.append(valu("v_cvt_pk_bf16_f32", v(b + r), v(b + 2 * r), v(b + 2 * r + 1)))
        if S16:
            E.append(ds_write("ds_write_b128", VOW[c & 1], b, 4, 2048 * (c >> 1)))
        else:
            E.append(ds_write("ds_write_b128", VOW[c], b, 4))
    return E


def pv_D(O, VOR=VOR):
    hdr = [salu("s_mov_b32", s(SOE), s(SOSO)), salu("s_add_u32", s(SOSO), s(SOSO), 16384)]
    if ROT:
        hdr = [salu("s_add_u32", s(SOE), s(SOSO), s(SROT)), salu("s_and_b32", s(SOE), s(SOE), 262143),
               salu("s_add_u32", s(SOSO), s(SOSO), 16384)]
    rd = [ds_read("ds_read_b128", O + 8 * n + 4, 4, VOR, 1024 * n) for n in range(4)]
    st = []
    for n in range(4):
        g = [buf_store(O + 8 * n + 4, VOS, SRD_O, s(SOE), ST_MODS)]
        if n < 3:
            g.append(salu("s_add_u32", s(SOE), s(SOE), 4096))
        st.append(g)
    return hdr, rd, st


def pv_ED(O, inv):
    hdr, rd, st = pv_D(O)
    return pv_E(O, inv) + hdr + rd + sum(st, [])


def pv_prologue():
    p = []
    a = p.append
    DG["v"] = 243
    vVD, vB0, vB1, vT0, vT1, vP2 = VOR, VOW[0], VOW[1], XV, XV + 1, XV + 2
    inv0 = INV[0]
    p.extend(code_base("pv"))
    a(valu("v_lshlrev_b32", v(AF + 125), 6, v(VL)))
    p.extend(code_touch(0, CODE["size"], AF + 126, AF + 127, AF + 125))
    srd(a, SRD_A, SPTR + 4, ST1, 131072)
    srd(a, SRD_O, SPTR + 6, ST0, 0)
    a(salu("s_lshl_b32", s(ST2), s(SWW), 7))
    a(valu("v_lshrrev_b32", v(tA), 3, v(VL)))
    a(valu("v_and_b32", v(tB), 7, v(VL)))
    a(valu("v_lshlrev_b32", v(tC), 9, v(tA)))
    a(valu("v_lshl_add_u32", v(tC), v(tB), 4, v(tC)))
    a(valu("v_add_u32", v(VOS), s(ST2), v(tC)))
    a(valu("v_bfe_u32", v(tC), v(VL), 4, 1))
    a(valu("v_lshlrev_b32", v(tC), 4 if S16 else 6, v(tC)))
    a(valu("v_xor_b32", v(vVD), v(tC), v(VOS)))
    a(salu("s_lshl_b32", s(ST0), s(SWW), 12))
    a(salu("s_add_u32", s(ST0), s(ST0), OOFF))
    a(valu("v_lshlrev_b32", v(tA), 4, v(VL)))
    a(valu("v_add_u32", v(VPR), POFF, v(tA)))
    a(valu("v_add_u32", v(vP2), P2OFF, v(tA)))
    a(valu("v_and_b32", v(tA), 15 if S16 else 31, v(VL)))
    a(valu("v_lshlrev_b32", v(tA), 4, v(tA)))
    a(valu("v_add_u32", v(VXRP), XOFF + 512, v(tA)))
    if S16:
        a(valu("v_lshrrev_b32", v(tA), 2, v(VL)))
        a(valu("v_lshlrev_b32", v(tA), 7, v(tA)))
        a(valu("v_and_b32", v(tB), 3, v(VL)))
        a(valu("v_lshl_add_u32", v(tA), v(tB), 5, v(tA)))
        a(valu("v_bfe_u32", v(tB), v(VL), 3, 1))
        a(valu("v_lshl_add_u32", v(vB0), v(tB), 4, v(tA)))
        a(valu("v_xor_b32", v(vB1), 16, v(vB0)))
    else:
        a(valu("v_bfe_u32", v(tA), v(VL), 2, 2))
        a(valu("v_lshl_add_u32", v(tA), v(th), 2, v(tA)))
        a(valu("v_lshlrev_b32", v(tA), 7, v(tA)))
        a(valu("v_bfe_u32", v(tB), v(VL), 3, 1))
        a(valu("v_lshl_add_u32", v(tA), v(tB), 6, v(tA)))
        a(valu("v_and_b32", v(tB), 1, v(VL)))
        a(valu("v_lshl_add_u32", v(tA), v(tB), 5, v(tA)))
        a(valu("v_bfe_u32", v(tB), v(VL), 4, 1))
        a(valu("v_lshl_add_u32", v(tA), v(tB), 4, v(tA)))
        a(valu("v_bfe_u32", v(tB), v(VL), 1, 1))
        a(valu("v_lshl_add_u32", v(vB0), v(tB), 3, v(tA)))
        a(valu("v_xor_b32", v(vB1), 64, v(vB0)))
    a(salu("s_mov_b32", s(SQSO), 10 * 16384))
    a(salu("s_add_u32", s(SQM0), s(SQB), 4 * QSL))
    a(salu("s_add_u32", s(SQLIM), s(SQB), NQ * QSL))
    a(salu("s_mov_b32", s(SOSO), 0))
    a(salu("s_mov_b32", s(STICK), 5))
    VLOC = {0: 3, 1: 4, 2: 5, 3: "o", 4: 0, 5: 2, 6: "o", 7: 0}

    def vdest(j):
        loc = VLOC[j]
        return (ST0, 0) if loc == "o" else (SQB, loc * QSL)

    def vload(j):
        sb, off = vdest(j)
        for n in range(4):
            a(salu("s_add_u32", "m0", s(sb), off + n * 1024))
            a(salu("s_mov_b32", s(ST2), (32 * j + 8 * n) * 512))
            a(buf_lds(vVD, SRD_A, s(ST2), LD_MODS))

    accs = [ACC2, ACC[1], ACC[0]]
    inited = set()

    def vfrag(j):
        sb, off = vdest(j)
        a(salu("s_add_u32", s(ST3), s(sb), off))
        a(valu("v_add_u32", v(vT0), s(ST3), v(vB0)))
        a(valu("v_add_u32", v(vT1), s(ST3), v(vB1)))
        if S16:
            for dt in range(4):
                for aa in range(2):
                    a(ds_read("ds_read_b64_tr_b16", AF + 4 * (8 * dt + j) + 2 * aa, 2, (vT0, vT1)[dt >> 1],
                              16 * aa * 128 + 8 * (dt & 1)))
        else:
            for b in range(2):
                for dt in range(2):
                    for aa in range(2):
                        a(ds_read("ds_read_b64_tr_b16", AF + 4 * (16 * dt + 2 * j + b) + 2 * aa, 2, (vT0, vT1)[dt],
                                  (16 * b + 8 * aa) * 128))
        a(waitcnt(lgkm=0))
        p.extend(stamp(41 + j))

    def vmm(j):
        def pf(blk, b):
            buf = FB + 4 * ((2 * blk + b) % 4)
            if blk < 2:
                return ds_read("ds_read_b128", buf, 4, VPR, blk * 16384 + (2 * j + b) * 1024)
            return ds_read("ds_read_b128", buf, 4, vP2, (2 * j + b) * 1024)

        for blk in range(2):
            for b in range(2):
                a(pf(blk, b))
        for blk in range(3):
            for b in range(2):
                buf = FB + 4 * ((2 * blk + b) % 4)
                for (d, a_, _) in frag_mfmas(2 * j + b, accs[blk], 0):
                    a(mm(d, a_, buf, d not in inited))
                    inited.add(d)
                if blk == 0:
                    a(pf(2, b))

    def dummy_st():
        for _ in range(4):
            a(buf_store(AF, VOS, SRD_O, 0))

    p.extend(stamp(51))
    a(raw(f"s_setprio {ENV('PV_PRIO', '0')}", "salu"))
    a(barrier())
    vload(0); vload(1)
    a(barrier())
    p.extend(stamp(49))
    p.extend(stamp(59, True))
    vload(2); vload(3)
    a(barrier())
    vload(4)
    a(waitcnt(vm=16)); vfrag(0); qload(a, 3)
    a(barrier())
    rd, va = pv_X(0, inv0, [FB, FB + 4])
    p.extend(rd + va)
    a(waitcnt(vm=16)); vfrag(1); qload(a, 4)
    a(barrier())
    vload(5)
    rd, va = pv_X(1, INV[1], [FB, FB + 4])
    p.extend(rd + va)
    a(waitcnt(vm=20)); vfrag(2)
    a(barrier())
    a(waitcnt(vm=16)); vfrag(3); vload(6)
    vmm(0); vmm(1)
    a(waitcnt(vm=16)); vfrag(4); vload(7); qload(a, 5)
    vmm(2)
    a(waitcnt(vm=20))
    a(barrier())
    vmm(3); vmm(4)
    a(waitcnt(vm=16))
    a(barrier())
    qload(a, 9)
    a(waitcnt(vm=16)); vfrag(5); qload(a, 8); vmm(5)
    a(waitcnt(vm=16)); vfrag(6); vmm(6)
    a(waitcnt(vm=12)); vfrag(7); qload(a, 6); vmm(7)
    a(waitcnt(vm=12))
    a(barrier())
    p.extend(stamp(52))
    pv_addr_late(a)
    W2 = [FB + 4 + c for c in range(len(VOW))]
    R2 = FB + 8
    for c in range(len(VOW)):
        a(valu("v_subrev_u32", v(W2[c]), OOFF - POFF, v(VOW[c])))
    a(valu("v_subrev_u32", v(R2), OOFF - POFF, v(VOR)))
    E0 = pv_E(ACC2, inv0)
    E1 = pv_E(ACC[1], INV[1], W2)
    h0, r0, s0 = pv_D(ACC2)
    h1, r1, s1 = pv_D(ACC[1], R2)
    qload(a, 7)
    p.extend(E0 + r0)
    p.extend(E1 + r1)
    rd, va = pv_X(0, INV[0], [FB + 12, FB + 0])
    p.extend(rd + va)
    p.extend(stamp(56))
    a(waitcnt(lgkm=0))
    a(barrier())
    a(salu("s_mov_b32", s(SRD_O + 2), 262144))
    p.extend(h0 + sum(s0, []) + h1 + sum(s1, []))
    if DIAG:
        a(valu("v_mov_b32", v(238), v(DG["v"])))
        DG["v"] = 238
    p.extend(stamp(3) + stamp(23, True))
    return p


def pv_tick(par, mode=None, noq=False):
    Oc = ACC[1 - par]
    slots = [[] for _ in range(NSL + 1)]

    def p_frag(m):
        return ds_read("ds_read_b128", FB + 4 * (m % NB), 4, VPR, (1 - par) * 16384 + m * 1024)

    xrd, X = pv_X(1 - par, INV[1 - par], [XV, 224])
    pre = [p_frag(m) for m in range(LA)] + xrd
    E = pv_E(ACC[par], INV[par])
    hdr, rd, st = pv_D(ACC[par])
    qd, ql, qu = [], [[], [], [], []], []
    if not noq:
        qd = [
            scmp("s_cmp_lt_u32", s(SQSO), 262144),
            salu("s_cselect_b32", s(SRD_Q + 2), 262144, 0),
            salu("s_cselect_b32", s(SQE), s(SQSO), 0),
            salu("s_add_u32", s(SQSO), s(SQSO), 16384),
        ]
        if ROT:
            qd += [salu("s_add_u32", s(SQE), s(SQE), s(SROT)), salu("s_and_b32", s(SQE), s(SQE), 262143)]
        ql = []
        for n in range(4):
            g = [salu("s_add_u32", "m0", s(SQM0), n * 1056)]
            g.append(salu("s_add_u32", s(SQE), s(SQE), 1024) if n else nop(1))
            g.append(buf_lds(VQD, SRD_Q, s(SQE), LD_MODS))
            ql.append(g)
        qu = [
            salu("s_add_u32", s(SQM0), s(SQM0), QSL),
            scmp("s_cmp_eq_u32", s(SQM0), s(SQLIM)),
            salu("s_cselect_b32", s(SQM0), s(SQB), s(SQM0)),
        ]
    mode = mode or ENV("PV_MODE", "1")
    u = NSL // 32
    if mode == "0":
        pre += E[:13] + qd
        rest = E[13:]
        for k, ins in enumerate(rest):
            slots[k * 13 * u // len(rest)].append(ins)
        for n in range(4):
            slots[(1 + 3 * n) * u] += ql[n]
        slots[11 * u] += qu
        slots[13 * u] += X
        slots[14 * u] += rd[:2]
        slots[15 * u] += rd[2:] + hdr
        for n in range(4):
            slots[(18 + 3 * n) * u] += st[n]
    else:
        pre += qd
        for c in range(4):
            pre += E[13 * c:13 * c + 13] + ql[c]
        pre += qu + rd + X + hdr + sum(st, [])
    out = list(pre)
    i = 0
    for f in range(16):
        for k, (d, a_, first) in enumerate(frag_mfmas(f, Oc, 0)):
            out.append(mm(d, a_, FB + 4 * (f % NB), first))
            if k == NM - 1 and f + LA < 16:
                out.append(p_frag(f + LA))
            out += slots[i]
            i += 1
    return out


def pv_last():
    Oc = ACC[1]
    seq = []
    if S16:
        for qt in range(2):
            for U in range(8):
                seq.append((2 * U + qt, frag_mfmas(2 * U + qt, Oc, 0)))
    else:
        for dt in range(2):
            for m in range(16):
                seq.append((m, [frag_mfmas(m, Oc, 0)[dt]]))
    n = len(seq)

    def p_frag(k):
        return ds_read("ds_read_b128", FB + 4 * (k % NB), 4, VPR, 16384 + seq[k][0] * 1024)

    L2 = 5 if S16 else 7
    xrd, X = pv_X(1, INV[1], [XV, 224])
    pre = [p_frag(k) for k in range(L2)] + xrd
    E14 = pv_E(ACC[0], INV[0])
    hdr, rd, st = pv_D(ACC[0])
    E15 = pv_E(Oc, INV[1])
    hdr2, rd2, st2 = pv_D(Oc)
    slots = [[] for _ in range(33)]
    pre += E14[:13]
    rest = E14[13:]
    for k, ins in enumerate(rest):
        slots[k * 9 // len(rest)].append(ins)
    slots[9] += X + hdr
    slots[10] += rd
    for k in range(4):
        slots[13 + 2 * k] += st[k]
    h = E15[:26]
    for k, ins in enumerate(h):
        slots[21 + k * 10 // len(h)].append(ins)
    out = list(pre)
    cnt = 0
    per = NSL // 32
    for k, (f, ms) in enumerate(seq):
        for j, (d, a_, first) in enumerate(ms):
            out.append(mm(d, a_, FB + 4 * (k % NB), first))
            if j == len(ms) - 1 and k + L2 < n:
                out.append(p_frag(k + L2))
            cnt += 1
            if cnt % per == 0:
                out += slots[cnt // per - 1]
    out += E15[26:] + hdr2 + rd2 + sum(st2, [])
    return out


def finalize(seq, q0=None, hist=None):
    s1, q = insert_lgkm_waits(seq, q0)
    return pad_hazards(s1, hist), q


def build():
    T = []
    head, _ = finalize(common_head())
    T.append(render(head))
    inc = [salu("s_add_u32", s(STICK), s(STICK), 1)]

    pro = qk_prologue() + [q_frag(f) for f in range(LA)]
    NE = int(ENV("QK_EARLY_IN", "33"))
    pf = [waitcnt(lgkm=0)] + [q_frag(f) for f in range(LA)]
    np_ = dict(prefetch=False)
    early = qk_tick(1, doB=False, **np_) + [waitcnt(vm=4), barrier()] + tick_stamps() + inc + pf
    early += qk_tick(0, nin=NE, **np_) + [waitcnt(vm=0), barrier()] + tick_stamps() + inc + pf
    early += qk_tick(1, nin=NE, **np_) + [barrier()] + tick_stamps() + inc
    early += [valu("v_subrev_u32", v(VPW), POFF - P2OFF, v(VPW))]
    early += qk_tick(0, doA=False, pub=False, keepmax=True) + [barrier(), barrier()] + pf
    early += [valu("v_add_u32", v(VPW), POFF - P2OFF, v(VPW))]
    early += qk_tick(0, doB=False, keepsum=True, **np_) + [barrier()] + tick_stamps() + inc + pf
    early += qk_tick(1, doB=False, pub=False, **np_) + [barrier()]
    early += qk_tick(1, doA=False, keepmax=True) + [barrier()] + tick_stamps() + pf + inc
    pro, q = finalize(pro + early, None, head[-30:])
    T.append(render(pro))
    b0 = qk_tick(0) + [barrier()] + tick_stamps()
    touch = code_touch(CODE["qk_tail"], CODE["pv"], 237, 248, 254) + code_touch(CODE["pv_tail"], CODE["size"], 237, 248, 254)
    b1 = qk_tick(1) + touch + [barrier()] + tick_stamps()
    body_a, qa = insert_lgkm_waits(b0, q)
    body_b, qb = insert_lgkm_waits(b1, qa)
    tb, t0 = [i.text for i in qb], [i.text for i in q]
    assert DIAG or t0[len(t0) - len(tb):] == tb, (t0, tb)
    mid = [scmp("s_cmp_eq_u32", s(STICK), 15), raw("s_cbranch_scc1 L_qk_tail", "branch"),
           scmp("s_cmp_lg_u32", s(STICK), 5), raw("s_cbranch_scc1 L_qk_r0", "branch")] + pf + \
        [waitcnt(lgkm=0), label("L_qk_r0")] + inc
    end = inc + [raw("s_branch L_qk_loop", "branch")]
    loop = body_a + mid + body_b + end
    h1 = pad_hazards(loop, pro[-40:])
    h2 = pad_hazards(h1, h1[-40:])
    assert len(h1) == len(h2)
    T.append(".p2align 6\nL_qk_loop:\n" + render(h1))
    tail = inc + [raw("s_setprio 0", "salu")] + qk_tick(1, doA=False, doB=True) + [barrier()] + tick_stamps() + diag_end()
    tail, _ = finalize(tail, qa, [])
    T.append("L_qk_tail:\n    s_nop 7\n    s_nop 7\n" + render(tail) + "\n    s_endpgm")

    pp, q = finalize(pv_prologue(), None, head[-30:])
    assert len(q) == 0 or DIAG
    T.append("L_pv:\n" + render(pp))
    def vmw(k):
        return [waitcnt(vm=28), scmp("s_cmp_gt_u32", s(STICK), 5), raw(f"s_cbranch_scc1 L_pv_w{k}", "branch"),
                waitcnt(vm=16), label(f"L_pv_w{k}")]

    c0 = pv_tick(0) + vmw(0) + [barrier()] + tick_stamps() + inc
    c1 = pv_tick(1) + vmw(1) + [barrier()] + tick_stamps() + inc
    l0, q1 = insert_lgkm_waits(c0, [])
    l1, q2 = insert_lgkm_waits(c1, q1)
    assert len(q1) == 0 and len(q2) == 0
    loop = l0 + [scmp("s_cmp_eq_u32", s(STICK), 16), raw("s_cbranch_scc1 L_pv_tail", "branch")] + l1 + \
        [raw("s_branch L_pv_loop", "branch")]
    h1 = pad_hazards(loop, pp[-40:])
    h2 = pad_hazards(h1, h1[-40:])
    assert len(h1) == len(h2)
    T.append(".p2align 6\nL_pv_loop:\n" + render(h1))
    fin = stamp(58) + stamp(57, True) + [raw("s_setprio 2", "salu")] + pv_tick(1, "0", noq=True) + [barrier()] + \
        tick_stamps() + inc + pv_last() + diag_end()
    fin, _ = finalize(fin, [], [])
    T.append("L_pv_tail:\n    s_nop 7\n    s_nop 7\n" + render(fin))
    return "\n".join(T)


HEADER = """; Kernarg layout for this problem (48 bytes, ptrs only, base s[0:1]):
; @launch grid=(256,1,1) block=(512,1,1) lds={lds}
.amdgcn_target "amdgcn-amd-amdhsa--gfx950"
.text
.globl {name}_kernel
.p2align 8
.type {name}_kernel,@function
{name}_kernel:
"""

FOOTER = """
L_end:
    s_endpgm
.section .rodata,"a"
.p2align 6
.amdhsa_kernel {name}_kernel
  .amdhsa_next_free_vgpr 256
  .amdhsa_next_free_sgpr 64
  .amdhsa_accum_offset 256
  .amdhsa_group_segment_fixed_size 0
  .amdhsa_kernarg_size 48
  .amdhsa_user_sgpr_count 2
  .amdhsa_user_sgpr_kernarg_segment_ptr 1
  .amdhsa_system_sgpr_workgroup_id_x 1
.end_amdhsa_kernel
"""


def assemble_sizes(path):
    import subprocess
    subprocess.run(["clang", "-x", "assembler", "-target", "amdgcn-amd-amdhsa", "-mcpu=gfx950",
                    "-c", path, "-o", path + ".o"], check=True)
    out = subprocess.run(["llvm-objdump", "-t", path + ".o"], capture_output=True, text=True).stdout
    sym = {}
    for line in out.splitlines():
        f = line.split()
        if len(f) >= 5 and f[-1].startswith("L_"):
            sym[f[-1]] = int(f[0], 16)
    os.remove(path + ".o")
    return sym


def main():
    out = sys.argv[1] if len(sys.argv) > 1 else f"cdna_kernels/{NAME}.s"
    prev = None
    for it in range(6):
        txt = HEADER.format(name=NAME, lds=LDS_BYTES) + build() + FOOTER.format(name=NAME)
        open(out, "w").write(txt)
        sym = assemble_sizes(out)
        cur = dict(size=sym["L_end"] + 4, qk_tail=sym["L_qk_tail"], pv=sym["L_pv"], pv_tail=sym["L_pv_tail"])
        if cur == prev:
            break
        prev = cur
        CODE.update(cur)
    else:
        raise RuntimeError("code size did not converge")
    print(f"wrote {out}: {txt.count(chr(10))} lines, code {cur}")


if __name__ == "__main__":
    main()
```

```python
import struct
import sys
import os

sys.path.insert(0, os.path.dirname(__file__))
from asmlib import *

NAME = "standalone__gqa_softmax__near_ridge"
ENV = os.environ.get
SH = int(ENV("SH", "16"))
S16 = SH == 16
NQT = 2 if S16 else 1

QSL = 16896
NQ = 6
POFF = NQ * QSL
OOFF = POFF + 32768
XOFF = OOFF + 16384
LDS_BYTES = XOFF + 2048
KS = 5 * QSL
P2OFF = QSL
assert KS + 65536 <= XOFF and LDS_BYTES <= 163840

AF = 0
ACC = [128, 160]
FB = 192
NB = 8
VL = 255
PK = 224
XVA, XVB = 232, 224
MC, LSUM, LMAX = [240, 241], [242, 243], [244, 245]
T0, T1 = 246, 247
VQ, VQB, VPW, VXW, VXRQ = 249, 250, 251, 252, 253
ACC2 = 208
XV = 240
if S16:
    INV = [[244, 245], [246, 247]]
    VOW = [248, 254]
else:
    INV = [[244], [245]]
    VOW = [246, 247, 248, 254]
VQD, VPR, VXRP, VOR, VOS = 249, 250, 251, 252, 253

DIAG = int(ENV("DIAG", "0"))
DG = {"v": 238, "t": 239}

SRD_A, SRD_Q, SRD_O = 4, 8, 12
SPTR = 20
SW, SWW = 28, 29
SQSO, SQM0, SQRD, SOSO, STICK, SC, ST0, ST1, ST2 = 30, 31, 32, 33, 34, 35, 36, 37, 38
SMASK = 40
SQE, SOE, SQB, SQLIM = 42, 43, 44, 45
STM = 46
SRD_W = 48
SDL = 52
ST3 = 53
SROT = 54
SQP, SOP = 55, 58

C_SCALE = 1.4426950408889634 / 16.0
LD_MODS = ENV("LD_MODS", " nt")
ST_MODS = ENV("ST_MODS", " nt")
STM_STATE = {"m": ST_MODS}
LA = int(ENV("LA", "5"))
ROT = int(ENV("ROT", "0"))
NM = 4 if S16 else 2
NSL = 16 * NM


def f32bits(x):
    return struct.unpack("<I", struct.pack("<f", x))[0]


def stamp(lane, real=False):
    if not DIAG:
        return []
    vd, vt = DG["v"], DG["t"]
    op = "s_memrealtime" if real else "s_memtime"
    o = [raw(f"{op} {sr(STM, 2)}", "smem", wr=S(STM, 2)), waitcnt(lgkm=0)]
    if isinstance(lane, int):
        o.append(I(f"v_writelane_b32 v{vd}, s{STM}, {lane}", "valu", S(STM), V(vd)))
    else:
        o.append(I(f"v_cmp_eq_u32 vcc, s{lane[1]}, v{VL}", "valu", V(VL), []))
        o.append(valu("v_mov_b32", v(vt), s(STM)))
        o.append(nop(2))
        o.append(I(f"v_cndmask_b32 v{vd}, v{vd}, v{vt}, vcc", "valu", V(vd) + V(vt), V(vd)))
    return o


def tick_stamps():
    if DIAG != 1:
        return []
    return stamp(s(STICK)) + [salu("s_add_u32", s(SDL), s(STICK), 20)] + stamp(s(SDL), True)


def diag_end():
    if not DIAG:
        return []
    vd, vt = DG["v"], DG["t"]
    o = stamp(62) + stamp(63, True)
    o += [
        raw(f"s_load_dwordx2 {sr(SRD_W, 2)}, s[0:1], 40", "smem", wr=S(SRD_W, 2)),
        waitcnt(lgkm=0),
        salu("s_mov_b32", s(SRD_W + 2), 256 * 8 * 256),
        salu("s_mov_b32", s(SRD_W + 3), "0x00020000"),
        salu("s_lshl_b32", s(ST0), s(2), 3),
        salu("s_add_u32", s(ST0), s(ST0), s(SW)),
        salu("s_lshl_b32", s(ST0), s(ST0), 8),
        valu("v_lshlrev_b32", v(vt), 2, v(VL)),
        raw(f"buffer_store_dword v{vd}, v{vt}, {sr(SRD_W, 4)}, s{ST0} offen", "vmem_st", rd=V(vd) + V(vt)),
    ]
    return o


def srd(a, base, ptr, off, size):
    a(salu("s_add_u32", s(base), s(ptr), s(off)))
    a(salu("s_addc_u32", s(base + 1), s(ptr + 1), 0))
    a(salu("s_and_b32", s(base + 1), s(base + 1), "0xffff"))
    a(salu("s_mov_b32", s(base + 2), size))
    a(salu("s_mov_b32", s(base + 3), "0x00020000"))


def mm(d, a_, b_, first):
    return (mfma16 if S16 else mfma)(d, a_, b_, None if first else d)


def frag_mfmas(f, acc, buf):
    if S16:
        kstep, qt = f >> 1, f & 1
        return [(acc + 16 * qt + 4 * t, AF + 4 * (8 * t + kstep), kstep == 0) for t in range(4)]
    return [(acc + 16 * t, AF + 4 * (16 * t + f), f == 0) for t in range(2)]


tq, th, tA, tB, tC, tc16, tg = 128, 129, 130, 131, 132, 140, 141


def common_head():
    p = []
    a = p.append
    a(scmp("s_cmp_ge_u32", s(2), 256))
    a(raw("s_cbranch_scc1 L_end", "branch"))
    a(salu("s_and_b32", s(3), s(2), 7))
    a(salu("s_lshl_b32", s(3), s(3), 5))
    a(salu("s_lshr_b32", s(2), s(2), 3))
    a(salu("s_add_u32", s(2), s(2), s(3)))
    if DIAG:
        DG["v"] = 243
        a(valu("v_mov_b32", v(DG["v"]), 0))
        p.extend(stamp(60, True))
        p.extend(stamp(61))
    a(raw(f"s_load_dwordx4 {sr(SPTR, 4)}, s[0:1], 0", "smem", wr=S(SPTR, 4)))
    a(raw(f"s_load_dwordx4 {sr(SPTR + 4, 4)}, s[0:1], 16", "smem", wr=S(SPTR + 4, 4)))
    a(valu("v_and_b32", v(VL), 63, v(0)))
    a(valu("v_lshrrev_b32", v(tA), 6, v(0)))
    a(rfl(SW, tA))
    a(valu("v_and_b32", v(tq), 31, v(VL)))
    a(valu("v_lshrrev_b32", v(th), 5, v(VL)))
    a(salu("s_and_b32", s(SWW), s(SW), 3))
    a(salu("s_lshl_b32", s(ST0), s(2), 18))
    a(salu("s_lshl_b32", s(ST1), s(2), 17))
    a(salu("s_lshl_b32", s(ST2), s(SWW), 12))
    a(valu("v_xor_b32", v(tA), v(tq), v(th)))
    a(valu("v_lshlrev_b32", v(tA), 4, v(tA)))
    a(valu("v_lshl_add_u32", v(tA), v(th), 9, v(tA)))
    a(valu("v_add_u32", v(VQD), s(ST2), v(tA)))
    a(salu("s_mul_i32", s(SQB), s(SWW), 4 * 1056))
    if ROT:
        a(salu("s_mul_i32", s(SROT), s(2), ROT))
        a(salu("s_and_b32", s(SROT), s(SROT), 15))
        a(salu("s_lshl_b32", s(SROT), s(SROT), 14))
    a(raw("s_waitcnt lgkmcnt(0)", "wait0"))
    srd(a, SRD_Q, SPTR + 0, ST0, 262144)
    a(scmp("s_cmp_ge_u32", s(SW), 4))
    a(raw("s_cbranch_scc1 L_pv", "branch"))
    return p


SPC = 56
CODE = {"size": 0, "qk_tail": 0, "pv": 0, "pv_tail": 0}


def code_base(tag):
    return [
        raw(f"s_getpc_b64 {sr(SPC, 2)}", "salu", wr=S(SPC, 2)),
        label(f"L_pc_{tag}"),
        raw(f"s_sub_u32 s{SPC}, s{SPC}, L_pc_{tag}-{NAME}_kernel", "salu", rd=S(SPC), wr=S(SPC)),
        raw(f"s_subb_u32 s{SPC + 1}, s{SPC + 1}, 0", "salu", rd=S(SPC + 1), wr=S(SPC + 1)),
    ]


def code_touch(lo, hi, vaddr, vdst, vl64):
    o = []
    if not int(ENV("CPF", "0")) or hi <= lo:
        return o
    lo &= ~63
    while lo < hi:
        o.append(valu("v_add_u32", v(vaddr), lo, v(vl64)))
        if lo + 4096 > hi:
            o.append(valu("v_min_u32", v(vaddr), (hi - 4) & ~3, v(vaddr)))
        o.append(raw(f"global_load_dword v{vdst}, v{vaddr}, {sr(SPC, 2)}", "vmem_ld", rd=V(vaddr) + S(SPC, 2), wr=[]))
        lo += 4096
    return o


def qload(a, blk):
    if ROT:
        a(salu("s_add_u32", s(SQP), s(SROT), blk * 16384))
        a(salu("s_and_b32", s(SQP), s(SQP), 262143))
    for n in range(4):
        a(salu("s_add_u32", "m0", s(SQB), (blk % NQ) * QSL + n * 1056))
        if ROT:
            a(salu("s_add_u32", s(ST2), s(SQP), n * 1024))
        else:
            a(salu("s_mov_b32", s(ST2), blk * 16384 + n * 1024))
        a(buf_lds(VQD, SRD_Q, s(ST2), LD_MODS))


def qk_prologue():
    p = []
    a = p.append
    vKe, vKo, vKA = 133, 134, 136
    srd(a, SRD_A, SPTR + 2, ST1, 131072)
    a(valu("v_lshrrev_b32", v(tA), 3, v(VL)))
    a(valu("v_lshlrev_b32", v(tA), 9, v(tA)))
    a(valu("v_and_b32", v(tB), 7, v(VL)))
    a(valu("v_lshrrev_b32", v(tC), 4, v(VL)))
    a(valu("v_xor_b32", v(tB), v(tB), v(tC)))
    a(valu("v_lshl_add_u32", v(vKe), v(tB), 4, v(tA)))
    a(valu("v_xor_b32", v(vKo), 64, v(vKe)))
    a(salu("s_lshl_b32", s(ST0), s(SWW), 15))
    a(salu("s_lshl_b32", s(ST1), s(SWW), 14))
    a(salu("s_add_u32", s(ST1), s(ST1), KS))

    def kload(j):
        u, dq = j >> 2, j & 3
        for n in range(4):
            a(salu("s_add_u32", "m0", s(ST1), (j & 3) * 4096 + n * 1024))
            a(salu("s_add_u32", s(ST2), s(ST0), u * 16384 + n * 4096 + dq * 128))
            a(buf_lds(vKo if n & 1 else vKe, SRD_A, s(ST2), LD_MODS))

    for j in range(4):
        kload(j)
    qload(a, 0)
    if DIAG:
        a(valu("v_mov_b32", v(238), v(DG["v"])))
        DG["v"] = 238
    p.extend(stamp(51))
    a(raw(f"s_setprio {ENV('QK_PRIO', '1')}", "salu"))
    a(valu("v_and_b32", v(tc16), 15, v(VL)))
    a(valu("v_lshrrev_b32", v(tg), 4, v(VL)))
    if S16:
        a(valu("v_lshrrev_b32", v(tA), 1, v(tc16)))
        a(valu("v_xor_b32", v(tA), v(tA), v(tg)))
        a(valu("v_lshlrev_b32", v(tA), 4, v(tA)))
        a(valu("v_lshl_add_u32", v(tA), v(tc16), 7, v(tA)))
        a(valu("v_xor_b32", v(tB), 64, v(tA)))
        a(valu("v_add_u32", v(vKA), s(ST1), v(tA)))
        a(valu("v_add_u32", v(vKA + 1), s(ST1), v(tB)))
        a(valu("v_lshrrev_b32", v(tA), 1, v(tc16)))
        a(valu("v_mul_u32_u24", v(tA), 1056, v(tA)))
        a(valu("v_and_b32", v(tB), 1, v(tc16)))
        a(valu("v_lshl_add_u32", v(tA), v(tB), 9, v(tA)))
        a(valu("v_xor_b32", v(tB), v(tB), v(tg)))
        a(valu("v_lshl_add_u32", v(VQB), v(tB), 4, v(tA)))
        a(valu("v_lshlrev_b32", v(tA), 4, v(tc16)))
        a(valu("v_add_u32", v(VXRQ), XOFF, v(tA)))
        a(valu("v_and_b32", v(tB), 1, v(tg)))
        a(valu("v_lshl_add_u32", v(tA), v(tB), 9, v(VXRQ)))
        a(valu("v_lshl_add_u32", v(tA), v(th), 8, v(tA)))
        a(valu("v_lshlrev_b32", v(tB), 1, v(tB)))
        a(valu("v_lshrrev_b32", v(tC), 3, v(tc16)))
        a(valu("v_xor_b32", v(tB), v(tB), v(tC)))
        a(valu("v_xor_b32", v(tB), s(SWW), v(tB)))
        a(valu("v_lshl_add_u32", v(VXW), v(tB), 2, v(tA)))
        a(salu("s_mov_b32", s(SMASK), "0x0000ffff"))
        a(salu("s_mov_b32", s(SMASK + 1), "0x0000ffff"))
    else:
        a(valu("v_bfe_u32", v(tA), v(tq), 1, 3))
        a(valu("v_xor_b32", v(tA), v(tA), v(th)))
        a(valu("v_lshlrev_b32", v(tA), 4, v(tA)))
        a(valu("v_lshl_add_u32", v(tA), v(tq), 7, v(tA)))
        for k in range(4):
            a(valu("v_xor_b32", v(tB), 32 * k, v(tA)))
            a(valu("v_add_u32", v(vKA + k), s(ST1), v(tB)))
        a(valu("v_lshrrev_b32", v(tA), 1, v(tq)))
        a(valu("v_mul_u32_u24", v(tA), 1056, v(tA)))
        a(valu("v_and_b32", v(tB), 1, v(tq)))
        a(valu("v_lshl_add_u32", v(tA), v(tB), 9, v(tA)))
        a(valu("v_xor_b32", v(tB), v(tB), v(th)))
        a(valu("v_lshl_add_u32", v(VQB), v(tB), 4, v(tA)))
        a(valu("v_lshlrev_b32", v(tA), 4, v(tq)))
        a(valu("v_add_u32", v(VXRQ), XOFF, v(tA)))
        a(valu("v_lshl_add_u32", v(tA), v(th), 9, v(VXRQ)))
        a(valu("v_lshrrev_b32", v(tB), 3, v(tq)))
        a(valu("v_xor_b32", v(tB), s(SWW), v(tB)))
        a(valu("v_lshl_add_u32", v(VXW), v(tB), 2, v(tA)))
        a(salu("s_mov_b32", s(SMASK), -1))
        a(salu("s_mov_b32", s(SMASK + 1), 0))
    a(salu("s_lshl_b32", s(ST2), s(SWW), 12))
    a(salu("s_add_u32", s(ST2), s(ST2), POFF))
    a(valu("v_lshlrev_b32", v(tA), 4, v(VL)))
    a(valu("v_add_u32", v(VPW), s(ST2), v(tA)))
    p.extend(code_base("qk"))
    a(valu("v_lshlrev_b32", v(254), 6, v(VL)))
    a(salu("s_mov_b32", s(SC), hex(f32bits(C_SCALE))))
    a(salu("s_mov_b32", s(SQRD), 0))
    a(salu("s_mov_b32", s(STICK), 0))

    def kfrags(j):
        u, dq = j >> 2, j & 3
        if S16:
            for aa in range(2):
                for b in range(2):
                    a(ds_read("ds_read_b128", AF + 4 * (8 * (2 * u + aa) + 2 * dq + b), 4, vKA + b,
                              (j & 3) * 4096 + 2048 * aa))
        else:
            for k in range(4):
                a(ds_read("ds_read_b128", AF + 4 * (16 * u + 4 * dq + k), 4, vKA + k, (j & 3) * 4096))

    for j in range(4):
        a(waitcnt(vm=16))
        kfrags(j)
        a(waitcnt(lgkm=0))
        kload(4 + j)
    qload(a, 1)
    qload(a, 2)
    a(valu("v_mov_b32", v(VQ), v(VQB)))
    p.extend(stamp(40))
    a(barrier())
    for j, w in zip(range(4, 8), (20, 16, 12, 8)):
        a(waitcnt(vm=w))
        kfrags(j)
    a(waitcnt(lgkm=0))
    p.extend(stamp(48))
    a(barrier())
    p.extend(stamp(49))
    p.extend(stamp(59, True))
    return p


def q_frag(f):
    f2 = f % 16
    off = (f2 & 1) * 8 * 1056 + 64 * (f2 >> 1) if S16 else 32 * f2
    return ds_read("ds_read_b128", FB + 4 * (f % NB), 4, VQ, off)


def qk_tick(par, doA=True, doB=True, prefetch=True, pub=True, keepmax=False, nin=None, keepsum=False):
    Sc, Sn = ACC[par], ACC[1 - par]
    slots = [[] for _ in range(NSL + 1)]
    pre, post = [], []
    if doB:
        X = []
        for qt in range(NQT):
            xv = (XVA, XVB)[qt]
            pre.append(ds_read("ds_read_b128", xv, 4, VXRQ, (1 - par) * 1024 + 256 * qt))
            X += [
                valu("v_max3_f32", v(T0), v(xv), v(xv + 1), v(xv + 2)),
                valu("v_max_f32", v(T0), v(T0), v(xv + 3)),
                valu("v_mul_f32", v(MC[qt]), s(SC), v(T0)),
            ]
        seq = []
        for pr in range(16):
            qt = (pr >> 3) if S16 else 0
            r0, r1 = Sc + 2 * pr, Sc + 2 * pr + 1
            g = [
                valu("v_fma_f32", v(r0), v(r0), s(SC), ("neg", v(MC[qt]))),
                valu("v_fma_f32", v(r1), v(r1), s(SC), ("neg", v(MC[qt]))),
                valu("v_exp_f32", v(r0), v(r0)),
                valu("v_exp_f32", v(r1), v(r1)),
            ]
            g2 = []
            if pr == 0 or (S16 and pr == 8):
                g2.append(valu("v_add_f32", v(LSUM[qt]), v(r0), v(r1)))
            else:
                g2.append(valu("v_add_f32", v(LSUM[qt]), v(LSUM[qt]), v(r0)))
                g2.append(valu("v_add_f32", v(LSUM[qt]), v(LSUM[qt]), v(r1)))
            g2.append(valu("v_cvt_pk_bf16_f32", v(PK + pr % 8), v(r0), v(r1)))
            if pr % 4 == 3:
                gi = pr >> 2
                fi = (2 * (gi & 1) + (gi >> 1)) if S16 else gi
                g2.append(ds_write("ds_write_b128", VPW, PK + (pr - 3) % 8, 4, par * 16384 + fi * 1024))
            seq.append((g, g2))
        flat = []
        for pr in range(16):
            flat.append(seq[pr][0][:2])
            flat.append(seq[pr][0][2:])
            if pr > 0:
                flat[-2] = flat[-2] + seq[pr - 1][1]
        flat.append(seq[15][1])
        if doA:
            nin = int(ENV("QK_IN", "8")) if nin is None else nin
            lo = NSL // 8
            slots[lo - 1] += X
            for k, grp in enumerate(flat[:nin]):
                slots[lo + k * (NSL - lo - 2) // max(nin, 1)] += grp
            post = sum(flat[nin:], [])
        else:
            post = X + sum(flat, [])
    elif pub and not keepsum:
        for qt in range(NQT):
            pre.append(valu("v_mov_b32", v(LSUM[qt]), 0))
    M = []
    if doA:
        if S16:
            for k in range(8):
                for qt in range(2):
                    b, lm = Sn + 16 * qt, LMAX[qt]
                    if k == 0:
                        M.append(valu("v_max3_f32", v(lm), v(b), v(b + 1), v(b + 2)))
                    elif k < 7:
                        M.append(valu("v_max3_f32", v(lm), v(lm), v(b + 1 + 2 * k), v(b + 2 + 2 * k)))
                    else:
                        M.append(valu("v_max_f32", v(lm), v(lm), v(b + 15)))
        else:
            lm = LMAX[0]
            M.append(valu("v_max3_f32", v(lm), v(Sn), v(Sn + 1), v(Sn + 2)))
            M.append(valu("v_max3_f32", v(T1), v(Sn + 16), v(Sn + 17), v(Sn + 18)))
            for k in range(6):
                M.append(valu("v_max3_f32", v(lm), v(lm), v(Sn + 3 + 2 * k), v(Sn + 4 + 2 * k)))
                M.append(valu("v_max3_f32", v(T1), v(T1), v(Sn + 19 + 2 * k), v(Sn + 20 + 2 * k)))
            M.append(valu("v_max3_f32", v(lm), v(lm), v(Sn + 15), v(Sn + 31)))
            M.append(valu("v_max_f32", v(lm), v(lm), v(T1)))
    elif not keepmax:
        for qt in range(NQT):
            M.append(valu("v_mov_b32", v(LMAX[qt]), 0))
    if S16:
        PUB = [
            perm32swap(LMAX[0], LMAX[1]),
            perm32swap(LSUM[0], LSUM[1]),
            valu("v_max_f32", v(LMAX[0]), v(LMAX[0]), v(LMAX[1])),
            valu("v_add_f32", v(LSUM[0]), v(LSUM[0]), v(LSUM[1])),
            perm16swap(LMAX[0], LSUM[0]),
        ]
    else:
        PUB = [perm32swap(LMAX[0], LSUM[0])]
    PUB += [
        valu("v_max_f32", v(T0), v(LMAX[0]), v(LSUM[0])),
        valu("v_add_f32", v(T1), v(LMAX[0]), v(LSUM[0])),
        valu("v_cndmask_b32", v(T0), v(T1), v(T0), s(SMASK, 2)),
        ds_write("ds_write_b32", VXW, T0, 1, par * 1024),
    ]
    QUPD = [
        salu("s_add_u32", s(SQRD), s(SQRD), QSL),
        scmp("s_cmp_eq_u32", s(SQRD), NQ * QSL),
        salu("s_cselect_b32", s(SQRD), 0, s(SQRD)),
        valu("v_add_u32", v(VQ), s(SQRD), v(VQB)),
    ]
    out = list(pre)
    if doA:
        i = 0
        for f in range(16):
            for k, (d, a_, first) in enumerate(frag_mfmas(f, Sn, 0)):
                out.append(mm(d, a_, FB + 4 * (f % NB), first))
                if k == NM - 1:
                    nf = f + LA
                    if nf == 16:
                        out += QUPD
                    if nf < 16 or prefetch:
                        out.append(q_frag(nf))
                out += slots[i]
                i += 1
    k = min(len(post), 14) if doA else 0
    out += post[:k]
    rest = post[k:]
    mi = 0
    for j, ins in enumerate(rest):
        out.append(ins)
        if j % 3 == 2 and mi < len(M):
            out.append(M[mi]); mi += 1
    out += M[mi:] + (PUB if pub else [])
    return out


def pv_addr_late(a):
    x0, x1, x2 = FB, FB + 1, FB + 2
    a(valu("v_lshrrev_b32", v(x0), 3, v(VL)))
    a(valu("v_and_b32", v(x1), 7, v(VL)))
    a(valu("v_xor_b32", v(x1), v(x0), v(x1)))
    a(valu("v_lshlrev_b32", v(x1), 4, v(x1)))
    a(valu("v_lshl_add_u32", v(x1), v(x0), 7, v(x1)))
    a(valu("v_add_u32", v(VOR), s(ST0), v(x1)))
    if S16:
        a(valu("v_and_b32", v(x0), 15, v(VL)))
        a(valu("v_lshrrev_b32", v(x1), 4, v(VL)))
        a(valu("v_lshlrev_b32", v(x1), 1, v(x1)))
        a(valu("v_and_b32", v(x2), 7, v(x0)))
        a(valu("v_xor_b32", v(x1), v(x1), v(x2)))
        a(valu("v_lshlrev_b32", v(x1), 4, v(x1)))
        a(valu("v_lshl_add_u32", v(x1), v(x0), 7, v(x1)))
        a(valu("v_xor_b32", v(x2), 16, v(x1)))
        a(valu("v_add_u32", v(VOW[0]), s(ST0), v(x1)))
        a(valu("v_add_u32", v(VOW[1]), s(ST0), v(x2)))
    else:
        a(valu("v_and_b32", v(x0), 31, v(VL)))
        a(valu("v_lshrrev_b32", v(x1), 5, v(VL)))
        a(valu("v_lshlrev_b32", v(x1), 1, v(x1)))
        a(valu("v_and_b32", v(x2), 7, v(x0)))
        a(valu("v_xor_b32", v(x1), v(x1), v(x2)))
        a(valu("v_lshlrev_b32", v(x1), 4, v(x1)))
        a(valu("v_lshl_add_u32", v(x1), v(x0), 7, v(x1)))
        for c in range(4):
            a(valu("v_xor_b32", v(x2), 64 * (c >> 1) + 16 * (c & 1), v(x1)))
            a(valu("v_add_u32", v(VOW[c]), s(ST0), v(x2)))


def pv_X(slot, inv, xv):
    rd, va = [], []
    for qt in range(NQT):
        x = xv[qt]
        rd.append(ds_read("ds_read_b128", x, 4, VXRP, slot * 1024 + 256 * qt))
        va += [
            valu("v_add_f32", v(x), v(x), v(x + 1)),
            valu("v_add_f32", v(x + 2), v(x + 2), v(x + 3)),
            valu("v_add_f32", v(x), v(x), v(x + 2)),
            valu("v_rcp_f32", v(inv[qt]), v(x)),
        ]
    return rd, va


def pv_E(O, inv, VOW=VOW):
    E = []
    for c in range(4):
        b = O + 8 * c
        iv = inv[c >> 1] if S16 else inv[0]
        for r in range(8):
            E.append(valu("v_mul_f32", v(b + r), v(b + r), v(iv)))
        for r in range(4):
            E.append(valu("v_cvt_pk_bf16_f32", v(b + r), v(b + 2 * r), v(b + 2 * r + 1)))
        if S16:
            E.append(ds_write("ds_write_b128", VOW[c & 1], b, 4, 2048 * (c >> 1)))
        else:
            E.append(ds_write("ds_write_b128", VOW[c], b, 4))
    return E


def pv_D(O, VOR=VOR):
    hdr = [salu("s_mov_b32", s(SOE), s(SOSO)), salu("s_add_u32", s(SOSO), s(SOSO), 16384)]
    if ROT:
        hdr = [salu("s_add_u32", s(SOE), s(SOSO), s(SROT)), salu("s_and_b32", s(SOE), s(SOE), 262143),
               salu("s_add_u32", s(SOSO), s(SOSO), 16384)]
    rd = [ds_read("ds_read_b128", O + 8 * n + 4, 4, VOR, 1024 * n) for n in range(4)]
    st = []
    for n in range(4):
        g = [buf_store(O + 8 * n + 4, VOS, SRD_O, s(SOE), STM_STATE["m"])]
        if n < 3:
            g.append(salu("s_add_u32", s(SOE), s(SOE), 4096))
        st.append(g)
    return hdr, rd, st


def pv_ED(O, inv):
    hdr, rd, st = pv_D(O)
    return pv_E(O, inv) + hdr + rd + sum(st, [])


def pv_prologue():
    p = []
    a = p.append
    DG["v"] = 243
    vVD, vB0, vB1, vT0, vT1, vP2 = VOR, VOW[0], VOW[1], XV, XV + 1, XV + 2
    inv0 = INV[0]
    p.extend(code_base("pv"))
    a(valu("v_lshlrev_b32", v(AF + 125), 6, v(VL)))
    p.extend(code_touch(0, CODE["size"], AF + 126, AF + 127, AF + 125))
    srd(a, SRD_A, SPTR + 4, ST1, 131072)
    srd(a, SRD_O, SPTR + 6, ST0, 0)
    a(salu("s_lshl_b32", s(ST2), s(SWW), 7))
    a(valu("v_lshrrev_b32", v(tA), 3, v(VL)))
    a(valu("v_and_b32", v(tB), 7, v(VL)))
    a(valu("v_lshlrev_b32", v(tC), 9, v(tA)))
    a(valu("v_lshl_add_u32", v(tC), v(tB), 4, v(tC)))
    a(valu("v_add_u32", v(VOS), s(ST2), v(tC)))
    a(valu("v_bfe_u32", v(tC), v(VL), 4, 1))
    a(valu("v_lshlrev_b32", v(tC), 4 if S16 else 6, v(tC)))
    a(valu("v_xor_b32", v(vVD), v(tC), v(VOS)))
    a(salu("s_lshl_b32", s(ST0), s(SWW), 12))
    a(salu("s_add_u32", s(ST0), s(ST0), OOFF))
    a(valu("v_lshlrev_b32", v(tA), 4, v(VL)))
    a(valu("v_add_u32", v(VPR), POFF, v(tA)))
    a(valu("v_add_u32", v(vP2), P2OFF, v(tA)))
    a(valu("v_and_b32", v(tA), 15 if S16 else 31, v(VL)))
    a(valu("v_lshlrev_b32", v(tA), 4, v(tA)))
    a(valu("v_add_u32", v(VXRP), XOFF + 512, v(tA)))
    if S16:
        a(valu("v_lshrrev_b32", v(tA), 2, v(VL)))
        a(valu("v_lshlrev_b32", v(tA), 7, v(tA)))
        a(valu("v_and_b32", v(tB), 3, v(VL)))
        a(valu("v_lshl_add_u32", v(tA), v(tB), 5, v(tA)))
        a(valu("v_bfe_u32", v(tB), v(VL), 3, 1))
        a(valu("v_lshl_add_u32", v(vB0), v(tB), 4, v(tA)))
        a(valu("v_xor_b32", v(vB1), 16, v(vB0)))
    else:
        a(valu("v_bfe_u32", v(tA), v(VL), 2, 2))
        a(valu("v_lshl_add_u32", v(tA), v(th), 2, v(tA)))
        a(valu("v_lshlrev_b32", v(tA), 7, v(tA)))
        a(valu("v_bfe_u32", v(tB), v(VL), 3, 1))
        a(valu("v_lshl_add_u32", v(tA), v(tB), 6, v(tA)))
        a(valu("v_and_b32", v(tB), 1, v(VL)))
        a(valu("v_lshl_add_u32", v(tA), v(tB), 5, v(tA)))
        a(valu("v_bfe_u32", v(tB), v(VL), 4, 1))
        a(valu("v_lshl_add_u32", v(tA), v(tB), 4, v(tA)))
        a(valu("v_bfe_u32", v(tB), v(VL), 1, 1))
        a(valu("v_lshl_add_u32", v(vB0), v(tB), 3, v(tA)))
        a(valu("v_xor_b32", v(vB1), 64, v(vB0)))
    a(salu("s_mov_b32", s(SQSO), 10 * 16384))
    a(salu("s_add_u32", s(SQM0), s(SQB), 4 * QSL))
    a(salu("s_add_u32", s(SQLIM), s(SQB), NQ * QSL))
    a(salu("s_mov_b32", s(SOSO), 0))
    a(salu("s_mov_b32", s(STICK), 5))
    VLOC = {0: 3, 1: 4, 2: 5, 3: "o", 4: 0, 5: 2, 6: "o", 7: 0}

    def vdest(j):
        loc = VLOC[j]
        return (ST0, 0) if loc == "o" else (SQB, loc * QSL)

    def vload(j):
        sb, off = vdest(j)
        for n in range(4):
            a(salu("s_add_u32", "m0", s(sb), off + n * 1024))
            a(salu("s_mov_b32", s(ST2), (32 * j + 8 * n) * 512))
            a(buf_lds(vVD, SRD_A, s(ST2), LD_MODS))

    accs = [ACC2, ACC[1], ACC[0]]
    inited = set()

    def vfrag(j):
        sb, off = vdest(j)
        a(salu("s_add_u32", s(ST3), s(sb), off))
        a(valu("v_add_u32", v(vT0), s(ST3), v(vB0)))
        a(valu("v_add_u32", v(vT1), s(ST3), v(vB1)))
        if S16:
            for dt in range(4):
                for aa in range(2):
                    a(ds_read("ds_read_b64_tr_b16", AF + 4 * (8 * dt + j) + 2 * aa, 2, (vT0, vT1)[dt >> 1],
                              16 * aa * 128 + 8 * (dt & 1)))
        else:
            for b in range(2):
                for dt in range(2):
                    for aa in range(2):
                        a(ds_read("ds_read_b64_tr_b16", AF + 4 * (16 * dt + 2 * j + b) + 2 * aa, 2, (vT0, vT1)[dt],
                                  (16 * b + 8 * aa) * 128))
        a(waitcnt(lgkm=0))
        p.extend(stamp(41 + j))

    def vmm(j):
        def pf(blk, b):
            buf = FB + 4 * ((2 * blk + b) % 4)
            if blk < 2:
                return ds_read("ds_read_b128", buf, 4, VPR, blk * 16384 + (2 * j + b) * 1024)
            return ds_read("ds_read_b128", buf, 4, vP2, (2 * j + b) * 1024)

        for blk in range(2):
            for b in range(2):
                a(pf(blk, b))
        for blk in range(3):
            for b in range(2):
                buf = FB + 4 * ((2 * blk + b) % 4)
                for (d, a_, _) in frag_mfmas(2 * j + b, accs[blk], 0):
                    a(mm(d, a_, buf, d not in inited))
                    inited.add(d)
                if blk == 0:
                    a(pf(2, b))

    def dummy_st():
        for _ in range(4):
            a(buf_store(AF, VOS, SRD_O, 0))

    p.extend(stamp(51))
    a(raw(f"s_setprio {ENV('PV_PRIO', '0')}", "salu"))
    a(barrier())
    vload(0); vload(1)
    a(barrier())
    p.extend(stamp(49))
    p.extend(stamp(59, True))
    vload(2); vload(3)
    a(barrier())
    vload(4)
    a(waitcnt(vm=16)); vfrag(0); qload(a, 3)
    a(barrier())
    rd, va = pv_X(0, inv0, [FB, FB + 4])
    p.extend(rd + va)
    a(waitcnt(vm=16)); vfrag(1); qload(a, 4)
    a(barrier())
    vload(5)
    rd, va = pv_X(1, INV[1], [FB, FB + 4])
    p.extend(rd + va)
    a(waitcnt(vm=20)); vfrag(2)
    a(barrier())
    a(waitcnt(vm=16)); vfrag(3); vload(6)
    vmm(0); vmm(1)
    a(waitcnt(vm=16)); vfrag(4); vload(7); qload(a, 5)
    vmm(2)
    a(waitcnt(vm=20))
    a(barrier())
    vmm(3); vmm(4)
    a(waitcnt(vm=16))
    a(barrier())
    qload(a, 9)
    a(waitcnt(vm=16)); vfrag(5); qload(a, 8); vmm(5)
    a(waitcnt(vm=16)); vfrag(6); vmm(6)
    a(waitcnt(vm=12)); vfrag(7); qload(a, 6); vmm(7)
    a(waitcnt(vm=12))
    a(barrier())
    p.extend(stamp(52))
    pv_addr_late(a)
    W2 = [FB + 4 + c for c in range(len(VOW))]
    R2 = FB + 8
    for c in range(len(VOW)):
        a(valu("v_subrev_u32", v(W2[c]), OOFF - POFF, v(VOW[c])))
    a(valu("v_subrev_u32", v(R2), OOFF - POFF, v(VOR)))
    E0 = pv_E(ACC2, inv0)
    E1 = pv_E(ACC[1], INV[1], W2)
    h0, r0, s0 = pv_D(ACC2)
    h1, r1, s1 = pv_D(ACC[1], R2)
    qload(a, 7)
    p.extend(E0 + r0)
    p.extend(E1 + r1)
    rd, va = pv_X(0, INV[0], [FB + 12, FB + 0])
    p.extend(rd + va)
    p.extend(stamp(56))
    a(waitcnt(lgkm=0))
    a(barrier())
    a(salu("s_mov_b32", s(SRD_O + 2), 262144))
    p.extend(h0 + sum(s0, []) + h1 + sum(s1, []))
    if DIAG:
        a(valu("v_mov_b32", v(238), v(DG["v"])))
        DG["v"] = 238
    p.extend(stamp(3) + stamp(23, True))
    return p


def pv_tick(par, mode=None, noq=False):
    Oc = ACC[1 - par]
    slots = [[] for _ in range(NSL + 1)]

    def p_frag(m):
        return ds_read("ds_read_b128", FB + 4 * (m % NB), 4, VPR, (1 - par) * 16384 + m * 1024)

    xrd, X = pv_X(1 - par, INV[1 - par], [XV, 224])
    pre = [p_frag(m) for m in range(LA)] + xrd
    E = pv_E(ACC[par], INV[par])
    hdr, rd, st = pv_D(ACC[par])
    qd, ql, qu = [], [[], [], [], []], []
    if not noq:
        qd = [
            scmp("s_cmp_lt_u32", s(SQSO), 262144),
            salu("s_cselect_b32", s(SRD_Q + 2), 262144, 0),
            salu("s_cselect_b32", s(SQE), s(SQSO), 0),
            salu("s_add_u32", s(SQSO), s(SQSO), 16384),
        ]
        if ROT:
            qd += [salu("s_add_u32", s(SQE), s(SQE), s(SROT)), salu("s_and_b32", s(SQE), s(SQE), 262143)]
        ql = []
        for n in range(4):
            g = [salu("s_add_u32", "m0", s(SQM0), n * 1056)]
            g.append(salu("s_add_u32", s(SQE), s(SQE), 1024) if n else nop(1))
            g.append(buf_lds(VQD, SRD_Q, s(SQE), LD_MODS))
            ql.append(g)
        qu = [
            salu("s_add_u32", s(SQM0), s(SQM0), QSL),
            scmp("s_cmp_eq_u32", s(SQM0), s(SQLIM)),
            salu("s_cselect_b32", s(SQM0), s(SQB), s(SQM0)),
        ]
    mode = mode or ENV("PV_MODE", "1")
    u = NSL // 32
    if mode == "0":
        pre += E[:13] + qd
        rest = E[13:]
        for k, ins in enumerate(rest):
            slots[k * 13 * u // len(rest)].append(ins)
        for n in range(4):
            slots[(1 + 3 * n) * u] += ql[n]
        slots[11 * u] += qu
        slots[13 * u] += X
        slots[14 * u] += rd[:2]
        slots[15 * u] += rd[2:] + hdr
        for n in range(4):
            slots[(18 + 3 * n) * u] += st[n]
    else:
        pre += qd
        for c in range(4):
            pre += E[13 * c:13 * c + 13] + ql[c]
        pre += qu + rd + X + hdr + sum(st, [])
    out = list(pre)
    i = 0
    for f in range(16):
        for k, (d, a_, first) in enumerate(frag_mfmas(f, Oc, 0)):
            out.append(mm(d, a_, FB + 4 * (f % NB), first))
            if k == NM - 1 and f + LA < 16:
                out.append(p_frag(f + LA))
            out += slots[i]
            i += 1
    return out


def pv_last():
    Oc = ACC[1]
    seq = []
    if S16:
        for qt in range(2):
            for U in range(8):
                seq.append((2 * U + qt, frag_mfmas(2 * U + qt, Oc, 0)))
    else:
        for dt in range(2):
            for m in range(16):
                seq.append((m, [frag_mfmas(m, Oc, 0)[dt]]))
    n = len(seq)

    def p_frag(k):
        return ds_read("ds_read_b128", FB + 4 * (k % NB), 4, VPR, 16384 + seq[k][0] * 1024)

    L2 = 5 if S16 else 7
    xrd, X = pv_X(1, INV[1], [XV, 224])
    pre = [p_frag(k) for k in range(L2)] + xrd
    E14 = pv_E(ACC[0], INV[0])
    hdr, rd, st = pv_D(ACC[0])
    E15 = pv_E(Oc, INV[1])
    hdr2, rd2, st2 = pv_D(Oc)
    slots = [[] for _ in range(33)]
    pre += E14[:13]
    rest = E14[13:]
    for k, ins in enumerate(rest):
        slots[k * 9 // len(rest)].append(ins)
    slots[9] += X + hdr
    slots[10] += rd
    for k in range(4):
        slots[13 + 2 * k] += st[k]
    h = E15[:26]
    for k, ins in enumerate(h):
        slots[21 + k * 10 // len(h)].append(ins)
    out = list(pre)
    cnt = 0
    per = NSL // 32
    for k, (f, ms) in enumerate(seq):
        for j, (d, a_, first) in enumerate(ms):
            out.append(mm(d, a_, FB + 4 * (k % NB), first))
            if j == len(ms) - 1 and k + L2 < n:
                out.append(p_frag(k + L2))
            cnt += 1
            if cnt % per == 0:
                out += slots[cnt // per - 1]
    out += E15[26:] + hdr2 + rd2 + sum(st2, [])
    return out


def finalize(seq, q0=None, hist=None):
    s1, q = insert_lgkm_waits(seq, q0)
    return pad_hazards(s1, hist), q


def build():
    T = []
    head, _ = finalize(common_head())
    T.append(render(head))
    inc = [salu("s_add_u32", s(STICK), s(STICK), 1)]

    pro = qk_prologue() + [q_frag(f) for f in range(LA)]
    NE = int(ENV("QK_EARLY_IN", "33"))
    pf = [waitcnt(lgkm=0)] + [q_frag(f) for f in range(LA)]
    np_ = dict(prefetch=False)
    early = qk_tick(1, doB=False, **np_) + [waitcnt(vm=4), barrier()] + tick_stamps() + inc + pf
    early += qk_tick(0, nin=NE, **np_) + [waitcnt(vm=0), barrier()] + tick_stamps() + inc + pf
    early += qk_tick(1, nin=NE, **np_) + [barrier()] + tick_stamps() + inc
    early += [valu("v_subrev_u32", v(VPW), POFF - P2OFF, v(VPW))]
    early += qk_tick(0, doA=False, pub=False, keepmax=True) + [barrier(), barrier()] + pf
    early += [valu("v_add_u32", v(VPW), POFF - P2OFF, v(VPW))]
    early += qk_tick(0, doB=False, keepsum=True, **np_) + [barrier()] + tick_stamps() + inc + pf
    early += qk_tick(1, doB=False, pub=False, **np_) + [barrier()]
    early += qk_tick(1, doA=False, keepmax=True) + [barrier()] + tick_stamps() + pf + inc
    pro, q = finalize(pro + early, None, head[-30:])
    T.append(render(pro))
    b0 = qk_tick(0) + [barrier()] + tick_stamps()
    touch = code_touch(CODE["qk_tail"], CODE["pv"], 237, 248, 254) + code_touch(CODE["pv_tail"], CODE["size"], 237, 248, 254)
    b1 = qk_tick(1) + touch + [barrier()] + tick_stamps()
    body_a, qa = insert_lgkm_waits(b0, q)
    body_b, qb = insert_lgkm_waits(b1, qa)
    tb, t0 = [i.text for i in qb], [i.text for i in q]
    assert DIAG or t0[len(t0) - len(tb):] == tb, (t0, tb)
    mid = [scmp("s_cmp_eq_u32", s(STICK), 15), raw("s_cbranch_scc1 L_qk_tail", "branch"),
           scmp("s_cmp_lg_u32", s(STICK), 5), raw("s_cbranch_scc1 L_qk_r0", "branch")] + pf + \
        [waitcnt(lgkm=0), label("L_qk_r0")] + inc
    end = inc + [raw("s_branch L_qk_loop", "branch")]
    loop = body_a + mid + body_b + end
    h1 = pad_hazards(loop, pro[-40:])
    h2 = pad_hazards(h1, h1[-40:])
    assert len(h1) == len(h2)
    T.append(".p2align 6\nL_qk_loop:\n" + render(h1))
    tail = inc + [raw("s_setprio 0", "salu")] + qk_tick(1, doA=False, doB=True) + [barrier()] + tick_stamps() + diag_end()
    tail, _ = finalize(tail, qa, [])
    T.append("L_qk_tail:\n    s_nop 7\n    s_nop 7\n" + render(tail) + "\n    s_endpgm")

    STM_STATE["m"] = ENV("ST_LOOP", ST_MODS)
    pp, q = finalize(pv_prologue(), None, head[-30:])
    assert len(q) == 0 or DIAG
    T.append("L_pv:\n" + render(pp))
    def vmw(k):
        return [waitcnt(vm=28), scmp("s_cmp_gt_u32", s(STICK), 5), raw(f"s_cbranch_scc1 L_pv_w{k}", "branch"),
                waitcnt(vm=16), label(f"L_pv_w{k}")]

    c0 = pv_tick(0) + vmw(0) + [barrier()] + tick_stamps() + inc
    c1 = pv_tick(1) + vmw(1) + [barrier()] + tick_stamps() + inc
    l0, q1 = insert_lgkm_waits(c0, [])
    l1, q2 = insert_lgkm_waits(c1, q1)
    assert len(q1) == 0 and len(q2) == 0
    loop = l0 + [scmp("s_cmp_eq_u32", s(STICK), 16), raw("s_cbranch_scc1 L_pv_tail", "branch")] + l1 + \
        [raw("s_branch L_pv_loop", "branch")]
    h1 = pad_hazards(loop, pp[-40:])
    h2 = pad_hazards(h1, h1[-40:])
    assert len(h1) == len(h2)
    T.append(".p2align 6\nL_pv_loop:\n" + render(h1))
    STM_STATE["m"] = ENV("ST_TAIL", ST_MODS)
    fin = stamp(58) + stamp(57, True) + [raw("s_setprio 2", "salu")] + pv_tick(1, "0", noq=True) + [barrier()] + \
        tick_stamps() + inc + pv_last() + diag_end()
    fin, _ = finalize(fin, [], [])
    T.append("L_pv_tail:\n    s_nop 7\n    s_nop 7\n" + render(fin))
    return "\n".join(T)


HEADER = """; Kernarg layout for this problem (48 bytes, ptrs only, base s[0:1]):
; @launch grid=(256,1,1) block=(512,1,1) lds={lds}
.amdgcn_target "amdgcn-amd-amdhsa--gfx950"
.text
.globl {name}_kernel
.p2align 8
.type {name}_kernel,@function
{name}_kernel:
"""

FOOTER = """
L_end:
    s_endpgm
.section .rodata,"a"
.p2align 6
.amdhsa_kernel {name}_kernel
  .amdhsa_next_free_vgpr 256
  .amdhsa_next_free_sgpr 64
  .amdhsa_accum_offset 256
  .amdhsa_group_segment_fixed_size 0
  .amdhsa_kernarg_size 48
  .amdhsa_user_sgpr_count 2
  .amdhsa_user_sgpr_kernarg_segment_ptr 1
  .amdhsa_system_sgpr_workgroup_id_x 1
.end_amdhsa_kernel
"""


def assemble_sizes(path):
    import subprocess
    subprocess.run(["clang", "-x", "assembler", "-target", "amdgcn-amd-amdhsa", "-mcpu=gfx950",
                    "-c", path, "-o", path + ".o"], check=True)
    out = subprocess.run(["llvm-objdump", "-t", path + ".o"], capture_output=True, text=True).stdout
    sym = {}
    for line in out.splitlines():
        f = line.split()
        if len(f) >= 5 and f[-1].startswith("L_"):
            sym[f[-1]] = int(f[0], 16)
    os.remove(path + ".o")
    return sym


def main():
    out = sys.argv[1] if len(sys.argv) > 1 else f"cdna_kernels/{NAME}.s"
    prev = None
    for it in range(6):
        txt = HEADER.format(name=NAME, lds=LDS_BYTES) + build() + FOOTER.format(name=NAME)
        open(out, "w").write(txt)
        sym = assemble_sizes(out)
        cur = dict(size=sym["L_end"] + 4, qk_tail=sym["L_qk_tail"], pv=sym["L_pv"], pv_tail=sym["L_pv_tail"])
        if cur == prev:
            break
        prev = cur
        CODE.update(cur)
    else:
        raise RuntimeError("code size did not converge")
    print(f"wrote {out}: {txt.count(chr(10))} lines, code {cur}")


if __name__ == "__main__":
    main()
```

```python
import struct
import sys
import os

sys.path.insert(0, os.path.dirname(__file__))
from asmlib import *

NAME = "standalone__gqa_softmax__near_ridge"
ENV = os.environ.get
SH = int(ENV("SH", "16"))
S16 = SH == 16
NQT = 2 if S16 else 1

QSL = 16896
NQ = 6
POFF = NQ * QSL
OOFF = POFF + 32768
XOFF = OOFF + 16384
LDS_BYTES = XOFF + 2048
KS = 5 * QSL
P2OFF = QSL
assert KS + 65536 <= XOFF and LDS_BYTES <= 163840

AF = 0
ACC = [128, 160]
FB = 192
NB = 8
VL = 255
PK = 224
XVA, XVB = 232, 224
MC, LSUM, LMAX = [240, 241], [242, 243], [244, 245]
T0, T1 = 246, 247
VQ, VQB, VPW, VXW, VXRQ = 249, 250, 251, 252, 253
ACC2 = 208
XV = 240
if S16:
    INV = [[244, 245], [246, 247]]
    VOW = [248, 254]
else:
    INV = [[244], [245]]
    VOW = [246, 247, 248, 254]
VQD, VPR, VXRP, VOR, VOS = 249, 250, 251, 252, 253

DIAG = int(ENV("DIAG", "0"))
DG = {"v": 238, "t": 239}

SRD_A, SRD_Q, SRD_O = 4, 8, 12
SPTR = 20
SW, SWW = 28, 29
SQSO, SQM0, SQRD, SOSO, STICK, SC, ST0, ST1, ST2 = 30, 31, 32, 33, 34, 35, 36, 37, 38
SMASK = 40
SQE, SOE, SQB, SQLIM = 42, 43, 44, 45
STM = 46
SRD_W = 48
SDL = 52
ST3 = 53
SROT = 54
SQP, SOP = 55, 58

C_SCALE = 1.4426950408889634 / 16.0
LD_MODS = ENV("LD_MODS", " nt")
ST_MODS = ENV("ST_MODS", " nt")
STM_STATE = {"m": ST_MODS}
LA = int(ENV("LA", "5"))
ROT = int(ENV("ROT", "0"))
THR = int(ENV("THR", "0"))
_thr = [0]


def throttle(a):
    if not THR:
        return
    _thr[0] += 1
    a(raw(f"s_cbranch_vccz L_thr{_thr[0]}", "branch"))
    a(raw(f"s_waitcnt vmcnt({THR})", "wait0"))
    a(label(f"L_thr{_thr[0]}"))

NM = 4 if S16 else 2
NSL = 16 * NM


def f32bits(x):
    return struct.unpack("<I", struct.pack("<f", x))[0]


def stamp(lane, real=False):
    if not DIAG:
        return []
    vd, vt = DG["v"], DG["t"]
    op = "s_memrealtime" if real else "s_memtime"
    o = [raw(f"{op} {sr(STM, 2)}", "smem", wr=S(STM, 2)), waitcnt(lgkm=0)]
    if isinstance(lane, int):
        o.append(I(f"v_writelane_b32 v{vd}, s{STM}, {lane}", "valu", S(STM), V(vd)))
    else:
        o.append(I(f"v_cmp_eq_u32 vcc, s{lane[1]}, v{VL}", "valu", V(VL), []))
        o.append(valu("v_mov_b32", v(vt), s(STM)))
        o.append(nop(2))
        o.append(I(f"v_cndmask_b32 v{vd}, v{vd}, v{vt}, vcc", "valu", V(vd) + V(vt), V(vd)))
    return o


def tick_stamps():
    if DIAG != 1:
        return []
    return stamp(s(STICK)) + [salu("s_add_u32", s(SDL), s(STICK), 20)] + stamp(s(SDL), True)


def diag_end():
    if not DIAG:
        return []
    vd, vt = DG["v"], DG["t"]
    o = stamp(62) + stamp(63, True) + [I(f"v_writelane_b32 v{vd}, s59, 39", "valu", S(59), V(vd))]
    o += [
        raw(f"s_load_dwordx2 {sr(SRD_W, 2)}, s[0:1], 40", "smem", wr=S(SRD_W, 2)),
        waitcnt(lgkm=0),
        salu("s_mov_b32", s(SRD_W + 2), 256 * 8 * 256),
        salu("s_mov_b32", s(SRD_W + 3), "0x00020000"),
        salu("s_lshl_b32", s(ST0), s(2), 3),
        salu("s_add_u32", s(ST0), s(ST0), s(SW)),
        salu("s_lshl_b32", s(ST0), s(ST0), 8),
        valu("v_lshlrev_b32", v(vt), 2, v(VL)),
        raw(f"buffer_store_dword v{vd}, v{vt}, {sr(SRD_W, 4)}, s{ST0} offen", "vmem_st", rd=V(vd) + V(vt)),
    ]
    return o


def srd(a, base, ptr, off, size):
    a(salu("s_add_u32", s(base), s(ptr), s(off)))
    a(salu("s_addc_u32", s(base + 1), s(ptr + 1), 0))
    a(salu("s_and_b32", s(base + 1), s(base + 1), "0xffff"))
    a(salu("s_mov_b32", s(base + 2), size))
    a(salu("s_mov_b32", s(base + 3), "0x00020000"))


def mm(d, a_, b_, first):
    return (mfma16 if S16 else mfma)(d, a_, b_, None if first else d)


def frag_mfmas(f, acc, buf):
    if S16:
        kstep, qt = f >> 1, f & 1
        return [(acc + 16 * qt + 4 * t, AF + 4 * (8 * t + kstep), kstep == 0) for t in range(4)]
    return [(acc + 16 * t, AF + 4 * (16 * t + f), f == 0) for t in range(2)]


tq, th, tA, tB, tC, tc16, tg = 128, 129, 130, 131, 132, 140, 141


def common_head():
    p = []
    a = p.append
    a(scmp("s_cmp_ge_u32", s(2), 256))
    a(raw("s_cbranch_scc1 L_end", "branch"))
    if THR:
        a(raw("s_getreg_b32 s3, hwreg(HW_REG_XCC_ID, 0, 4)", "salu", wr=S(3)))
        a(salu("s_and_b32", s(3), s(3), 1))
        a(salu("s_xor_b32", s(3), s(3), 1 - int(ENV("THR_PAR", "0"))))
        a(raw("s_mov_b32 vcc_lo, s3", "salu", rd=S(3)))
        a(raw("s_mov_b32 vcc_hi, 0", "salu"))
    if DIAG:
        a(raw("s_getreg_b32 s59, hwreg(HW_REG_XCC_ID, 0, 4)", "salu", wr=S(59)))
    a(salu("s_and_b32", s(3), s(2), 7))
    a(salu("s_lshl_b32", s(3), s(3), 5))
    a(salu("s_lshr_b32", s(2), s(2), 3))
    a(salu("s_add_u32", s(2), s(2), s(3)))
    if DIAG:
        DG["v"] = 243
        a(valu("v_mov_b32", v(DG["v"]), 0))
        p.extend(stamp(60, True))
        p.extend(stamp(61))
    a(raw(f"s_load_dwordx4 {sr(SPTR, 4)}, s[0:1], 0", "smem", wr=S(SPTR, 4)))
    a(raw(f"s_load_dwordx4 {sr(SPTR + 4, 4)}, s[0:1], 16", "smem", wr=S(SPTR + 4, 4)))
    a(valu("v_and_b32", v(VL), 63, v(0)))
    a(valu("v_lshrrev_b32", v(tA), 6, v(0)))
    a(rfl(SW, tA))
    a(valu("v_and_b32", v(tq), 31, v(VL)))
    a(valu("v_lshrrev_b32", v(th), 5, v(VL)))
    a(salu("s_and_b32", s(SWW), s(SW), 3))
    a(salu("s_lshl_b32", s(ST0), s(2), 18))
    a(salu("s_lshl_b32", s(ST1), s(2), 17))
    a(salu("s_lshl_b32", s(ST2), s(SWW), 12))
    a(valu("v_xor_b32", v(tA), v(tq), v(th)))
    a(valu("v_lshlrev_b32", v(tA), 4, v(tA)))
    a(valu("v_lshl_add_u32", v(tA), v(th), 9, v(tA)))
    a(valu("v_add_u32", v(VQD), s(ST2), v(tA)))
    a(salu("s_mul_i32", s(SQB), s(SWW), 4 * 1056))
    if ROT:
        a(salu("s_mul_i32", s(SROT), s(2), ROT))
        a(salu("s_and_b32", s(SROT), s(SROT), 15))
        a(salu("s_lshl_b32", s(SROT), s(SROT), 14))
    a(raw("s_waitcnt lgkmcnt(0)", "wait0"))
    srd(a, SRD_Q, SPTR + 0, ST0, 262144)
    a(scmp("s_cmp_ge_u32", s(SW), 4))
    a(raw("s_cbranch_scc1 L_pv", "branch"))
    return p


SPC = 56
CODE = {"size": 0, "qk_tail": 0, "pv": 0, "pv_tail": 0}


def code_base(tag):
    return [
        raw(f"s_getpc_b64 {sr(SPC, 2)}", "salu", wr=S(SPC, 2)),
        label(f"L_pc_{tag}"),
        raw(f"s_sub_u32 s{SPC}, s{SPC}, L_pc_{tag}-{NAME}_kernel", "salu", rd=S(SPC), wr=S(SPC)),
        raw(f"s_subb_u32 s{SPC + 1}, s{SPC + 1}, 0", "salu", rd=S(SPC + 1), wr=S(SPC + 1)),
    ]


def code_touch(lo, hi, vaddr, vdst, vl64):
    o = []
    if not int(ENV("CPF", "0")) or hi <= lo:
        return o
    lo &= ~63
    while lo < hi:
        o.append(valu("v_add_u32", v(vaddr), lo, v(vl64)))
        if lo + 4096 > hi:
            o.append(valu("v_min_u32", v(vaddr), (hi - 4) & ~3, v(vaddr)))
        o.append(raw(f"global_load_dword v{vdst}, v{vaddr}, {sr(SPC, 2)}", "vmem_ld", rd=V(vaddr) + S(SPC, 2), wr=[]))
        lo += 4096
    return o


def qload(a, blk):
    throttle(a)
    if ROT:
        a(salu("s_add_u32", s(SQP), s(SROT), blk * 16384))
        a(salu("s_and_b32", s(SQP), s(SQP), 262143))
    for n in range(4):
        a(salu("s_add_u32", "m0", s(SQB), (blk % NQ) * QSL + n * 1056))
        if ROT:
            a(salu("s_add_u32", s(ST2), s(SQP), n * 1024))
        else:
            a(salu("s_mov_b32", s(ST2), blk * 16384 + n * 1024))
        a(buf_lds(VQD, SRD_Q, s(ST2), LD_MODS))


def qk_prologue():
    p = []
    a = p.append
    vKe, vKo, vKA = 133, 134, 136
    srd(a, SRD_A, SPTR + 2, ST1, 131072)
    a(valu("v_lshrrev_b32", v(tA), 3, v(VL)))
    a(valu("v_lshlrev_b32", v(tA), 9, v(tA)))
    a(valu("v_and_b32", v(tB), 7, v(VL)))
    a(valu("v_lshrrev_b32", v(tC), 4, v(VL)))
    a(valu("v_xor_b32", v(tB), v(tB), v(tC)))
    a(valu("v_lshl_add_u32", v(vKe), v(tB), 4, v(tA)))
    a(valu("v_xor_b32", v(vKo), 64, v(vKe)))
    a(salu("s_lshl_b32", s(ST0), s(SWW), 15))
    a(salu("s_lshl_b32", s(ST1), s(SWW), 14))
    a(salu("s_add_u32", s(ST1), s(ST1), KS))

    def kload(j):
        u, dq = j >> 2, j & 3
        throttle(a)
        for n in range(4):
            a(salu("s_add_u32", "m0", s(ST1), (j & 3) * 4096 + n * 1024))
            a(salu("s_add_u32", s(ST2), s(ST0), u * 16384 + n * 4096 + dq * 128))
            a(buf_lds(vKo if n & 1 else vKe, SRD_A, s(ST2), LD_MODS))

    IW = int(ENV("INITW", "4"))
    for j in range(IW):
        kload(j)
    if IW == 4:
        qload(a, 0)
    if DIAG:
        a(valu("v_mov_b32", v(238), v(DG["v"])))
        DG["v"] = 238
    p.extend(stamp(51))
    a(raw(f"s_setprio {ENV('QK_PRIO', '1')}", "salu"))
    a(valu("v_and_b32", v(tc16), 15, v(VL)))
    a(valu("v_lshrrev_b32", v(tg), 4, v(VL)))
    if S16:
        a(valu("v_lshrrev_b32", v(tA), 1, v(tc16)))
        a(valu("v_xor_b32", v(tA), v(tA), v(tg)))
        a(valu("v_lshlrev_b32", v(tA), 4, v(tA)))
        a(valu("v_lshl_add_u32", v(tA), v(tc16), 7, v(tA)))
        a(valu("v_xor_b32", v(tB), 64, v(tA)))
        a(valu("v_add_u32", v(vKA), s(ST1), v(tA)))
        a(valu("v_add_u32", v(vKA + 1), s(ST1), v(tB)))
        a(valu("v_lshrrev_b32", v(tA), 1, v(tc16)))
        a(valu("v_mul_u32_u24", v(tA), 1056, v(tA)))
        a(valu("v_and_b32", v(tB), 1, v(tc16)))
        a(valu("v_lshl_add_u32", v(tA), v(tB), 9, v(tA)))
        a(valu("v_xor_b32", v(tB), v(tB), v(tg)))
        a(valu("v_lshl_add_u32", v(VQB), v(tB), 4, v(tA)))
        a(valu("v_lshlrev_b32", v(tA), 4, v(tc16)))
        a(valu("v_add_u32", v(VXRQ), XOFF, v(tA)))
        a(valu("v_and_b32", v(tB), 1, v(tg)))
        a(valu("v_lshl_add_u32", v(tA), v(tB), 9, v(VXRQ)))
        a(valu("v_lshl_add_u32", v(tA), v(th), 8, v(tA)))
        a(valu("v_lshlrev_b32", v(tB), 1, v(tB)))
        a(valu("v_lshrrev_b32", v(tC), 3, v(tc16)))
        a(valu("v_xor_b32", v(tB), v(tB), v(tC)))
        a(valu("v_xor_b32", v(tB), s(SWW), v(tB)))
        a(valu("v_lshl_add_u32", v(VXW), v(tB), 2, v(tA)))
        a(salu("s_mov_b32", s(SMASK), "0x0000ffff"))
        a(salu("s_mov_b32", s(SMASK + 1), "0x0000ffff"))
    else:
        a(valu("v_bfe_u32", v(tA), v(tq), 1, 3))
        a(valu("v_xor_b32", v(tA), v(tA), v(th)))
        a(valu("v_lshlrev_b32", v(tA), 4, v(tA)))
        a(valu("v_lshl_add_u32", v(tA), v(tq), 7, v(tA)))
        for k in range(4):
            a(valu("v_xor_b32", v(tB), 32 * k, v(tA)))
            a(valu("v_add_u32", v(vKA + k), s(ST1), v(tB)))
        a(valu("v_lshrrev_b32", v(tA), 1, v(tq)))
        a(valu("v_mul_u32_u24", v(tA), 1056, v(tA)))
        a(valu("v_and_b32", v(tB), 1, v(tq)))
        a(valu("v_lshl_add_u32", v(tA), v(tB), 9, v(tA)))
        a(valu("v_xor_b32", v(tB), v(tB), v(th)))
        a(valu("v_lshl_add_u32", v(VQB), v(tB), 4, v(tA)))
        a(valu("v_lshlrev_b32", v(tA), 4, v(tq)))
        a(valu("v_add_u32", v(VXRQ), XOFF, v(tA)))
        a(valu("v_lshl_add_u32", v(tA), v(th), 9, v(VXRQ)))
        a(valu("v_lshrrev_b32", v(tB), 3, v(tq)))
        a(valu("v_xor_b32", v(tB), s(SWW), v(tB)))
        a(valu("v_lshl_add_u32", v(VXW), v(tB), 2, v(tA)))
        a(salu("s_mov_b32", s(SMASK), -1))
        a(salu("s_mov_b32", s(SMASK + 1), 0))
    a(salu("s_lshl_b32", s(ST2), s(SWW), 12))
    a(salu("s_add_u32", s(ST2), s(ST2), POFF))
    a(valu("v_lshlrev_b32", v(tA), 4, v(VL)))
    a(valu("v_add_u32", v(VPW), s(ST2), v(tA)))
    p.extend(code_base("qk"))
    a(valu("v_lshlrev_b32", v(254), 6, v(VL)))
    a(salu("s_mov_b32", s(SC), hex(f32bits(C_SCALE))))
    a(salu("s_mov_b32", s(SQRD), 0))
    a(salu("s_mov_b32", s(STICK), 0))

    def kfrags(j):
        u, dq = j >> 2, j & 3
        if S16:
            for aa in range(2):
                for b in range(2):
                    a(ds_read("ds_read_b128", AF + 4 * (8 * (2 * u + aa) + 2 * dq + b), 4, vKA + b,
                              (j & 3) * 4096 + 2048 * aa))
        else:
            for k in range(4):
                a(ds_read("ds_read_b128", AF + 4 * (16 * u + 4 * dq + k), 4, vKA + k, (j & 3) * 4096))

    for j in range(4):
        if j == 0 and IW < 4:
            a(waitcnt(vm=4 * (IW - 1)))
            for jj in range(IW, 4):
                kload(jj)
            kfrags(0)
            a(waitcnt(lgkm=0))
            kload(4)
            qload(a, 0)
            continue
        a(waitcnt(vm=16))
        kfrags(j)
        a(waitcnt(lgkm=0))
        kload(4 + j)
    qload(a, 1)
    qload(a, 2)
    a(valu("v_mov_b32", v(VQ), v(VQB)))
    p.extend(stamp(40))
    a(barrier())
    for j, w in zip(range(4, 8), (20 if IW == 4 else 24, 16, 12, 8)):
        a(waitcnt(vm=w))
        kfrags(j)
    a(waitcnt(lgkm=0))
    p.extend(stamp(48))
    a(barrier())
    p.extend(stamp(49))
    p.extend(stamp(59, True))
    return p


def q_frag(f):
    f2 = f % 16
    off = (f2 & 1) * 8 * 1056 + 64 * (f2 >> 1) if S16 else 32 * f2
    return ds_read("ds_read_b128", FB + 4 * (f % NB), 4, VQ, off)


def qk_tick(par, doA=True, doB=True, prefetch=True, pub=True, keepmax=False, nin=None, keepsum=False):
    Sc, Sn = ACC[par], ACC[1 - par]
    slots = [[] for _ in range(NSL + 1)]
    pre, post = [], []
    if doB:
        X = []
        for qt in range(NQT):
            xv = (XVA, XVB)[qt]
            pre.append(ds_read("ds_read_b128", xv, 4, VXRQ, (1 - par) * 1024 + 256 * qt))
            X += [
                valu("v_max3_f32", v(T0), v(xv), v(xv + 1), v(xv + 2)),
                valu("v_max_f32", v(T0), v(T0), v(xv + 3)),
                valu("v_mul_f32", v(MC[qt]), s(SC), v(T0)),
            ]
        seq = []
        for pr in range(16):
            qt = (pr >> 3) if S16 else 0
            r0, r1 = Sc + 2 * pr, Sc + 2 * pr + 1
            g = [
                valu("v_fma_f32", v(r0), v(r0), s(SC), ("neg", v(MC[qt]))),
                valu("v_fma_f32", v(r1), v(r1), s(SC), ("neg", v(MC[qt]))),
                valu("v_exp_f32", v(r0), v(r0)),
                valu("v_exp_f32", v(r1), v(r1)),
            ]
            g2 = []
            if pr == 0 or (S16 and pr == 8):
                g2.append(valu("v_add_f32", v(LSUM[qt]), v(r0), v(r1)))
            else:
                g2.append(valu("v_add_f32", v(LSUM[qt]), v(LSUM[qt]), v(r0)))
                g2.append(valu("v_add_f32", v(LSUM[qt]), v(LSUM[qt]), v(r1)))
            g2.append(valu("v_cvt_pk_bf16_f32", v(PK + pr % 8), v(r0), v(r1)))
            if pr % 4 == 3:
                gi = pr >> 2
                fi = (2 * (gi & 1) + (gi >> 1)) if S16 else gi
                g2.append(ds_write("ds_write_b128", VPW, PK + (pr - 3) % 8, 4, par * 16384 + fi * 1024))
            seq.append((g, g2))
        flat = []
        for pr in range(16):
            flat.append(seq[pr][0][:2])
            flat.append(seq[pr][0][2:])
            if pr > 0:
                flat[-2] = flat[-2] + seq[pr - 1][1]
        flat.append(seq[15][1])
        if doA:
            nin = int(ENV("QK_IN", "8")) if nin is None else nin
            lo = NSL // 8
            slots[lo - 1] += X
            for k, grp in enumerate(flat[:nin]):
                slots[lo + k * (NSL - lo - 2) // max(nin, 1)] += grp
            post = sum(flat[nin:], [])
        else:
            post = X + sum(flat, [])
    elif pub and not keepsum:
        for qt in range(NQT):
            pre.append(valu("v_mov_b32", v(LSUM[qt]), 0))
    M = []
    if doA:
        if S16:
            for k in range(8):
                for qt in range(2):
                    b, lm = Sn + 16 * qt, LMAX[qt]
                    if k == 0:
                        M.append(valu("v_max3_f32", v(lm), v(b), v(b + 1), v(b + 2)))
                    elif k < 7:
                        M.append(valu("v_max3_f32", v(lm), v(lm), v(b + 1 + 2 * k), v(b + 2 + 2 * k)))
                    else:
                        M.append(valu("v_max_f32", v(lm), v(lm), v(b + 15)))
        else:
            lm = LMAX[0]
            M.append(valu("v_max3_f32", v(lm), v(Sn), v(Sn + 1), v(Sn + 2)))
            M.append(valu("v_max3_f32", v(T1), v(Sn + 16), v(Sn + 17), v(Sn + 18)))
            for k in range(6):
                M.append(valu("v_max3_f32", v(lm), v(lm), v(Sn + 3 + 2 * k), v(Sn + 4 + 2 * k)))
                M.append(valu("v_max3_f32", v(T1), v(T1), v(Sn + 19 + 2 * k), v(Sn + 20 + 2 * k)))
            M.append(valu("v_max3_f32", v(lm), v(lm), v(Sn + 15), v(Sn + 31)))
            M.append(valu("v_max_f32", v(lm), v(lm), v(T1)))
    elif not keepmax:
        for qt in range(NQT):
            M.append(valu("v_mov_b32", v(LMAX[qt]), 0))
    if S16:
        PUB = [
            perm32swap(LMAX[0], LMAX[1]),
            perm32swap(LSUM[0], LSUM[1]),
            valu("v_max_f32", v(LMAX[0]), v(LMAX[0]), v(LMAX[1])),
            valu("v_add_f32", v(LSUM[0]), v(LSUM[0]), v(LSUM[1])),
            perm16swap(LMAX[0], LSUM[0]),
        ]
    else:
        PUB = [perm32swap(LMAX[0], LSUM[0])]
    PUB += [
        valu("v_max_f32", v(T0), v(LMAX[0]), v(LSUM[0])),
        valu("v_add_f32", v(T1), v(LMAX[0]), v(LSUM[0])),
        valu("v_cndmask_b32", v(T0), v(T1), v(T0), s(SMASK, 2)),
        ds_write("ds_write_b32", VXW, T0, 1, par * 1024),
    ]
    QUPD = [
        salu("s_add_u32", s(SQRD), s(SQRD), QSL),
        scmp("s_cmp_eq_u32", s(SQRD), NQ * QSL),
        salu("s_cselect_b32", s(SQRD), 0, s(SQRD)),
        valu("v_add_u32", v(VQ), s(SQRD), v(VQB)),
    ]
    out = list(pre)
    if doA:
        i = 0
        for f in range(16):
            for k, (d, a_, first) in enumerate(frag_mfmas(f, Sn, 0)):
                out.append(mm(d, a_, FB + 4 * (f % NB), first))
                if k == NM - 1:
                    nf = f + LA
                    if nf == 16:
                        out += QUPD
                    if nf < 16 or prefetch:
                        out.append(q_frag(nf))
                out += slots[i]
                i += 1
    if DIAG == 3 and doA and doB and nin == int(ENV("QK_IN", "8")):
        out = stamp(10) + out + stamp(11)
    k = min(len(post), 14) if doA else 0
    out += post[:k]
    rest = post[k:]
    mi = 0
    for j, ins in enumerate(rest):
        out.append(ins)
        if j % 3 == 2 and mi < len(M):
            out.append(M[mi]); mi += 1
    out += M[mi:] + (PUB if pub else [])
    if DIAG == 3 and doA and doB and nin == int(ENV("QK_IN", "8")):
        out += stamp(12)
    return out


def pv_addr_late(a):
    x0, x1, x2 = FB, FB + 1, FB + 2
    a(valu("v_lshrrev_b32", v(x0), 3, v(VL)))
    a(valu("v_and_b32", v(x1), 7, v(VL)))
    a(valu("v_xor_b32", v(x1), v(x0), v(x1)))
    a(valu("v_lshlrev_b32", v(x1), 4, v(x1)))
    a(valu("v_lshl_add_u32", v(x1), v(x0), 7, v(x1)))
    a(valu("v_add_u32", v(VOR), s(ST0), v(x1)))
    if S16:
        a(valu("v_and_b32", v(x0), 15, v(VL)))
        a(valu("v_lshrrev_b32", v(x1), 4, v(VL)))
        a(valu("v_lshlrev_b32", v(x1), 1, v(x1)))
        a(valu("v_and_b32", v(x2), 7, v(x0)))
        a(valu("v_xor_b32", v(x1), v(x1), v(x2)))
        a(valu("v_lshlrev_b32", v(x1), 4, v(x1)))
        a(valu("v_lshl_add_u32", v(x1), v(x0), 7, v(x1)))
        a(valu("v_xor_b32", v(x2), 16, v(x1)))
        a(valu("v_add_u32", v(VOW[0]), s(ST0), v(x1)))
        a(valu("v_add_u32", v(VOW[1]), s(ST0), v(x2)))
    else:
        a(valu("v_and_b32", v(x0), 31, v(VL)))
        a(valu("v_lshrrev_b32", v(x1), 5, v(VL)))
        a(valu("v_lshlrev_b32", v(x1), 1, v(x1)))
        a(valu("v_and_b32", v(x2), 7, v(x0)))
        a(valu("v_xor_b32", v(x1), v(x1), v(x2)))
        a(valu("v_lshlrev_b32", v(x1), 4, v(x1)))
        a(valu("v_lshl_add_u32", v(x1), v(x0), 7, v(x1)))
        for c in range(4):
            a(valu("v_xor_b32", v(x2), 64 * (c >> 1) + 16 * (c & 1), v(x1)))
            a(valu("v_add_u32", v(VOW[c]), s(ST0), v(x2)))


def pv_X(slot, inv, xv):
    rd, va = [], []
    for qt in range(NQT):
        x = xv[qt]
        rd.append(ds_read("ds_read_b128", x, 4, VXRP, slot * 1024 + 256 * qt))
        va += [
            valu("v_add_f32", v(x), v(x), v(x + 1)),
            valu("v_add_f32", v(x + 2), v(x + 2), v(x + 3)),
            valu("v_add_f32", v(x), v(x), v(x + 2)),
            valu("v_rcp_f32", v(inv[qt]), v(x)),
        ]
    return rd, va


def pv_E(O, inv, VOW=VOW):
    E = []
    for c in range(4):
        b = O + 8 * c
        iv = inv[c >> 1] if S16 else inv[0]
        for r in range(8):
            E.append(valu("v_mul_f32", v(b + r), v(b + r), v(iv)))
        for r in range(4):
            E.append(valu("v_cvt_pk_bf16_f32", v(b + r), v(b + 2 * r), v(b + 2 * r + 1)))
        if S16:
            E.append(ds_write("ds_write_b128", VOW[c & 1], b, 4, 2048 * (c >> 1)))
        else:
            E.append(ds_write("ds_write_b128", VOW[c], b, 4))
    return E


def pv_D(O, VOR=VOR):
    hdr = [salu("s_mov_b32", s(SOE), s(SOSO)), salu("s_add_u32", s(SOSO), s(SOSO), 16384)]
    if ROT:
        hdr = [salu("s_add_u32", s(SOE), s(SOSO), s(SROT)), salu("s_and_b32", s(SOE), s(SOE), 262143),
               salu("s_add_u32", s(SOSO), s(SOSO), 16384)]
    rd = [ds_read("ds_read_b128", O + 8 * n + 4, 4, VOR, 1024 * n) for n in range(4)]
    st = []
    for n in range(4):
        g = [buf_store(O + 8 * n + 4, VOS, SRD_O, s(SOE), STM_STATE["m"])]
        if n < 3:
            g.append(salu("s_add_u32", s(SOE), s(SOE), 4096))
        st.append(g)
    return hdr, rd, st


def pv_ED(O, inv):
    hdr, rd, st = pv_D(O)
    return pv_E(O, inv) + hdr + rd + sum(st, [])


def pv_prologue():
    p = []
    a = p.append
    DG["v"] = 243
    vVD, vB0, vB1, vT0, vT1, vP2 = VOR, VOW[0], VOW[1], XV, XV + 1, XV + 2
    inv0 = INV[0]
    p.extend(code_base("pv"))
    a(valu("v_lshlrev_b32", v(AF + 125), 6, v(VL)))
    p.extend(code_touch(0, CODE["size"], AF + 126, AF + 127, AF + 125))
    srd(a, SRD_A, SPTR + 4, ST1, 131072)
    srd(a, SRD_O, SPTR + 6, ST0, 0)
    a(salu("s_lshl_b32", s(ST2), s(SWW), 7))
    a(valu("v_lshrrev_b32", v(tA), 3, v(VL)))
    a(valu("v_and_b32", v(tB), 7, v(VL)))
    a(valu("v_lshlrev_b32", v(tC), 9, v(tA)))
    a(valu("v_lshl_add_u32", v(tC), v(tB), 4, v(tC)))
    a(valu("v_add_u32", v(VOS), s(ST2), v(tC)))
    a(valu("v_bfe_u32", v(tC), v(VL), 4, 1))
    a(valu("v_lshlrev_b32", v(tC), 4 if S16 else 6, v(tC)))
    a(valu("v_xor_b32", v(vVD), v(tC), v(VOS)))
    a(salu("s_lshl_b32", s(ST0), s(SWW), 12))
    a(salu("s_add_u32", s(ST0), s(ST0), OOFF))
    a(valu("v_lshlrev_b32", v(tA), 4, v(VL)))
    a(valu("v_add_u32", v(VPR), POFF, v(tA)))
    a(valu("v_add_u32", v(vP2), P2OFF, v(tA)))
    a(valu("v_and_b32", v(tA), 15 if S16 else 31, v(VL)))
    a(valu("v_lshlrev_b32", v(tA), 4, v(tA)))
    a(valu("v_add_u32", v(VXRP), XOFF + 512, v(tA)))
    if S16:
        a(valu("v_lshrrev_b32", v(tA), 2, v(VL)))
        a(valu("v_lshlrev_b32", v(tA), 7, v(tA)))
        a(valu("v_and_b32", v(tB), 3, v(VL)))
        a(valu("v_lshl_add_u32", v(tA), v(tB), 5, v(tA)))
        a(valu("v_bfe_u32", v(tB), v(VL), 3, 1))
        a(valu("v_lshl_add_u32", v(vB0), v(tB), 4, v(tA)))
        a(valu("v_xor_b32", v(vB1), 16, v(vB0)))
    else:
        a(valu("v_bfe_u32", v(tA), v(VL), 2, 2))
        a(valu("v_lshl_add_u32", v(tA), v(th), 2, v(tA)))
        a(valu("v_lshlrev_b32", v(tA), 7, v(tA)))
        a(valu("v_bfe_u32", v(tB), v(VL), 3, 1))
        a(valu("v_lshl_add_u32", v(tA), v(tB), 6, v(tA)))
        a(valu("v_and_b32", v(tB), 1, v(VL)))
        a(valu("v_lshl_add_u32", v(tA), v(tB), 5, v(tA)))
        a(valu("v_bfe_u32", v(tB), v(VL), 4, 1))
        a(valu("v_lshl_add_u32", v(tA), v(tB), 4, v(tA)))
        a(valu("v_bfe_u32", v(tB), v(VL), 1, 1))
        a(valu("v_lshl_add_u32", v(vB0), v(tB), 3, v(tA)))
        a(valu("v_xor_b32", v(vB1), 64, v(vB0)))
    a(salu("s_mov_b32", s(SQSO), 10 * 16384))
    a(salu("s_add_u32", s(SQM0), s(SQB), 4 * QSL))
    a(salu("s_add_u32", s(SQLIM), s(SQB), NQ * QSL))
    a(salu("s_mov_b32", s(SOSO), 0))
    a(salu("s_mov_b32", s(STICK), 5))
    VLOC = {0: 3, 1: 4, 2: 5, 3: "o", 4: 0, 5: 2, 6: "o", 7: 0}

    def vdest(j):
        loc = VLOC[j]
        return (ST0, 0) if loc == "o" else (SQB, loc * QSL)

    def vload(j):
        sb, off = vdest(j)
        throttle(a)
        for n in range(4):
            a(salu("s_add_u32", "m0", s(sb), off + n * 1024))
            a(salu("s_mov_b32", s(ST2), (32 * j + 8 * n) * 512))
            a(buf_lds(vVD, SRD_A, s(ST2), LD_MODS))

    accs = [ACC2, ACC[1], ACC[0]]
    inited = set()

    def vfrag(j):
        sb, off = vdest(j)
        a(salu("s_add_u32", s(ST3), s(sb), off))
        a(valu("v_add_u32", v(vT0), s(ST3), v(vB0)))
        a(valu("v_add_u32", v(vT1), s(ST3), v(vB1)))
        if S16:
            for dt in range(4):
                for aa in range(2):
                    a(ds_read("ds_read_b64_tr_b16", AF + 4 * (8 * dt + j) + 2 * aa, 2, (vT0, vT1)[dt >> 1],
                              16 * aa * 128 + 8 * (dt & 1)))
        else:
            for b in range(2):
                for dt in range(2):
                    for aa in range(2):
                        a(ds_read("ds_read_b64_tr_b16", AF + 4 * (16 * dt + 2 * j + b) + 2 * aa, 2, (vT0, vT1)[dt],
                                  (16 * b + 8 * aa) * 128))
        a(waitcnt(lgkm=0))
        p.extend(stamp(41 + j))

    def vmm(j):
        def pf(blk, b):
            buf = FB + 4 * ((2 * blk + b) % 4)
            if blk < 2:
                return ds_read("ds_read_b128", buf, 4, VPR, blk * 16384 + (2 * j + b) * 1024)
            return ds_read("ds_read_b128", buf, 4, vP2, (2 * j + b) * 1024)

        for blk in range(2):
            for b in range(2):
                a(pf(blk, b))
        for blk in range(3):
            for b in range(2):
                buf = FB + 4 * ((2 * blk + b) % 4)
                for (d, a_, _) in frag_mfmas(2 * j + b, accs[blk], 0):
                    a(mm(d, a_, buf, d not in inited))
                    inited.add(d)
                if blk == 0:
                    a(pf(2, b))

    def dummy_st():
        for _ in range(4):
            a(buf_store(AF, VOS, SRD_O, 0))

    p.extend(stamp(51))
    a(raw(f"s_setprio {ENV('PV_PRIO', '0')}", "salu"))
    a(barrier())
    vload(0); vload(1)
    a(barrier())
    p.extend(stamp(49))
    p.extend(stamp(59, True))
    vload(2); vload(3)
    a(barrier())
    vload(4)
    a(waitcnt(vm=16)); vfrag(0); qload(a, 3)
    a(barrier())
    rd, va = pv_X(0, inv0, [FB, FB + 4])
    p.extend(rd + va)
    a(waitcnt(vm=16)); vfrag(1); qload(a, 4)
    a(barrier())
    vload(5)
    rd, va = pv_X(1, INV[1], [FB, FB + 4])
    p.extend(rd + va)
    a(waitcnt(vm=20)); vfrag(2)
    a(barrier())
    a(waitcnt(vm=16)); vfrag(3); vload(6)
    vmm(0); vmm(1)
    a(waitcnt(vm=16)); vfrag(4); vload(7); qload(a, 5)
    vmm(2)
    a(waitcnt(vm=20))
    a(barrier())
    vmm(3); vmm(4)
    a(waitcnt(vm=16))
    a(barrier())
    qload(a, 9)
    a(waitcnt(vm=16)); vfrag(5); qload(a, 8); vmm(5)
    a(waitcnt(vm=16)); vfrag(6); vmm(6)
    a(waitcnt(vm=12)); vfrag(7); qload(a, 6); vmm(7)
    a(waitcnt(vm=12))
    a(barrier())
    p.extend(stamp(52))
    pv_addr_late(a)
    W2 = [FB + 4 + c for c in range(len(VOW))]
    R2 = FB + 8
    for c in range(len(VOW)):
        a(valu("v_subrev_u32", v(W2[c]), OOFF - POFF, v(VOW[c])))
    a(valu("v_subrev_u32", v(R2), OOFF - POFF, v(VOR)))
    E0 = pv_E(ACC2, inv0)
    E1 = pv_E(ACC[1], INV[1], W2)
    h0, r0, s0 = pv_D(ACC2)
    h1, r1, s1 = pv_D(ACC[1], R2)
    qload(a, 7)
    p.extend(E0 + r0)
    p.extend(E1 + r1)
    rd, va = pv_X(0, INV[0], [FB + 12, FB + 0])
    p.extend(rd + va)
    p.extend(stamp(56))
    a(waitcnt(lgkm=0))
    a(barrier())
    a(salu("s_mov_b32", s(SRD_O + 2), 262144))
    p.extend(h0 + sum(s0, []) + h1 + sum(s1, []))
    if DIAG:
        a(valu("v_mov_b32", v(238), v(DG["v"])))
        DG["v"] = 238
    p.extend(stamp(3) + stamp(23, True))
    return p


def pv_tick(par, mode=None, noq=False):
    Oc = ACC[1 - par]
    slots = [[] for _ in range(NSL + 1)]

    def p_frag(m):
        return ds_read("ds_read_b128", FB + 4 * (m % NB), 4, VPR, (1 - par) * 16384 + m * 1024)

    xrd, X = pv_X(1 - par, INV[1 - par], [XV, 224])
    pre = [p_frag(m) for m in range(LA)] + xrd
    E = pv_E(ACC[par], INV[par])
    hdr, rd, st = pv_D(ACC[par])
    qd, ql, qu = [], [[], [], [], []], []
    if not noq:
        qd = [
            scmp("s_cmp_lt_u32", s(SQSO), 262144),
            salu("s_cselect_b32", s(SRD_Q + 2), 262144, 0),
            salu("s_cselect_b32", s(SQE), s(SQSO), 0),
            salu("s_add_u32", s(SQSO), s(SQSO), 16384),
        ]
        if ROT:
            qd += [salu("s_add_u32", s(SQE), s(SQE), s(SROT)), salu("s_and_b32", s(SQE), s(SQE), 262143)]
        ql = []
        for n in range(4):
            g = [salu("s_add_u32", "m0", s(SQM0), n * 1056)]
            g.append(salu("s_add_u32", s(SQE), s(SQE), 1024) if n else nop(1))
            g.append(buf_lds(VQD, SRD_Q, s(SQE), LD_MODS))
            ql.append(g)
        qu = [
            salu("s_add_u32", s(SQM0), s(SQM0), QSL),
            scmp("s_cmp_eq_u32", s(SQM0), s(SQLIM)),
            salu("s_cselect_b32", s(SQM0), s(SQB), s(SQM0)),
        ]
    mode = mode or ENV("PV_MODE", "1")
    u = NSL // 32
    if mode == "0":
        pre += E[:13] + qd
        rest = E[13:]
        for k, ins in enumerate(rest):
            slots[k * 13 * u // len(rest)].append(ins)
        for n in range(4):
            slots[(1 + 3 * n) * u] += ql[n]
        slots[11 * u] += qu
        slots[13 * u] += X
        slots[14 * u] += rd[:2]
        slots[15 * u] += rd[2:] + hdr
        for n in range(4):
            slots[(18 + 3 * n) * u] += st[n]
    elif ENV("SKIPQ", "1") == "1" and not noq:
        lbl = f"L_pv_nq{par}"
        qd2 = [salu("s_mov_b32", s(SQE), s(SQSO)), salu("s_add_u32", s(SQSO), s(SQSO), 16384)]
        if ROT:
            qd2 += [salu("s_add_u32", s(SQE), s(SQE), s(SROT)), salu("s_and_b32", s(SQE), s(SQE), 262143)]
        pre += E[:26]
        pre += [scmp("s_cmp_gt_u32", s(STICK), 10), raw(f"s_cbranch_scc1 {lbl}", "branch")] + qd2 + sum(ql, []) + qu + [label(lbl)]
        pre += E[26:] + rd + X + hdr + sum(st, [])
    else:
        pre += qd
        for c in range(4):
            pre += E[13 * c:13 * c + 13] + ql[c]
        pre += qu + rd + X + hdr + sum(st, [])
    out = list(pre)
    if DIAG == 3 and not noq:
        out = stamp(10) + out + stamp(11)
    i = 0
    for f in range(16):
        for k, (d, a_, first) in enumerate(frag_mfmas(f, Oc, 0)):
            out.append(mm(d, a_, FB + 4 * (f % NB), first))
            if k == NM - 1 and f + LA < 16:
                out.append(p_frag(f + LA))
            out += slots[i]
            i += 1
    if DIAG == 3 and not noq:
        out += stamp(12)
    return out


def pv_last():
    Oc = ACC[1]
    seq = []
    if S16:
        for qt in range(2):
            for U in range(8):
                seq.append((2 * U + qt, frag_mfmas(2 * U + qt, Oc, 0)))
    else:
        for dt in range(2):
            for m in range(16):
                seq.append((m, [frag_mfmas(m, Oc, 0)[dt]]))
    n = len(seq)

    def p_frag(k):
        return ds_read("ds_read_b128", FB + 4 * (k % NB), 4, VPR, 16384 + seq[k][0] * 1024)

    L2 = 5 if S16 else 7
    xrd, X = pv_X(1, INV[1], [XV, 224])
    pre = [p_frag(k) for k in range(L2)] + xrd
    E14 = pv_E(ACC[0], INV[0])
    hdr, rd, st = pv_D(ACC[0])
    E15 = pv_E(Oc, INV[1])
    hdr2, rd2, st2 = pv_D(Oc)
    slots = [[] for _ in range(33)]
    pre += E14[:13]
    rest = E14[13:]
    for k, ins in enumerate(rest):
        slots[k * 9 // len(rest)].append(ins)
    slots[9] += X + hdr
    slots[10] += rd
    for k in range(4):
        slots[13 + 2 * k] += st[k]
    h = E15[:26]
    for k, ins in enumerate(h):
        slots[21 + k * 10 // len(h)].append(ins)
    out = list(pre)
    cnt = 0
    per = NSL // 32
    for k, (f, ms) in enumerate(seq):
        for j, (d, a_, first) in enumerate(ms):
            out.append(mm(d, a_, FB + 4 * (k % NB), first))
            if j == len(ms) - 1 and k + L2 < n:
                out.append(p_frag(k + L2))
            cnt += 1
            if cnt % per == 0:
                out += slots[cnt // per - 1]
    out += E15[26:] + hdr2 + rd2 + sum(st2, [])
    return out


def finalize(seq, q0=None, hist=None):
    s1, q = insert_lgkm_waits(seq, q0)
    return pad_hazards(s1, hist), q


def build():
    T = []
    _thr[0] = 0
    head, _ = finalize(common_head())
    T.append(render(head))
    inc = [salu("s_add_u32", s(STICK), s(STICK), 1)]

    pro = qk_prologue() + [q_frag(f) for f in range(LA)]
    NE = int(ENV("QK_EARLY_IN", "33"))
    pf = [waitcnt(lgkm=0)] + [q_frag(f) for f in range(LA)]
    np_ = dict(prefetch=False)
    early = qk_tick(1, doB=False, **np_) + [waitcnt(vm=4), barrier()] + tick_stamps() + inc + pf
    early += qk_tick(0, nin=NE, **np_) + [waitcnt(vm=0), barrier()] + tick_stamps() + inc + pf
    early += qk_tick(1, nin=NE, **np_) + [barrier()] + tick_stamps() + inc
    early += [valu("v_subrev_u32", v(VPW), POFF - P2OFF, v(VPW))]
    early += qk_tick(0, doA=False, pub=False, keepmax=True) + [barrier(), barrier()] + pf
    early += [valu("v_add_u32", v(VPW), POFF - P2OFF, v(VPW))]
    early += qk_tick(0, doB=False, keepsum=True, **np_) + [barrier()] + tick_stamps() + inc + pf
    early += qk_tick(1, doB=False, pub=False, **np_) + [barrier()]
    early += qk_tick(1, doA=False, keepmax=True) + [barrier()] + tick_stamps() + pf + inc
    pro, q = finalize(pro + early, None, head[-30:])
    T.append(render(pro))
    b0 = qk_tick(0) + [barrier()] + tick_stamps()
    touch = code_touch(CODE["qk_tail"], CODE["pv"], 237, 248, 254) + code_touch(CODE["pv_tail"], CODE["size"], 237, 248, 254)
    b1 = qk_tick(1) + touch + [barrier()] + tick_stamps()
    body_a, qa = insert_lgkm_waits(b0, q)
    body_b, qb = insert_lgkm_waits(b1, qa)
    tb, t0 = [i.text for i in qb], [i.text for i in q]
    assert DIAG or t0[len(t0) - len(tb):] == tb, (t0, tb)
    mid = [scmp("s_cmp_eq_u32", s(STICK), 15), raw("s_cbranch_scc1 L_qk_tail", "branch"),
           scmp("s_cmp_lg_u32", s(STICK), 5), raw("s_cbranch_scc1 L_qk_r0", "branch")] + pf + \
        [waitcnt(lgkm=0), label("L_qk_r0")] + inc
    end = inc + [raw("s_branch L_qk_loop", "branch")]
    loop = body_a + mid + body_b + end
    h1 = pad_hazards(loop, pro[-40:])
    h2 = pad_hazards(h1, h1[-40:])
    assert len(h1) == len(h2)
    T.append(".p2align 6\nL_qk_loop:\n" + render(h1))
    tail = inc + [raw("s_setprio 0", "salu")] + qk_tick(1, doA=False, doB=True) + [barrier()] + tick_stamps() + diag_end()
    tail, _ = finalize(tail, qa, [])
    T.append("L_qk_tail:\n    s_nop 7\n    s_nop 7\n" + render(tail) + "\n    s_endpgm")

    STM_STATE["m"] = ENV("ST_LOOP", ST_MODS)
    pp, q = finalize(pv_prologue(), None, head[-30:])
    assert len(q) == 0 or DIAG
    T.append("L_pv:\n" + render(pp))
    def vmw(k):
        if ENV("SKIPQ", "1") == "1":
            return [waitcnt(vm=28), salu("s_sub_u32", s(ST3), s(STICK), 6), scmp("s_cmp_lt_u32", s(ST3), 5),
                    raw(f"s_cbranch_scc1 L_pv_w{k}", "branch"), waitcnt(vm=16), label(f"L_pv_w{k}")]
        return [waitcnt(vm=28), scmp("s_cmp_gt_u32", s(STICK), 5), raw(f"s_cbranch_scc1 L_pv_w{k}", "branch"),
                waitcnt(vm=16), label(f"L_pv_w{k}")]

    c0 = pv_tick(0) + vmw(0) + [barrier()] + tick_stamps() + inc
    c1 = pv_tick(1) + vmw(1) + [barrier()] + tick_stamps() + inc
    l0, q1 = insert_lgkm_waits(c0, [])
    l1, q2 = insert_lgkm_waits(c1, q1)
    assert len(q1) == 0 and len(q2) == 0
    loop = l0 + [scmp("s_cmp_eq_u32", s(STICK), 16), raw("s_cbranch_scc1 L_pv_tail", "branch")] + l1 + \
        [raw("s_branch L_pv_loop", "branch")]
    h1 = pad_hazards(loop, pp[-40:])
    h2 = pad_hazards(h1, h1[-40:])
    assert len(h1) == len(h2)
    T.append(".p2align 6\nL_pv_loop:\n" + render(h1))
    STM_STATE["m"] = ENV("ST_TAIL", ST_MODS)
    fin = stamp(58) + stamp(57, True) + [raw("s_setprio 2", "salu")] + pv_tick(1, "0", noq=True) + [barrier()] + \
        tick_stamps() + inc + pv_last() + diag_end()
    fin, _ = finalize(fin, [], [])
    T.append("L_pv_tail:\n    s_nop 7\n    s_nop 7\n" + render(fin))
    return "\n".join(T)


HEADER = """; Kernarg layout for this problem (48 bytes, ptrs only, base s[0:1]):
; @launch grid=(256,1,1) block=(512,1,1) lds={lds}
.amdgcn_target "amdgcn-amd-amdhsa--gfx950"
.text
.globl {name}_kernel
.p2align 8
.type {name}_kernel,@function
{name}_kernel:
"""

FOOTER = """
L_end:
    s_endpgm
.section .rodata,"a"
.p2align 6
.amdhsa_kernel {name}_kernel
  .amdhsa_next_free_vgpr 256
  .amdhsa_next_free_sgpr 64
  .amdhsa_accum_offset 256
  .amdhsa_group_segment_fixed_size 0
  .amdhsa_kernarg_size 48
  .amdhsa_user_sgpr_count 2
  .amdhsa_user_sgpr_kernarg_segment_ptr 1
  .amdhsa_system_sgpr_workgroup_id_x 1
.end_amdhsa_kernel
"""


def assemble_sizes(path):
    import subprocess
    subprocess.run(["clang", "-x", "assembler", "-target", "amdgcn-amd-amdhsa", "-mcpu=gfx950",
                    "-c", path, "-o", path + ".o"], check=True)
    out = subprocess.run(["llvm-objdump", "-t", path + ".o"], capture_output=True, text=True).stdout
    sym = {}
    for line in out.splitlines():
        f = line.split()
        if len(f) >= 5 and f[-1].startswith("L_"):
            sym[f[-1]] = int(f[0], 16)
    os.remove(path + ".o")
    return sym


def main():
    out = sys.argv[1] if len(sys.argv) > 1 else f"cdna_kernels/{NAME}.s"
    prev = None
    for it in range(6):
        txt = HEADER.format(name=NAME, lds=LDS_BYTES) + build() + FOOTER.format(name=NAME)
        open(out, "w").write(txt)
        sym = assemble_sizes(out)
        cur = dict(size=sym["L_end"] + 4, qk_tail=sym["L_qk_tail"], pv=sym["L_pv"], pv_tail=sym["L_pv_tail"])
        if cur == prev:
            break
        prev = cur
        CODE.update(cur)
    else:
        raise RuntimeError("code size did not converge")
    print(f"wrote {out}: {txt.count(chr(10))} lines, code {cur}")


if __name__ == "__main__":
    main()
```

```python
import struct
import sys
import os

sys.path.insert(0, os.path.dirname(__file__))
from asmlib import *

NAME = "standalone__gqa_softmax__near_ridge"
ENV = os.environ.get
SH = int(ENV("SH", "16"))
S16 = SH == 16
NQT = 2 if S16 else 1

QSL = 16896
NQ = 6
POFF = NQ * QSL
OOFF = POFF + 32768
XOFF = OOFF + 16384
LDS_BYTES = XOFF + 2048
KS = 5 * QSL
P2OFF = QSL
assert KS + 65536 <= XOFF and LDS_BYTES <= 163840

AF = 0
ACC = [128, 160]
FB = 192
NB = 8
VL = 255
PK = 224
XVA, XVB = 232, 224
MC, LSUM, LMAX = [240, 241], [242, 243], [244, 245]
T0, T1 = 246, 247
VQ, VQB, VPW, VXW, VXRQ = 249, 250, 251, 252, 253
ACC2 = 208
XV = 240
if S16:
    INV = [[244, 245], [246, 247]]
    VOW = [248, 254]
else:
    INV = [[244], [245]]
    VOW = [246, 247, 248, 254]
VQD, VPR, VXRP, VOR, VOS = 249, 250, 251, 252, 253

DIAG = int(ENV("DIAG", "0"))
DG = {"v": 238, "t": 239}

SRD_A, SRD_Q, SRD_O = 4, 8, 12
SPTR = 20
SW, SWW = 28, 29
SQSO, SQM0, SQRD, SOSO, STICK, SC, ST0, ST1, ST2 = 30, 31, 32, 33, 34, 35, 36, 37, 38
SMASK = 40
SQE, SOE, SQB, SQLIM = 42, 43, 44, 45
STM = 46
SRD_W = 48
SDL = 52
ST3 = 53
SROT = 54
SQP, SOP = 55, 58

C_SCALE = 1.4426950408889634 / 16.0
LD_MODS = ENV("LD_MODS", " nt")
ST_MODS = ENV("ST_MODS", " nt")
STM_STATE = {"m": ST_MODS}
LA = int(ENV("LA", "5"))
ROT = int(ENV("ROT", "0"))
THR = int(ENV("THR", "0"))
_thr = [0]


def throttle(a):
    if not THR:
        return
    _thr[0] += 1
    a(raw(f"s_cbranch_vccz L_thr{_thr[0]}", "branch"))
    a(raw(f"s_waitcnt vmcnt({THR})", "wait0"))
    a(label(f"L_thr{_thr[0]}"))

NM = 4 if S16 else 2
NSL = 16 * NM


def f32bits(x):
    return struct.unpack("<I", struct.pack("<f", x))[0]


def stamp(lane, real=False):
    if not DIAG:
        return []
    vd, vt = DG["v"], DG["t"]
    op = "s_memrealtime" if real else "s_memtime"
    o = [raw(f"{op} {sr(STM, 2)}", "smem", wr=S(STM, 2)), waitcnt(lgkm=0)]
    if isinstance(lane, int):
        o.append(I(f"v_writelane_b32 v{vd}, s{STM}, {lane}", "valu", S(STM), V(vd)))
    else:
        o.append(I(f"v_cmp_eq_u32 vcc, s{lane[1]}, v{VL}", "valu", V(VL), []))
        o.append(valu("v_mov_b32", v(vt), s(STM)))
        o.append(nop(2))
        o.append(I(f"v_cndmask_b32 v{vd}, v{vd}, v{vt}, vcc", "valu", V(vd) + V(vt), V(vd)))
    return o


def tick_stamps():
    if DIAG != 1:
        return []
    return stamp(s(STICK)) + [salu("s_add_u32", s(SDL), s(STICK), 20)] + stamp(s(SDL), True)


def diag_end():
    if not DIAG:
        return []
    vd, vt = DG["v"], DG["t"]
    o = stamp(62) + stamp(63, True) + [I(f"v_writelane_b32 v{vd}, s59, 39", "valu", S(59), V(vd))]
    o += [
        raw(f"s_load_dwordx2 {sr(SRD_W, 2)}, s[0:1], 40", "smem", wr=S(SRD_W, 2)),
        waitcnt(lgkm=0),
        salu("s_mov_b32", s(SRD_W + 2), 256 * 8 * 256),
        salu("s_mov_b32", s(SRD_W + 3), "0x00020000"),
        salu("s_lshl_b32", s(ST0), s(2), 3),
        salu("s_add_u32", s(ST0), s(ST0), s(SW)),
        salu("s_lshl_b32", s(ST0), s(ST0), 8),
        valu("v_lshlrev_b32", v(vt), 2, v(VL)),
        raw(f"buffer_store_dword v{vd}, v{vt}, {sr(SRD_W, 4)}, s{ST0} offen", "vmem_st", rd=V(vd) + V(vt)),
    ]
    return o


def srd(a, base, ptr, off, size):
    a(salu("s_add_u32", s(base), s(ptr), s(off)))
    a(salu("s_addc_u32", s(base + 1), s(ptr + 1), 0))
    a(salu("s_and_b32", s(base + 1), s(base + 1), "0xffff"))
    a(salu("s_mov_b32", s(base + 2), size))
    a(salu("s_mov_b32", s(base + 3), "0x00020000"))


def mm(d, a_, b_, first):
    return (mfma16 if S16 else mfma)(d, a_, b_, None if first else d)


def frag_mfmas(f, acc, buf):
    if S16:
        kstep, qt = f >> 1, f & 1
        return [(acc + 16 * qt + 4 * t, AF + 4 * (8 * t + kstep), kstep == 0) for t in range(4)]
    return [(acc + 16 * t, AF + 4 * (16 * t + f), f == 0) for t in range(2)]


tq, th, tA, tB, tC, tc16, tg = 128, 129, 130, 131, 132, 140, 141


def common_head():
    p = []
    a = p.append
    a(scmp("s_cmp_ge_u32", s(2), 256))
    a(raw("s_cbranch_scc1 L_end", "branch"))
    if THR:
        a(raw("s_getreg_b32 s3, hwreg(HW_REG_XCC_ID, 0, 4)", "salu", wr=S(3)))
        a(salu("s_and_b32", s(3), s(3), 1))
        a(salu("s_xor_b32", s(3), s(3), 1 - int(ENV("THR_PAR", "0"))))
        a(raw("s_mov_b32 vcc_lo, s3", "salu", rd=S(3)))
        a(raw("s_mov_b32 vcc_hi, 0", "salu"))
    if DIAG:
        a(raw("s_getreg_b32 s59, hwreg(HW_REG_XCC_ID, 0, 4)", "salu", wr=S(59)))
    a(salu("s_and_b32", s(3), s(2), 7))
    a(salu("s_lshl_b32", s(3), s(3), 5))
    a(salu("s_lshr_b32", s(2), s(2), 3))
    a(salu("s_add_u32", s(2), s(2), s(3)))
    if DIAG:
        DG["v"] = 243
        a(valu("v_mov_b32", v(DG["v"]), 0))
        p.extend(stamp(60, True))
        p.extend(stamp(61))
    a(raw(f"s_load_dwordx4 {sr(SPTR, 4)}, s[0:1], 0", "smem", wr=S(SPTR, 4)))
    a(raw(f"s_load_dwordx4 {sr(SPTR + 4, 4)}, s[0:1], 16", "smem", wr=S(SPTR + 4, 4)))
    a(valu("v_and_b32", v(VL), 63, v(0)))
    a(valu("v_lshrrev_b32", v(tA), 6, v(0)))
    a(rfl(SW, tA))
    a(valu("v_and_b32", v(tq), 31, v(VL)))
    a(valu("v_lshrrev_b32", v(th), 5, v(VL)))
    a(salu("s_and_b32", s(SWW), s(SW), 3))
    a(salu("s_lshl_b32", s(ST0), s(2), 18))
    a(salu("s_lshl_b32", s(ST1), s(2), 17))
    a(salu("s_lshl_b32", s(ST2), s(SWW), 12))
    a(valu("v_xor_b32", v(tA), v(tq), v(th)))
    a(valu("v_lshlrev_b32", v(tA), 4, v(tA)))
    a(valu("v_lshl_add_u32", v(tA), v(th), 9, v(tA)))
    a(valu("v_add_u32", v(VQD), s(ST2), v(tA)))
    a(salu("s_mul_i32", s(SQB), s(SWW), 4 * 1056))
    if ROT:
        a(salu("s_mul_i32", s(SROT), s(2), ROT))
        a(salu("s_and_b32", s(SROT), s(SROT), 15))
        a(salu("s_lshl_b32", s(SROT), s(SROT), 14))
    a(raw("s_waitcnt lgkmcnt(0)", "wait0"))
    srd(a, SRD_Q, SPTR + 0, ST0, 262144)
    a(scmp("s_cmp_ge_u32", s(SW), 4))
    a(raw("s_cbranch_scc1 L_pv", "branch"))
    return p


SPC = 56
CODE = {"size": 0, "qk_tail": 0, "pv": 0, "pv_tail": 0}


def code_base(tag):
    return [
        raw(f"s_getpc_b64 {sr(SPC, 2)}", "salu", wr=S(SPC, 2)),
        label(f"L_pc_{tag}"),
        raw(f"s_sub_u32 s{SPC}, s{SPC}, L_pc_{tag}-{NAME}_kernel", "salu", rd=S(SPC), wr=S(SPC)),
        raw(f"s_subb_u32 s{SPC + 1}, s{SPC + 1}, 0", "salu", rd=S(SPC + 1), wr=S(SPC + 1)),
    ]


def code_touch(lo, hi, vaddr, vdst, vl64):
    o = []
    if not int(ENV("CPF", "0")) or hi <= lo:
        return o
    lo &= ~63
    while lo < hi:
        o.append(valu("v_add_u32", v(vaddr), lo, v(vl64)))
        if lo + 4096 > hi:
            o.append(valu("v_min_u32", v(vaddr), (hi - 4) & ~3, v(vaddr)))
        o.append(raw(f"global_load_dword v{vdst}, v{vaddr}, {sr(SPC, 2)}", "vmem_ld", rd=V(vaddr) + S(SPC, 2), wr=[]))
        lo += 4096
    return o


def qload(a, blk):
    throttle(a)
    if ROT:
        a(salu("s_add_u32", s(SQP), s(SROT), blk * 16384))
        a(salu("s_and_b32", s(SQP), s(SQP), 262143))
    for n in range(4):
        a(salu("s_add_u32", "m0", s(SQB), (blk % NQ) * QSL + n * 1056))
        if ROT:
            a(salu("s_add_u32", s(ST2), s(SQP), n * 1024))
        else:
            a(salu("s_mov_b32", s(ST2), blk * 16384 + n * 1024))
        a(buf_lds(VQD, SRD_Q, s(ST2), LD_MODS))


def qk_prologue():
    p = []
    a = p.append
    vKe, vKo, vKA = 133, 134, 136
    srd(a, SRD_A, SPTR + 2, ST1, 131072)
    a(valu("v_lshrrev_b32", v(tA), 3, v(VL)))
    a(valu("v_lshlrev_b32", v(tA), 9, v(tA)))
    a(valu("v_and_b32", v(tB), 7, v(VL)))
    a(valu("v_lshrrev_b32", v(tC), 4, v(VL)))
    a(valu("v_xor_b32", v(tB), v(tB), v(tC)))
    a(valu("v_lshl_add_u32", v(vKe), v(tB), 4, v(tA)))
    a(valu("v_xor_b32", v(vKo), 64, v(vKe)))
    a(salu("s_lshl_b32", s(ST0), s(SWW), 15))
    a(salu("s_lshl_b32", s(ST1), s(SWW), 14))
    a(salu("s_add_u32", s(ST1), s(ST1), KS))

    def kload(j):
        u, dq = j >> 2, j & 3
        throttle(a)
        for n in range(4):
            a(salu("s_add_u32", "m0", s(ST1), (j & 3) * 4096 + n * 1024))
            a(salu("s_add_u32", s(ST2), s(ST0), u * 16384 + n * 4096 + dq * 128))
            a(buf_lds(vKo if n & 1 else vKe, SRD_A, s(ST2), LD_MODS))

    IW = int(ENV("INITW", "4"))
    for j in range(IW):
        kload(j)
    if IW == 4:
        qload(a, 0)
    if DIAG:
        a(valu("v_mov_b32", v(238), v(DG["v"])))
        DG["v"] = 238
    p.extend(stamp(51))
    a(raw(f"s_setprio {ENV('QK_PRIO', '1')}", "salu"))
    a(valu("v_and_b32", v(tc16), 15, v(VL)))
    a(valu("v_lshrrev_b32", v(tg), 4, v(VL)))
    if S16:
        a(valu("v_lshrrev_b32", v(tA), 1, v(tc16)))
        a(valu("v_xor_b32", v(tA), v(tA), v(tg)))
        a(valu("v_lshlrev_b32", v(tA), 4, v(tA)))
        a(valu("v_lshl_add_u32", v(tA), v(tc16), 7, v(tA)))
        a(valu("v_xor_b32", v(tB), 64, v(tA)))
        a(valu("v_add_u32", v(vKA), s(ST1), v(tA)))
        a(valu("v_add_u32", v(vKA + 1), s(ST1), v(tB)))
        a(valu("v_lshrrev_b32", v(tA), 1, v(tc16)))
        a(valu("v_mul_u32_u24", v(tA), 1056, v(tA)))
        a(valu("v_and_b32", v(tB), 1, v(tc16)))
        a(valu("v_lshl_add_u32", v(tA), v(tB), 9, v(tA)))
        a(valu("v_xor_b32", v(tB), v(tB), v(tg)))
        a(valu("v_lshl_add_u32", v(VQB), v(tB), 4, v(tA)))
        a(valu("v_lshlrev_b32", v(tA), 4, v(tc16)))
        a(valu("v_add_u32", v(VXRQ), XOFF, v(tA)))
        a(valu("v_and_b32", v(tB), 1, v(tg)))
        a(valu("v_lshl_add_u32", v(tA), v(tB), 9, v(VXRQ)))
        a(valu("v_lshl_add_u32", v(tA), v(th), 8, v(tA)))
        a(valu("v_lshlrev_b32", v(tB), 1, v(tB)))
        a(valu("v_lshrrev_b32", v(tC), 3, v(tc16)))
        a(valu("v_xor_b32", v(tB), v(tB), v(tC)))
        a(valu("v_xor_b32", v(tB), s(SWW), v(tB)))
        a(valu("v_lshl_add_u32", v(VXW), v(tB), 2, v(tA)))
        a(salu("s_mov_b32", s(SMASK), "0x0000ffff"))
        a(salu("s_mov_b32", s(SMASK + 1), "0x0000ffff"))
    else:
        a(valu("v_bfe_u32", v(tA), v(tq), 1, 3))
        a(valu("v_xor_b32", v(tA), v(tA), v(th)))
        a(valu("v_lshlrev_b32", v(tA), 4, v(tA)))
        a(valu("v_lshl_add_u32", v(tA), v(tq), 7, v(tA)))
        for k in range(4):
            a(valu("v_xor_b32", v(tB), 32 * k, v(tA)))
            a(valu("v_add_u32", v(vKA + k), s(ST1), v(tB)))
        a(valu("v_lshrrev_b32", v(tA), 1, v(tq)))
        a(valu("v_mul_u32_u24", v(tA), 1056, v(tA)))
        a(valu("v_and_b32", v(tB), 1, v(tq)))
        a(valu("v_lshl_add_u32", v(tA), v(tB), 9, v(tA)))
        a(valu("v_xor_b32", v(tB), v(tB), v(th)))
        a(valu("v_lshl_add_u32", v(VQB), v(tB), 4, v(tA)))
        a(valu("v_lshlrev_b32", v(tA), 4, v(tq)))
        a(valu("v_add_u32", v(VXRQ), XOFF, v(tA)))
        a(valu("v_lshl_add_u32", v(tA), v(th), 9, v(VXRQ)))
        a(valu("v_lshrrev_b32", v(tB), 3, v(tq)))
        a(valu("v_xor_b32", v(tB), s(SWW), v(tB)))
        a(valu("v_lshl_add_u32", v(VXW), v(tB), 2, v(tA)))
        a(salu("s_mov_b32", s(SMASK), -1))
        a(salu("s_mov_b32", s(SMASK + 1), 0))
    a(salu("s_lshl_b32", s(ST2), s(SWW), 12))
    a(salu("s_add_u32", s(ST2), s(ST2), POFF))
    a(valu("v_lshlrev_b32", v(tA), 4, v(VL)))
    a(valu("v_add_u32", v(VPW), s(ST2), v(tA)))
    a(salu("s_mov_b32", s(SC), hex(f32bits(C_SCALE))))
    a(salu("s_mov_b32", s(SQRD), 0))
    a(salu("s_mov_b32", s(STICK), 0))

    def kfrags(j):
        u, dq = j >> 2, j & 3
        if S16:
            for aa in range(2):
                for b in range(2):
                    a(ds_read("ds_read_b128", AF + 4 * (8 * (2 * u + aa) + 2 * dq + b), 4, vKA + b,
                              (j & 3) * 4096 + 2048 * aa))
        else:
            for k in range(4):
                a(ds_read("ds_read_b128", AF + 4 * (16 * u + 4 * dq + k), 4, vKA + k, (j & 3) * 4096))

    for j in range(4):
        if j == 0 and IW < 4:
            a(waitcnt(vm=4 * (IW - 1)))
            for jj in range(IW, 4):
                kload(jj)
            kfrags(0)
            a(waitcnt(lgkm=0))
            kload(4)
            qload(a, 0)
            continue
        a(waitcnt(vm=16))
        kfrags(j)
        a(waitcnt(lgkm=0))
        kload(4 + j)
    qload(a, 1)
    qload(a, 2)
    a(valu("v_mov_b32", v(VQ), v(VQB)))
    p.extend(stamp(40))
    a(barrier())
    for j, w in zip(range(4, 8), (20 if IW == 4 else 24, 16, 12, 8)):
        a(waitcnt(vm=w))
        kfrags(j)
    a(waitcnt(lgkm=0))
    p.extend(stamp(48))
    a(barrier())
    p.extend(stamp(49))
    p.extend(stamp(59, True))
    return p


def q_frag(f):
    f2 = f % 16
    off = (f2 & 1) * 8 * 1056 + 64 * (f2 >> 1) if S16 else 32 * f2
    return ds_read("ds_read_b128", FB + 4 * (f % NB), 4, VQ, off)


def qk_tick(par, doA=True, doB=True, prefetch=True, pub=True, keepmax=False, nin=None, keepsum=False):
    Sc, Sn = ACC[par], ACC[1 - par]
    slots = [[] for _ in range(NSL + 1)]
    pre, post = [], []
    if doB:
        X = []
        for qt in range(NQT):
            xv = (XVA, XVB)[qt]
            pre.append(ds_read("ds_read_b128", xv, 4, VXRQ, (1 - par) * 1024 + 256 * qt))
            X += [
                valu("v_max3_f32", v(T0), v(xv), v(xv + 1), v(xv + 2)),
                valu("v_max_f32", v(T0), v(T0), v(xv + 3)),
                valu("v_mul_f32", v(MC[qt]), s(SC), v(T0)),
            ]
        seq = []
        for pr in range(16):
            qt = (pr >> 3) if S16 else 0
            r0, r1 = Sc + 2 * pr, Sc + 2 * pr + 1
            g = [
                valu("v_fma_f32", v(r0), v(r0), s(SC), ("neg", v(MC[qt]))),
                valu("v_fma_f32", v(r1), v(r1), s(SC), ("neg", v(MC[qt]))),
                valu("v_exp_f32", v(r0), v(r0)),
                valu("v_exp_f32", v(r1), v(r1)),
            ]
            g2 = []
            if pr == 0 or (S16 and pr == 8):
                g2.append(valu("v_add_f32", v(LSUM[qt]), v(r0), v(r1)))
            else:
                g2.append(valu("v_add_f32", v(LSUM[qt]), v(LSUM[qt]), v(r0)))
                g2.append(valu("v_add_f32", v(LSUM[qt]), v(LSUM[qt]), v(r1)))
            g2.append(valu("v_cvt_pk_bf16_f32", v(PK + pr % 8), v(r0), v(r1)))
            if pr % 4 == 3:
                gi = pr >> 2
                fi = (2 * (gi & 1) + (gi >> 1)) if S16 else gi
                g2.append(ds_write("ds_write_b128", VPW, PK + (pr - 3) % 8, 4, par * 16384 + fi * 1024))
            seq.append((g, g2))
        flat = []
        for pr in range(16):
            flat.append(seq[pr][0][:2])
            flat.append(seq[pr][0][2:])
            if pr > 0:
                flat[-2] = flat[-2] + seq[pr - 1][1]
        flat.append(seq[15][1])
        if doA:
            nin = int(ENV("QK_IN", "8")) if nin is None else nin
            lo = NSL // 8
            slots[lo - 1] += X
            for k, grp in enumerate(flat[:nin]):
                slots[lo + k * (NSL - lo - 2) // max(nin, 1)] += grp
            post = sum(flat[nin:], [])
        else:
            post = X + sum(flat, [])
    elif pub and not keepsum:
        for qt in range(NQT):
            pre.append(valu("v_mov_b32", v(LSUM[qt]), 0))
    M = []
    if doA:
        if S16:
            for k in range(8):
                for qt in range(2):
                    b, lm = Sn + 16 * qt, LMAX[qt]
                    if k == 0:
                        M.append(valu("v_max3_f32", v(lm), v(b), v(b + 1), v(b + 2)))
                    elif k < 7:
                        M.append(valu("v_max3_f32", v(lm), v(lm), v(b + 1 + 2 * k), v(b + 2 + 2 * k)))
                    else:
                        M.append(valu("v_max_f32", v(lm), v(lm), v(b + 15)))
        else:
            lm = LMAX[0]
            M.append(valu("v_max3_f32", v(lm), v(Sn), v(Sn + 1), v(Sn + 2)))
            M.append(valu("v_max3_f32", v(T1), v(Sn + 16), v(Sn + 17), v(Sn + 18)))
            for k in range(6):
                M.append(valu("v_max3_f32", v(lm), v(lm), v(Sn + 3 + 2 * k), v(Sn + 4 + 2 * k)))
                M.append(valu("v_max3_f32", v(T1), v(T1), v(Sn + 19 + 2 * k), v(Sn + 20 + 2 * k)))
            M.append(valu("v_max3_f32", v(lm), v(lm), v(Sn + 15), v(Sn + 31)))
            M.append(valu("v_max_f32", v(lm), v(lm), v(T1)))
    elif not keepmax:
        for qt in range(NQT):
            M.append(valu("v_mov_b32", v(LMAX[qt]), 0))
    if S16:
        PUB = [
            perm32swap(LMAX[0], LMAX[1]),
            perm32swap(LSUM[0], LSUM[1]),
            valu("v_max_f32", v(LMAX[0]), v(LMAX[0]), v(LMAX[1])),
            valu("v_add_f32", v(LSUM[0]), v(LSUM[0]), v(LSUM[1])),
            perm16swap(LMAX[0], LSUM[0]),
        ]
    else:
        PUB = [perm32swap(LMAX[0], LSUM[0])]
    PUB += [
        valu("v_max_f32", v(T0), v(LMAX[0]), v(LSUM[0])),
        valu("v_add_f32", v(T1), v(LMAX[0]), v(LSUM[0])),
        valu("v_cndmask_b32", v(T0), v(T1), v(T0), s(SMASK, 2)),
        ds_write("ds_write_b32", VXW, T0, 1, par * 1024),
    ]
    QUPD = [
        salu("s_add_u32", s(SQRD), s(SQRD), QSL),
        scmp("s_cmp_eq_u32", s(SQRD), NQ * QSL),
        salu("s_cselect_b32", s(SQRD), 0, s(SQRD)),
        valu("v_add_u32", v(VQ), s(SQRD), v(VQB)),
    ]
    out = list(pre)
    if doA:
        i = 0
        for f in range(16):
            for k, (d, a_, first) in enumerate(frag_mfmas(f, Sn, 0)):
                out.append(mm(d, a_, FB + 4 * (f % NB), first))
                if k == NM - 1:
                    nf = f + LA
                    if nf == 16:
                        out += QUPD
                    if nf < 16 or prefetch:
                        out.append(q_frag(nf))
                out += slots[i]
                i += 1
    if DIAG == 3 and doA and doB and nin == int(ENV("QK_IN", "8")):
        out = stamp(10) + out + stamp(11)
    k = min(len(post), 14) if doA else 0
    out += post[:k]
    rest = post[k:]
    mi = 0
    for j, ins in enumerate(rest):
        out.append(ins)
        if j % 3 == 2 and mi < len(M):
            out.append(M[mi]); mi += 1
    out += M[mi:] + (PUB if pub else [])
    if DIAG == 3 and doA and doB and nin == int(ENV("QK_IN", "8")):
        out += stamp(12)
    return out


def pv_addr_late(a):
    x0, x1, x2 = FB, FB + 1, FB + 2
    a(valu("v_lshrrev_b32", v(x0), 3, v(VL)))
    a(valu("v_and_b32", v(x1), 7, v(VL)))
    a(valu("v_xor_b32", v(x1), v(x0), v(x1)))
    a(valu("v_lshlrev_b32", v(x1), 4, v(x1)))
    a(valu("v_lshl_add_u32", v(x1), v(x0), 7, v(x1)))
    a(valu("v_add_u32", v(VOR), s(ST0), v(x1)))
    if S16:
        a(valu("v_and_b32", v(x0), 15, v(VL)))
        a(valu("v_lshrrev_b32", v(x1), 4, v(VL)))
        a(valu("v_lshlrev_b32", v(x1), 1, v(x1)))
        a(valu("v_and_b32", v(x2), 7, v(x0)))
        a(valu("v_xor_b32", v(x1), v(x1), v(x2)))
        a(valu("v_lshlrev_b32", v(x1), 4, v(x1)))
        a(valu("v_lshl_add_u32", v(x1), v(x0), 7, v(x1)))
        a(valu("v_xor_b32", v(x2), 16, v(x1)))
        a(valu("v_add_u32", v(VOW[0]), s(ST0), v(x1)))
        a(valu("v_add_u32", v(VOW[1]), s(ST0), v(x2)))
    else:
        a(valu("v_and_b32", v(x0), 31, v(VL)))
        a(valu("v_lshrrev_b32", v(x1), 5, v(VL)))
        a(valu("v_lshlrev_b32", v(x1), 1, v(x1)))
        a(valu("v_and_b32", v(x2), 7, v(x0)))
        a(valu("v_xor_b32", v(x1), v(x1), v(x2)))
        a(valu("v_lshlrev_b32", v(x1), 4, v(x1)))
        a(valu("v_lshl_add_u32", v(x1), v(x0), 7, v(x1)))
        for c in range(4):
            a(valu("v_xor_b32", v(x2), 64 * (c >> 1) + 16 * (c & 1), v(x1)))
            a(valu("v_add_u32", v(VOW[c]), s(ST0), v(x2)))


def pv_X(slot, inv, xv):
    rd, va = [], []
    for qt in range(NQT):
        x = xv[qt]
        rd.append(ds_read("ds_read_b128", x, 4, VXRP, slot * 1024 + 256 * qt))
        va += [
            valu("v_add_f32", v(x), v(x), v(x + 1)),
            valu("v_add_f32", v(x + 2), v(x + 2), v(x + 3)),
            valu("v_add_f32", v(x), v(x), v(x + 2)),
            valu("v_rcp_f32", v(inv[qt]), v(x)),
        ]
    return rd, va


def pv_E(O, inv, VOW=VOW):
    E = []
    for c in range(4):
        b = O + 8 * c
        iv = inv[c >> 1] if S16 else inv[0]
        for r in range(8):
            E.append(valu("v_mul_f32", v(b + r), v(b + r), v(iv)))
        for r in range(4):
            E.append(valu("v_cvt_pk_bf16_f32", v(b + r), v(b + 2 * r), v(b + 2 * r + 1)))
        if S16:
            E.append(ds_write("ds_write_b128", VOW[c & 1], b, 4, 2048 * (c >> 1)))
        else:
            E.append(ds_write("ds_write_b128", VOW[c], b, 4))
    return E


def pv_D(O, VOR=VOR):
    hdr = [salu("s_mov_b32", s(SOE), s(SOSO)), salu("s_add_u32", s(SOSO), s(SOSO), 16384)]
    if ROT:
        hdr = [salu("s_add_u32", s(SOE), s(SOSO), s(SROT)), salu("s_and_b32", s(SOE), s(SOE), 262143),
               salu("s_add_u32", s(SOSO), s(SOSO), 16384)]
    rd = [ds_read("ds_read_b128", O + 8 * n + 4, 4, VOR, 1024 * n) for n in range(4)]
    st = []
    for n in range(4):
        g = [buf_store(O + 8 * n + 4, VOS, SRD_O, s(SOE), STM_STATE["m"])]
        if n < 3:
            g.append(salu("s_add_u32", s(SOE), s(SOE), 4096))
        st.append(g)
    return hdr, rd, st


def pv_ED(O, inv):
    hdr, rd, st = pv_D(O)
    return pv_E(O, inv) + hdr + rd + sum(st, [])


def pv_prologue():
    p = []
    a = p.append
    DG["v"] = 243
    vVD, vB0, vB1, vT0, vT1, vP2 = VOR, VOW[0], VOW[1], XV, XV + 1, XV + 2
    inv0 = INV[0]
    if int(ENV("CPF", "0")):
        a(salu("s_and_b32", s(ST3), s(2), 31))
        a(salu("s_lshl_b32", s(ST3), s(ST3), 3))
        a(salu("s_add_u32", s(ST3), s(ST3), s(SW)))
        a(scmp("s_cmp_lg_u32", s(ST3), 4 + 8 * int(ENV("CPF_WG", "5"))))
        a(raw("s_cbranch_scc1 L_nocpf", "branch"))
        p.extend(code_base("pv"))
        a(valu("v_lshlrev_b32", v(AF + 125), 6, v(VL)))
        p.extend(code_touch(int(ENV("CPF_LO", "1024")), CODE["size"], AF + 126, AF + 127, AF + 125))
        a(label("L_nocpf"))
    srd(a, SRD_A, SPTR + 4, ST1, 131072)
    srd(a, SRD_O, SPTR + 6, ST0, 0)
    a(salu("s_lshl_b32", s(ST2), s(SWW), 7))
    a(valu("v_lshrrev_b32", v(tA), 3, v(VL)))
    a(valu("v_and_b32", v(tB), 7, v(VL)))
    a(valu("v_lshlrev_b32", v(tC), 9, v(tA)))
    a(valu("v_lshl_add_u32", v(tC), v(tB), 4, v(tC)))
    a(valu("v_add_u32", v(VOS), s(ST2), v(tC)))
    a(valu("v_bfe_u32", v(tC), v(VL), 4, 1))
    a(valu("v_lshlrev_b32", v(tC), 4 if S16 else 6, v(tC)))
    a(valu("v_xor_b32", v(vVD), v(tC), v(VOS)))
    a(salu("s_lshl_b32", s(ST0), s(SWW), 12))
    a(salu("s_add_u32", s(ST0), s(ST0), OOFF))
    a(valu("v_lshlrev_b32", v(tA), 4, v(VL)))
    a(valu("v_add_u32", v(VPR), POFF, v(tA)))
    a(valu("v_add_u32", v(vP2), P2OFF, v(tA)))
    a(valu("v_and_b32", v(tA), 15 if S16 else 31, v(VL)))
    a(valu("v_lshlrev_b32", v(tA), 4, v(tA)))
    a(valu("v_add_u32", v(VXRP), XOFF + 512, v(tA)))
    if S16:
        a(valu("v_lshrrev_b32", v(tA), 2, v(VL)))
        a(valu("v_lshlrev_b32", v(tA), 7, v(tA)))
        a(valu("v_and_b32", v(tB), 3, v(VL)))
        a(valu("v_lshl_add_u32", v(tA), v(tB), 5, v(tA)))
        a(valu("v_bfe_u32", v(tB), v(VL), 3, 1))
        a(valu("v_lshl_add_u32", v(vB0), v(tB), 4, v(tA)))
        a(valu("v_xor_b32", v(vB1), 16, v(vB0)))
    else:
        a(valu("v_bfe_u32", v(tA), v(VL), 2, 2))
        a(valu("v_lshl_add_u32", v(tA), v(th), 2, v(tA)))
        a(valu("v_lshlrev_b32", v(tA), 7, v(tA)))
        a(valu("v_bfe_u32", v(tB), v(VL), 3, 1))
        a(valu("v_lshl_add_u32", v(tA), v(tB), 6, v(tA)))
        a(valu("v_and_b32", v(tB), 1, v(VL)))
        a(valu("v_lshl_add_u32", v(tA), v(tB), 5, v(tA)))
        a(valu("v_bfe_u32", v(tB), v(VL), 4, 1))
        a(valu("v_lshl_add_u32", v(tA), v(tB), 4, v(tA)))
        a(valu("v_bfe_u32", v(tB), v(VL), 1, 1))
        a(valu("v_lshl_add_u32", v(vB0), v(tB), 3, v(tA)))
        a(valu("v_xor_b32", v(vB1), 64, v(vB0)))
    a(salu("s_mov_b32", s(SQSO), 10 * 16384))
    a(salu("s_add_u32", s(SQM0), s(SQB), 4 * QSL))
    a(salu("s_add_u32", s(SQLIM), s(SQB), NQ * QSL))
    a(salu("s_mov_b32", s(SOSO), 0))
    a(salu("s_mov_b32", s(STICK), 5))
    VLOC = {0: 3, 1: 4, 2: 5, 3: "o", 4: 0, 5: 2, 6: "o", 7: 0}

    def vdest(j):
        loc = VLOC[j]
        return (ST0, 0) if loc == "o" else (SQB, loc * QSL)

    def vload(j):
        sb, off = vdest(j)
        throttle(a)
        for n in range(4):
            a(salu("s_add_u32", "m0", s(sb), off + n * 1024))
            a(salu("s_mov_b32", s(ST2), (32 * j + 8 * n) * 512))
            a(buf_lds(vVD, SRD_A, s(ST2), LD_MODS))

    accs = [ACC2, ACC[1], ACC[0]]
    inited = set()

    def vfrag(j):
        sb, off = vdest(j)
        a(salu("s_add_u32", s(ST3), s(sb), off))
        a(valu("v_add_u32", v(vT0), s(ST3), v(vB0)))
        a(valu("v_add_u32", v(vT1), s(ST3), v(vB1)))
        if S16:
            for dt in range(4):
                for aa in range(2):
                    a(ds_read("ds_read_b64_tr_b16", AF + 4 * (8 * dt + j) + 2 * aa, 2, (vT0, vT1)[dt >> 1],
                              16 * aa * 128 + 8 * (dt & 1)))
        else:
            for b in range(2):
                for dt in range(2):
                    for aa in range(2):
                        a(ds_read("ds_read_b64_tr_b16", AF + 4 * (16 * dt + 2 * j + b) + 2 * aa, 2, (vT0, vT1)[dt],
                                  (16 * b + 8 * aa) * 128))
        a(waitcnt(lgkm=0))
        p.extend(stamp(41 + j))

    def vmm(j):
        def pf(blk, b):
            buf = FB + 4 * ((2 * blk + b) % 4)
            if blk < 2:
                return ds_read("ds_read_b128", buf, 4, VPR, blk * 16384 + (2 * j + b) * 1024)
            return ds_read("ds_read_b128", buf, 4, vP2, (2 * j + b) * 1024)

        for blk in range(2):
            for b in range(2):
                a(pf(blk, b))
        for blk in range(3):
            for b in range(2):
                buf = FB + 4 * ((2 * blk + b) % 4)
                for (d, a_, _) in frag_mfmas(2 * j + b, accs[blk], 0):
                    a(mm(d, a_, buf, d not in inited))
                    inited.add(d)
                if blk == 0:
                    a(pf(2, b))

    def dummy_st():
        for _ in range(4):
            a(buf_store(AF, VOS, SRD_O, 0))

    p.extend(stamp(51))
    a(raw(f"s_setprio {ENV('PV_PRIO', '0')}", "salu"))
    a(barrier())
    vload(0); vload(1)
    a(barrier())
    p.extend(stamp(49))
    p.extend(stamp(59, True))
    vload(2); vload(3)
    a(barrier())
    vload(4)
    a(waitcnt(vm=16)); vfrag(0); qload(a, 3)
    a(barrier())
    rd, va = pv_X(0, inv0, [FB, FB + 4])
    p.extend(rd + va)
    a(waitcnt(vm=16)); vfrag(1); qload(a, 4)
    a(barrier())
    vload(5)
    rd, va = pv_X(1, INV[1], [FB, FB + 4])
    p.extend(rd + va)
    a(waitcnt(vm=20)); vfrag(2)
    a(barrier())
    a(waitcnt(vm=16)); vfrag(3); vload(6)
    vmm(0); vmm(1)
    a(waitcnt(vm=16)); vfrag(4); vload(7); qload(a, 5)
    vmm(2)
    a(waitcnt(vm=20))
    a(barrier())
    vmm(3); vmm(4)
    a(waitcnt(vm=16))
    a(barrier())
    qload(a, 9)
    a(waitcnt(vm=16)); vfrag(5); qload(a, 8); vmm(5)
    a(waitcnt(vm=16)); vfrag(6); vmm(6)
    a(waitcnt(vm=12)); vfrag(7); qload(a, 6); vmm(7)
    a(waitcnt(vm=12))
    a(barrier())
    p.extend(stamp(52))
    pv_addr_late(a)
    W2 = [FB + 4 + c for c in range(len(VOW))]
    R2 = FB + 8
    for c in range(len(VOW)):
        a(valu("v_subrev_u32", v(W2[c]), OOFF - POFF, v(VOW[c])))
    a(valu("v_subrev_u32", v(R2), OOFF - POFF, v(VOR)))
    E0 = pv_E(ACC2, inv0)
    E1 = pv_E(ACC[1], INV[1], W2)
    h0, r0, s0 = pv_D(ACC2)
    h1, r1, s1 = pv_D(ACC[1], R2)
    qload(a, 7)
    p.extend(E0 + r0)
    p.extend(E1 + r1)
    rd, va = pv_X(0, INV[0], [FB + 12, FB + 0])
    p.extend(rd + va)
    p.extend(stamp(56))
    a(waitcnt(lgkm=0))
    a(barrier())
    a(salu("s_mov_b32", s(SRD_O + 2), 262144))
    p.extend(h0 + sum(s0, []) + h1 + sum(s1, []))
    if DIAG:
        a(valu("v_mov_b32", v(238), v(DG["v"])))
        DG["v"] = 238
    p.extend(stamp(3) + stamp(23, True))
    return p


def pv_tick(par, mode=None, noq=False):
    Oc = ACC[1 - par]
    slots = [[] for _ in range(NSL + 1)]

    def p_frag(m):
        return ds_read("ds_read_b128", FB + 4 * (m % NB), 4, VPR, (1 - par) * 16384 + m * 1024)

    xrd, X = pv_X(1 - par, INV[1 - par], [XV, 224])
    pre = [p_frag(m) for m in range(LA)] + xrd
    E = pv_E(ACC[par], INV[par])
    hdr, rd, st = pv_D(ACC[par])
    qd, ql, qu = [], [[], [], [], []], []
    if not noq:
        qd = [
            scmp("s_cmp_lt_u32", s(SQSO), 262144),
            salu("s_cselect_b32", s(SRD_Q + 2), 262144, 0),
            salu("s_cselect_b32", s(SQE), s(SQSO), 0),
            salu("s_add_u32", s(SQSO), s(SQSO), 16384),
        ]
        if ROT:
            qd += [salu("s_add_u32", s(SQE), s(SQE), s(SROT)), salu("s_and_b32", s(SQE), s(SQE), 262143)]
        ql = []
        for n in range(4):
            g = [salu("s_add_u32", "m0", s(SQM0), n * 1056)]
            g.append(salu("s_add_u32", s(SQE), s(SQE), 1024) if n else nop(1))
            g.append(buf_lds(VQD, SRD_Q, s(SQE), LD_MODS))
            ql.append(g)
        qu = [
            salu("s_add_u32", s(SQM0), s(SQM0), QSL),
            scmp("s_cmp_eq_u32", s(SQM0), s(SQLIM)),
            salu("s_cselect_b32", s(SQM0), s(SQB), s(SQM0)),
        ]
    mode = mode or ENV("PV_MODE", "1")
    u = NSL // 32
    if mode == "0":
        pre += E[:13] + qd
        rest = E[13:]
        for k, ins in enumerate(rest):
            slots[k * 13 * u // len(rest)].append(ins)
        for n in range(4):
            slots[(1 + 3 * n) * u] += ql[n]
        slots[11 * u] += qu
        slots[13 * u] += X
        slots[14 * u] += rd[:2]
        slots[15 * u] += rd[2:] + hdr
        for n in range(4):
            slots[(18 + 3 * n) * u] += st[n]
    elif ENV("SKIPQ", "1") == "1" and not noq:
        lbl = f"L_pv_nq{par}"
        qd2 = [salu("s_mov_b32", s(SQE), s(SQSO)), salu("s_add_u32", s(SQSO), s(SQSO), 16384)]
        if ROT:
            qd2 += [salu("s_add_u32", s(SQE), s(SQE), s(SROT)), salu("s_and_b32", s(SQE), s(SQE), 262143)]
        pre += E[:26]
        pre += [scmp("s_cmp_gt_u32", s(STICK), 10), raw(f"s_cbranch_scc1 {lbl}", "branch")] + qd2 + sum(ql, []) + qu + [label(lbl)]
        pre += E[26:] + rd + X + hdr + sum(st, [])
    else:
        pre += qd
        for c in range(4):
            pre += E[13 * c:13 * c + 13] + ql[c]
        pre += qu + rd + X + hdr + sum(st, [])
    out = list(pre)
    if DIAG == 3 and not noq:
        out = stamp(10) + out + stamp(11)
    i = 0
    for f in range(16):
        for k, (d, a_, first) in enumerate(frag_mfmas(f, Oc, 0)):
            out.append(mm(d, a_, FB + 4 * (f % NB), first))
            if k == NM - 1 and f + LA < 16:
                out.append(p_frag(f + LA))
            out += slots[i]
            i += 1
    if DIAG == 3 and not noq:
        out += stamp(12)
    return out


def pv_last():
    Oc = ACC[1]
    seq = []
    if S16:
        for qt in range(2):
            for U in range(8):
                seq.append((2 * U + qt, frag_mfmas(2 * U + qt, Oc, 0)))
    else:
        for dt in range(2):
            for m in range(16):
                seq.append((m, [frag_mfmas(m, Oc, 0)[dt]]))
    n = len(seq)

    def p_frag(k):
        return ds_read("ds_read_b128", FB + 4 * (k % NB), 4, VPR, 16384 + seq[k][0] * 1024)

    L2 = 5 if S16 else 7
    xrd, X = pv_X(1, INV[1], [XV, 224])
    pre = [p_frag(k) for k in range(L2)] + xrd
    E14 = pv_E(ACC[0], INV[0])
    hdr, rd, st = pv_D(ACC[0])
    E15 = pv_E(Oc, INV[1])
    hdr2, rd2, st2 = pv_D(Oc)
    slots = [[] for _ in range(33)]
    pre += E14[:13]
    rest = E14[13:]
    for k, ins in enumerate(rest):
        slots[k * 9 // len(rest)].append(ins)
    slots[9] += X + hdr
    slots[10] += rd
    for k in range(4):
        slots[13 + 2 * k] += st[k]
    h = E15[:26]
    for k, ins in enumerate(h):
        slots[21 + k * 10 // len(h)].append(ins)
    out = list(pre)
    cnt = 0
    per = NSL // 32
    for k, (f, ms) in enumerate(seq):
        for j, (d, a_, first) in enumerate(ms):
            out.append(mm(d, a_, FB + 4 * (k % NB), first))
            if j == len(ms) - 1 and k + L2 < n:
                out.append(p_frag(k + L2))
            cnt += 1
            if cnt % per == 0:
                out += slots[cnt // per - 1]
    out += E15[26:] + hdr2 + rd2 + sum(st2, [])
    return out


def finalize(seq, q0=None, hist=None):
    s1, q = insert_lgkm_waits(seq, q0)
    return pad_hazards(s1, hist), q


def build():
    T = []
    _thr[0] = 0
    head, _ = finalize(common_head())
    T.append(render(head))
    inc = [salu("s_add_u32", s(STICK), s(STICK), 1)]

    pro = qk_prologue() + [q_frag(f) for f in range(LA)]
    NE = int(ENV("QK_EARLY_IN", "33"))
    pf = [waitcnt(lgkm=0)] + [q_frag(f) for f in range(LA)]
    np_ = dict(prefetch=False)
    early = qk_tick(1, doB=False, **np_) + [waitcnt(vm=4), barrier()] + tick_stamps() + inc + pf
    early += qk_tick(0, nin=NE, **np_) + [waitcnt(vm=0), barrier()] + tick_stamps() + inc + pf
    early += qk_tick(1, nin=NE, **np_) + [barrier()] + tick_stamps() + inc
    early += [valu("v_subrev_u32", v(VPW), POFF - P2OFF, v(VPW))]
    early += qk_tick(0, doA=False, pub=False, keepmax=True) + [barrier(), barrier()] + pf
    early += [valu("v_add_u32", v(VPW), POFF - P2OFF, v(VPW))]
    early += qk_tick(0, doB=False, keepsum=True, **np_) + [barrier()] + tick_stamps() + inc + pf
    early += qk_tick(1, doB=False, pub=False, **np_) + [barrier()]
    early += qk_tick(1, doA=False, keepmax=True) + [barrier()] + tick_stamps() + pf + inc
    pro, q = finalize(pro + early, None, head[-30:])
    T.append(render(pro))
    b0 = qk_tick(0) + [barrier()] + tick_stamps()
    b1 = qk_tick(1) + [barrier()] + tick_stamps()
    body_a, qa = insert_lgkm_waits(b0, q)
    body_b, qb = insert_lgkm_waits(b1, qa)
    tb, t0 = [i.text for i in qb], [i.text for i in q]
    assert DIAG or t0[len(t0) - len(tb):] == tb, (t0, tb)
    mid = [scmp("s_cmp_eq_u32", s(STICK), 15), raw("s_cbranch_scc1 L_qk_tail", "branch"),
           scmp("s_cmp_lg_u32", s(STICK), 5), raw("s_cbranch_scc1 L_qk_r0", "branch")] + pf + \
        [waitcnt(lgkm=0), label("L_qk_r0")] + inc
    end = inc + [raw("s_branch L_qk_loop", "branch")]
    loop = body_a + mid + body_b + end
    h1 = pad_hazards(loop, pro[-40:])
    h2 = pad_hazards(h1, h1[-40:])
    assert len(h1) == len(h2)
    T.append(".p2align 6\nL_qk_loop:\n" + render(h1))
    tail = inc + [raw("s_setprio 0", "salu")] + qk_tick(1, doA=False, doB=True) + [barrier()] + tick_stamps() + diag_end()
    tail, _ = finalize(tail, qa, [])
    T.append("L_qk_tail:\n    s_nop 7\n    s_nop 7\n" + render(tail) + "\n    s_endpgm")

    STM_STATE["m"] = ENV("ST_LOOP", ST_MODS)
    pp, q = finalize(pv_prologue(), None, head[-30:])
    assert len(q) == 0 or DIAG
    T.append("L_pv:\n" + render(pp))
    def vmw(k):
        if ENV("SKIPQ", "1") == "1":
            return [waitcnt(vm=28), salu("s_sub_u32", s(ST3), s(STICK), 6), scmp("s_cmp_lt_u32", s(ST3), 5),
                    raw(f"s_cbranch_scc1 L_pv_w{k}", "branch"), waitcnt(vm=16), label(f"L_pv_w{k}")]
        return [waitcnt(vm=28), scmp("s_cmp_gt_u32", s(STICK), 5), raw(f"s_cbranch_scc1 L_pv_w{k}", "branch"),
                waitcnt(vm=16), label(f"L_pv_w{k}")]

    c0 = pv_tick(0) + vmw(0) + [barrier()] + tick_stamps() + inc
    c1 = pv_tick(1) + vmw(1) + [barrier()] + tick_stamps() + inc
    l0, q1 = insert_lgkm_waits(c0, [])
    l1, q2 = insert_lgkm_waits(c1, q1)
    assert len(q1) == 0 and len(q2) == 0
    loop = l0 + [scmp("s_cmp_eq_u32", s(STICK), 16), raw("s_cbranch_scc1 L_pv_tail", "branch")] + l1 + \
        [raw("s_branch L_pv_loop", "branch")]
    h1 = pad_hazards(loop, pp[-40:])
    h2 = pad_hazards(h1, h1[-40:])
    assert len(h1) == len(h2)
    T.append(".p2align 6\nL_pv_loop:\n" + render(h1))
    STM_STATE["m"] = ENV("ST_TAIL", ST_MODS)
    fin = stamp(58) + stamp(57, True) + [raw("s_setprio 2", "salu")] + pv_tick(1, "0", noq=True) + [barrier()] + \
        tick_stamps() + inc + pv_last() + diag_end()
    fin, _ = finalize(fin, [], [])
    T.append("L_pv_tail:\n    s_nop 7\n    s_nop 7\n" + render(fin))
    return "\n".join(T)


HEADER = """; Kernarg layout for this problem (48 bytes, ptrs only, base s[0:1]):
; @launch grid=(256,1,1) block=(512,1,1) lds={lds}
.amdgcn_target "amdgcn-amd-amdhsa--gfx950"
.text
.globl {name}_kernel
.p2align 8
.type {name}_kernel,@function
{name}_kernel:
"""

FOOTER = """
L_end:
    s_endpgm
.section .rodata,"a"
.p2align 6
.amdhsa_kernel {name}_kernel
  .amdhsa_next_free_vgpr 256
  .amdhsa_next_free_sgpr 64
  .amdhsa_accum_offset 256
  .amdhsa_group_segment_fixed_size 0
  .amdhsa_kernarg_size 48
  .amdhsa_user_sgpr_count 2
  .amdhsa_user_sgpr_kernarg_segment_ptr 1
  .amdhsa_system_sgpr_workgroup_id_x 1
.end_amdhsa_kernel
"""


def assemble_sizes(path):
    import subprocess
    subprocess.run(["clang", "-x", "assembler", "-target", "amdgcn-amd-amdhsa", "-mcpu=gfx950",
                    "-c", path, "-o", path + ".o"], check=True)
    out = subprocess.run(["llvm-objdump", "-t", path + ".o"], capture_output=True, text=True).stdout
    sym = {}
    for line in out.splitlines():
        f = line.split()
        if len(f) >= 5 and f[-1].startswith("L_"):
            sym[f[-1]] = int(f[0], 16)
    os.remove(path + ".o")
    return sym


def main():
    out = sys.argv[1] if len(sys.argv) > 1 else f"cdna_kernels/{NAME}.s"
    prev = None
    for it in range(6):
        txt = HEADER.format(name=NAME, lds=LDS_BYTES) + build() + FOOTER.format(name=NAME)
        open(out, "w").write(txt)
        sym = assemble_sizes(out)
        cur = dict(size=sym["L_end"] + 4, qk_tail=sym["L_qk_tail"], pv=sym["L_pv"], pv_tail=sym["L_pv_tail"])
        if cur == prev:
            break
        prev = cur
        CODE.update(cur)
    else:
        raise RuntimeError("code size did not converge")
    print(f"wrote {out}: {txt.count(chr(10))} lines, code {cur}")


if __name__ == "__main__":
    main()
```

```python
import struct
import sys
import os

sys.path.insert(0, os.path.dirname(__file__))
from asmlib import *

NAME = "standalone__gqa_softmax__near_ridge"
ENV = os.environ.get
SH = int(ENV("SH", "16"))
S16 = SH == 16
NQT = 2 if S16 else 1

QSL = 16896
NQ = 6
POFF = NQ * QSL
OOFF = POFF + 32768
XOFF = OOFF + 16384
LDS_BYTES = XOFF + 2048
KS = 5 * QSL
P2OFF = QSL
assert KS + 65536 <= XOFF and LDS_BYTES <= 163840

AF = 0
ACC = [128, 160]
FB = 192
NB = 8
VL = 255
PK = 224
XVA, XVB = 232, 224
MC, LSUM, LMAX = [240, 241], [242, 243], [244, 245]
T0, T1 = 246, 247
VQ, VQB, VPW, VXW, VXRQ = 249, 250, 251, 252, 253
ACC2 = 208
XV = 240
if S16:
    INV = [[244, 245], [246, 247]]
    VOW = [248, 254]
else:
    INV = [[244], [245]]
    VOW = [246, 247, 248, 254]
VQD, VPR, VXRP, VOR, VOS = 249, 250, 251, 252, 253

DIAG = int(ENV("DIAG", "0"))
DG = {"v": 238, "t": 239}

SRD_A, SRD_Q, SRD_O = 4, 8, 12
SPTR = 20
SW, SWW = 28, 29
SQSO, SQM0, SQRD, SOSO, STICK, SC, ST0, ST1, ST2 = 30, 31, 32, 33, 34, 35, 36, 37, 38
SMASK = 40
SQE, SOE, SQB, SQLIM = 42, 43, 44, 45
STM = 46
SRD_W = 48
SDL = 52
ST3 = 53
SROT = 54
SQP, SOP = 55, 58

C_SCALE = 1.4426950408889634 / 16.0
LD_MODS = ENV("LD_MODS", " nt")
ST_MODS = ENV("ST_MODS", " nt")
STM_STATE = {"m": ST_MODS}
LA = int(ENV("LA", "5"))
ROT = int(ENV("ROT", "0"))
THR = int(ENV("THR", "0"))
_thr = [0]


def throttle(a):
    if not THR:
        return
    _thr[0] += 1
    a(raw(f"s_cbranch_vccz L_thr{_thr[0]}", "branch"))
    a(raw(f"s_waitcnt vmcnt({THR})", "wait0"))
    a(label(f"L_thr{_thr[0]}"))

NM = 4 if S16 else 2
NSL = 16 * NM


def f32bits(x):
    return struct.unpack("<I", struct.pack("<f", x))[0]


def stamp(lane, real=False):
    if not DIAG:
        return []
    vd, vt = DG["v"], DG["t"]
    op = "s_memrealtime" if real else "s_memtime"
    o = [raw(f"{op} {sr(STM, 2)}", "smem", wr=S(STM, 2)), waitcnt(lgkm=0)]
    if isinstance(lane, int):
        o.append(I(f"v_writelane_b32 v{vd}, s{STM}, {lane}", "valu", S(STM), V(vd)))
    else:
        o.append(I(f"v_cmp_eq_u32 vcc, s{lane[1]}, v{VL}", "valu", V(VL), []))
        o.append(valu("v_mov_b32", v(vt), s(STM)))
        o.append(nop(2))
        o.append(I(f"v_cndmask_b32 v{vd}, v{vd}, v{vt}, vcc", "valu", V(vd) + V(vt), V(vd)))
    return o


def tick_stamps():
    if DIAG != 1:
        return []
    return stamp(s(STICK)) + [salu("s_add_u32", s(SDL), s(STICK), 20)] + stamp(s(SDL), True)


def diag_end():
    if not DIAG:
        return []
    vd, vt = DG["v"], DG["t"]
    o = stamp(62) + stamp(63, True) + [I(f"v_writelane_b32 v{vd}, s59, 39", "valu", S(59), V(vd))]
    o += [
        raw(f"s_load_dwordx2 {sr(SRD_W, 2)}, s[0:1], 40", "smem", wr=S(SRD_W, 2)),
        waitcnt(lgkm=0),
        salu("s_mov_b32", s(SRD_W + 2), 256 * 8 * 256),
        salu("s_mov_b32", s(SRD_W + 3), "0x00020000"),
        salu("s_lshl_b32", s(ST0), s(2), 3),
        salu("s_add_u32", s(ST0), s(ST0), s(SW)),
        salu("s_lshl_b32", s(ST0), s(ST0), 8),
        valu("v_lshlrev_b32", v(vt), 2, v(VL)),
        raw(f"buffer_store_dword v{vd}, v{vt}, {sr(SRD_W, 4)}, s{ST0} offen", "vmem_st", rd=V(vd) + V(vt)),
    ]
    return o


def srd(a, base, ptr, off, size):
    a(salu("s_add_u32", s(base), s(ptr), s(off)))
    a(salu("s_addc_u32", s(base + 1), s(ptr + 1), 0))
    a(salu("s_and_b32", s(base + 1), s(base + 1), "0xffff"))
    a(salu("s_mov_b32", s(base + 2), size))
    a(salu("s_mov_b32", s(base + 3), "0x00020000"))


def mm(d, a_, b_, first):
    return (mfma16 if S16 else mfma)(d, a_, b_, None if first else d)


def frag_mfmas(f, acc, buf):
    if S16:
        kstep, qt = f >> 1, f & 1
        return [(acc + 16 * qt + 4 * t, AF + 4 * (8 * t + kstep), kstep == 0) for t in range(4)]
    return [(acc + 16 * t, AF + 4 * (16 * t + f), f == 0) for t in range(2)]


tq, th, tA, tB, tC, tc16, tg = 128, 129, 130, 131, 132, 140, 141


def common_head():
    p = []
    a = p.append
    a(scmp("s_cmp_ge_u32", s(2), 256))
    a(raw("s_cbranch_scc1 L_end", "branch"))
    if THR:
        a(raw("s_getreg_b32 s3, hwreg(HW_REG_XCC_ID, 0, 4)", "salu", wr=S(3)))
        a(salu("s_and_b32", s(3), s(3), 1))
        a(salu("s_xor_b32", s(3), s(3), 1 - int(ENV("THR_PAR", "0"))))
        a(raw("s_mov_b32 vcc_lo, s3", "salu", rd=S(3)))
        a(raw("s_mov_b32 vcc_hi, 0", "salu"))
    if DIAG:
        a(raw("s_getreg_b32 s59, hwreg(HW_REG_XCC_ID, 0, 4)", "salu", wr=S(59)))
    a(salu("s_and_b32", s(3), s(2), 7))
    a(salu("s_lshl_b32", s(3), s(3), 5))
    a(salu("s_lshr_b32", s(2), s(2), 3))
    a(salu("s_add_u32", s(2), s(2), s(3)))
    if DIAG:
        DG["v"] = 243
        a(valu("v_mov_b32", v(DG["v"]), 0))
        p.extend(stamp(60, True))
        p.extend(stamp(61))
    a(raw(f"s_load_dwordx4 {sr(SPTR, 4)}, s[0:1], 0", "smem", wr=S(SPTR, 4)))
    a(raw(f"s_load_dwordx4 {sr(SPTR + 4, 4)}, s[0:1], 16", "smem", wr=S(SPTR + 4, 4)))
    a(valu("v_and_b32", v(VL), 63, v(0)))
    a(valu("v_lshrrev_b32", v(tA), 6, v(0)))
    a(rfl(SW, tA))
    a(valu("v_and_b32", v(tq), 31, v(VL)))
    a(valu("v_lshrrev_b32", v(th), 5, v(VL)))
    a(salu("s_and_b32", s(SWW), s(SW), 3))
    a(salu("s_lshl_b32", s(ST0), s(2), 18))
    a(salu("s_lshl_b32", s(ST1), s(2), 17))
    a(salu("s_lshl_b32", s(ST2), s(SWW), 12))
    a(valu("v_xor_b32", v(tA), v(tq), v(th)))
    a(valu("v_lshlrev_b32", v(tA), 4, v(tA)))
    a(valu("v_lshl_add_u32", v(tA), v(th), 9, v(tA)))
    a(valu("v_add_u32", v(VQD), s(ST2), v(tA)))
    a(salu("s_mul_i32", s(SQB), s(SWW), 4 * 1056))
    if ROT:
        a(salu("s_mul_i32", s(SROT), s(2), ROT))
        a(salu("s_and_b32", s(SROT), s(SROT), 15))
        a(salu("s_lshl_b32", s(SROT), s(SROT), 14))
    a(raw("s_waitcnt lgkmcnt(0)", "wait0"))
    srd(a, SRD_Q, SPTR + 0, ST0, 262144)
    a(scmp("s_cmp_ge_u32", s(SW), 4))
    a(raw("s_cbranch_scc1 L_pv", "branch"))
    return p


SPC = 56
CODE = {"size": 0, "qk_tail": 0, "pv": 0, "pv_tail": 0}


def code_base(tag):
    return [
        raw(f"s_getpc_b64 {sr(SPC, 2)}", "salu", wr=S(SPC, 2)),
        label(f"L_pc_{tag}"),
        raw(f"s_sub_u32 s{SPC}, s{SPC}, L_pc_{tag}-{NAME}_kernel", "salu", rd=S(SPC), wr=S(SPC)),
        raw(f"s_subb_u32 s{SPC + 1}, s{SPC + 1}, 0", "salu", rd=S(SPC + 1), wr=S(SPC + 1)),
    ]


def code_touch(lo, hi, vaddr, vdst, vl64):
    o = []
    if not int(ENV("CPF", "1")) or hi <= lo:
        return o
    lo &= ~63
    while lo < hi:
        o.append(valu("v_add_u32", v(vaddr), lo, v(vl64)))
        if lo + 4096 > hi:
            o.append(valu("v_min_u32", v(vaddr), (hi - 4) & ~3, v(vaddr)))
        o.append(raw(f"global_load_dword v{vdst}, v{vaddr}, {sr(SPC, 2)}", "vmem_ld", rd=V(vaddr) + S(SPC, 2), wr=[]))
        lo += 4096
    return o


def qload(a, blk):
    throttle(a)
    if ROT:
        a(salu("s_add_u32", s(SQP), s(SROT), blk * 16384))
        a(salu("s_and_b32", s(SQP), s(SQP), 262143))
    for n in range(4):
        a(salu("s_add_u32", "m0", s(SQB), (blk % NQ) * QSL + n * 1056))
        if ROT:
            a(salu("s_add_u32", s(ST2), s(SQP), n * 1024))
        else:
            a(salu("s_mov_b32", s(ST2), blk * 16384 + n * 1024))
        a(buf_lds(VQD, SRD_Q, s(ST2), LD_MODS))


def qk_prologue():
    p = []
    a = p.append
    vKe, vKo, vKA = 133, 134, 136
    srd(a, SRD_A, SPTR + 2, ST1, 131072)
    a(valu("v_lshrrev_b32", v(tA), 3, v(VL)))
    a(valu("v_lshlrev_b32", v(tA), 9, v(tA)))
    a(valu("v_and_b32", v(tB), 7, v(VL)))
    a(valu("v_lshrrev_b32", v(tC), 4, v(VL)))
    a(valu("v_xor_b32", v(tB), v(tB), v(tC)))
    a(valu("v_lshl_add_u32", v(vKe), v(tB), 4, v(tA)))
    a(valu("v_xor_b32", v(vKo), 64, v(vKe)))
    a(salu("s_lshl_b32", s(ST0), s(SWW), 15))
    a(salu("s_lshl_b32", s(ST1), s(SWW), 14))
    a(salu("s_add_u32", s(ST1), s(ST1), KS))

    def kload(j):
        u, dq = j >> 2, j & 3
        throttle(a)
        for n in range(4):
            a(salu("s_add_u32", "m0", s(ST1), (j & 3) * 4096 + n * 1024))
            a(salu("s_add_u32", s(ST2), s(ST0), u * 16384 + n * 4096 + dq * 128))
            a(buf_lds(vKo if n & 1 else vKe, SRD_A, s(ST2), LD_MODS))

    IW = int(ENV("INITW", "4"))
    for j in range(IW):
        kload(j)
    if IW == 4:
        qload(a, 0)
    if DIAG:
        a(valu("v_mov_b32", v(238), v(DG["v"])))
        DG["v"] = 238
    p.extend(stamp(51))
    a(raw(f"s_setprio {ENV('QK_PRIO', '1')}", "salu"))
    a(valu("v_and_b32", v(tc16), 15, v(VL)))
    a(valu("v_lshrrev_b32", v(tg), 4, v(VL)))
    if S16:
        a(valu("v_lshrrev_b32", v(tA), 1, v(tc16)))
        a(valu("v_xor_b32", v(tA), v(tA), v(tg)))
        a(valu("v_lshlrev_b32", v(tA), 4, v(tA)))
        a(valu("v_lshl_add_u32", v(tA), v(tc16), 7, v(tA)))
        a(valu("v_xor_b32", v(tB), 64, v(tA)))
        a(valu("v_add_u32", v(vKA), s(ST1), v(tA)))
        a(valu("v_add_u32", v(vKA + 1), s(ST1), v(tB)))
        a(valu("v_lshrrev_b32", v(tA), 1, v(tc16)))
        a(valu("v_mul_u32_u24", v(tA), 1056, v(tA)))
        a(valu("v_and_b32", v(tB), 1, v(tc16)))
        a(valu("v_lshl_add_u32", v(tA), v(tB), 9, v(tA)))
        a(valu("v_xor_b32", v(tB), v(tB), v(tg)))
        a(valu("v_lshl_add_u32", v(VQB), v(tB), 4, v(tA)))
        a(valu("v_lshlrev_b32", v(tA), 4, v(tc16)))
        a(valu("v_add_u32", v(VXRQ), XOFF, v(tA)))
        a(valu("v_and_b32", v(tB), 1, v(tg)))
        a(valu("v_lshl_add_u32", v(tA), v(tB), 9, v(VXRQ)))
        a(valu("v_lshl_add_u32", v(tA), v(th), 8, v(tA)))
        a(valu("v_lshlrev_b32", v(tB), 1, v(tB)))
        a(valu("v_lshrrev_b32", v(tC), 3, v(tc16)))
        a(valu("v_xor_b32", v(tB), v(tB), v(tC)))
        a(valu("v_xor_b32", v(tB), s(SWW), v(tB)))
        a(valu("v_lshl_add_u32", v(VXW), v(tB), 2, v(tA)))
        a(salu("s_mov_b32", s(SMASK), "0x0000ffff"))
        a(salu("s_mov_b32", s(SMASK + 1), "0x0000ffff"))
    else:
        a(valu("v_bfe_u32", v(tA), v(tq), 1, 3))
        a(valu("v_xor_b32", v(tA), v(tA), v(th)))
        a(valu("v_lshlrev_b32", v(tA), 4, v(tA)))
        a(valu("v_lshl_add_u32", v(tA), v(tq), 7, v(tA)))
        for k in range(4):
            a(valu("v_xor_b32", v(tB), 32 * k, v(tA)))
            a(valu("v_add_u32", v(vKA + k), s(ST1), v(tB)))
        a(valu("v_lshrrev_b32", v(tA), 1, v(tq)))
        a(valu("v_mul_u32_u24", v(tA), 1056, v(tA)))
        a(valu("v_and_b32", v(tB), 1, v(tq)))
        a(valu("v_lshl_add_u32", v(tA), v(tB), 9, v(tA)))
        a(valu("v_xor_b32", v(tB), v(tB), v(th)))
        a(valu("v_lshl_add_u32", v(VQB), v(tB), 4, v(tA)))
        a(valu("v_lshlrev_b32", v(tA), 4, v(tq)))
        a(valu("v_add_u32", v(VXRQ), XOFF, v(tA)))
        a(valu("v_lshl_add_u32", v(tA), v(th), 9, v(VXRQ)))
        a(valu("v_lshrrev_b32", v(tB), 3, v(tq)))
        a(valu("v_xor_b32", v(tB), s(SWW), v(tB)))
        a(valu("v_lshl_add_u32", v(VXW), v(tB), 2, v(tA)))
        a(salu("s_mov_b32", s(SMASK), -1))
        a(salu("s_mov_b32", s(SMASK + 1), 0))
    a(salu("s_lshl_b32", s(ST2), s(SWW), 12))
    a(salu("s_add_u32", s(ST2), s(ST2), POFF))
    a(valu("v_lshlrev_b32", v(tA), 4, v(VL)))
    a(valu("v_add_u32", v(VPW), s(ST2), v(tA)))
    a(salu("s_mov_b32", s(SC), hex(f32bits(C_SCALE))))
    a(salu("s_mov_b32", s(SQRD), 0))
    a(salu("s_mov_b32", s(STICK), 0))

    def kfrags(j):
        u, dq = j >> 2, j & 3
        if S16:
            for aa in range(2):
                for b in range(2):
                    a(ds_read("ds_read_b128", AF + 4 * (8 * (2 * u + aa) + 2 * dq + b), 4, vKA + b,
                              (j & 3) * 4096 + 2048 * aa))
        else:
            for k in range(4):
                a(ds_read("ds_read_b128", AF + 4 * (16 * u + 4 * dq + k), 4, vKA + k, (j & 3) * 4096))

    for j in range(4):
        if j == 0 and IW < 4:
            a(waitcnt(vm=4 * (IW - 1)))
            for jj in range(IW, 4):
                kload(jj)
            kfrags(0)
            a(waitcnt(lgkm=0))
            kload(4)
            qload(a, 0)
            continue
        a(waitcnt(vm=16))
        kfrags(j)
        a(waitcnt(lgkm=0))
        kload(4 + j)
    qload(a, 1)
    qload(a, 2)
    a(valu("v_mov_b32", v(VQ), v(VQB)))
    p.extend(stamp(40))
    a(barrier())
    for j, w in zip(range(4, 8), (20 if IW == 4 else 24, 16, 12, 8)):
        a(waitcnt(vm=w))
        kfrags(j)
    a(waitcnt(lgkm=0))
    p.extend(stamp(48))
    a(barrier())
    p.extend(stamp(49))
    p.extend(stamp(59, True))
    return p


def q_frag(f):
    f2 = f % 16
    off = (f2 & 1) * 8 * 1056 + 64 * (f2 >> 1) if S16 else 32 * f2
    return ds_read("ds_read_b128", FB + 4 * (f % NB), 4, VQ, off)


def qk_tick(par, doA=True, doB=True, prefetch=True, pub=True, keepmax=False, nin=None, keepsum=False):
    Sc, Sn = ACC[par], ACC[1 - par]
    slots = [[] for _ in range(NSL + 1)]
    pre, post = [], []
    if doB:
        X = []
        for qt in range(NQT):
            xv = (XVA, XVB)[qt]
            pre.append(ds_read("ds_read_b128", xv, 4, VXRQ, (1 - par) * 1024 + 256 * qt))
            X += [
                valu("v_max3_f32", v(T0), v(xv), v(xv + 1), v(xv + 2)),
                valu("v_max_f32", v(T0), v(T0), v(xv + 3)),
                valu("v_mul_f32", v(MC[qt]), s(SC), v(T0)),
            ]
        seq = []
        for pr in range(16):
            qt = (pr >> 3) if S16 else 0
            r0, r1 = Sc + 2 * pr, Sc + 2 * pr + 1
            g = [
                valu("v_fma_f32", v(r0), v(r0), s(SC), ("neg", v(MC[qt]))),
                valu("v_fma_f32", v(r1), v(r1), s(SC), ("neg", v(MC[qt]))),
                valu("v_exp_f32", v(r0), v(r0)),
                valu("v_exp_f32", v(r1), v(r1)),
            ]
            g2 = []
            if pr == 0 or (S16 and pr == 8):
                g2.append(valu("v_add_f32", v(LSUM[qt]), v(r0), v(r1)))
            else:
                g2.append(valu("v_add_f32", v(LSUM[qt]), v(LSUM[qt]), v(r0)))
                g2.append(valu("v_add_f32", v(LSUM[qt]), v(LSUM[qt]), v(r1)))
            g2.append(valu("v_cvt_pk_bf16_f32", v(PK + pr % 8), v(r0), v(r1)))
            if pr % 4 == 3:
                gi = pr >> 2
                fi = (2 * (gi & 1) + (gi >> 1)) if S16 else gi
                g2.append(ds_write("ds_write_b128", VPW, PK + (pr - 3) % 8, 4, par * 16384 + fi * 1024))
            seq.append((g, g2))
        flat = []
        for pr in range(16):
            flat.append(seq[pr][0][:2])
            flat.append(seq[pr][0][2:])
            if pr > 0:
                flat[-2] = flat[-2] + seq[pr - 1][1]
        flat.append(seq[15][1])
        if doA:
            nin = int(ENV("QK_IN", "8")) if nin is None else nin
            lo = NSL // 8
            slots[lo - 1] += X
            for k, grp in enumerate(flat[:nin]):
                slots[lo + k * (NSL - lo - 2) // max(nin, 1)] += grp
            post = sum(flat[nin:], [])
        else:
            post = X + sum(flat, [])
    elif pub and not keepsum:
        for qt in range(NQT):
            pre.append(valu("v_mov_b32", v(LSUM[qt]), 0))
    M = []
    if doA:
        if S16:
            for k in range(8):
                for qt in range(2):
                    b, lm = Sn + 16 * qt, LMAX[qt]
                    if k == 0:
                        M.append(valu("v_max3_f32", v(lm), v(b), v(b + 1), v(b + 2)))
                    elif k < 7:
                        M.append(valu("v_max3_f32", v(lm), v(lm), v(b + 1 + 2 * k), v(b + 2 + 2 * k)))
                    else:
                        M.append(valu("v_max_f32", v(lm), v(lm), v(b + 15)))
        else:
            lm = LMAX[0]
            M.append(valu("v_max3_f32", v(lm), v(Sn), v(Sn + 1), v(Sn + 2)))
            M.append(valu("v_max3_f32", v(T1), v(Sn + 16), v(Sn + 17), v(Sn + 18)))
            for k in range(6):
                M.append(valu("v_max3_f32", v(lm), v(lm), v(Sn + 3 + 2 * k), v(Sn + 4 + 2 * k)))
                M.append(valu("v_max3_f32", v(T1), v(T1), v(Sn + 19 + 2 * k), v(Sn + 20 + 2 * k)))
            M.append(valu("v_max3_f32", v(lm), v(lm), v(Sn + 15), v(Sn + 31)))
            M.append(valu("v_max_f32", v(lm), v(lm), v(T1)))
    elif not keepmax:
        for qt in range(NQT):
            M.append(valu("v_mov_b32", v(LMAX[qt]), 0))
    if S16:
        PUB = [
            perm32swap(LMAX[0], LMAX[1]),
            perm32swap(LSUM[0], LSUM[1]),
            valu("v_max_f32", v(LMAX[0]), v(LMAX[0]), v(LMAX[1])),
            valu("v_add_f32", v(LSUM[0]), v(LSUM[0]), v(LSUM[1])),
            perm16swap(LMAX[0], LSUM[0]),
        ]
    else:
        PUB = [perm32swap(LMAX[0], LSUM[0])]
    PUB += [
        valu("v_max_f32", v(T0), v(LMAX[0]), v(LSUM[0])),
        valu("v_add_f32", v(T1), v(LMAX[0]), v(LSUM[0])),
        valu("v_cndmask_b32", v(T0), v(T1), v(T0), s(SMASK, 2)),
        ds_write("ds_write_b32", VXW, T0, 1, par * 1024),
    ]
    QUPD = [
        salu("s_add_u32", s(SQRD), s(SQRD), QSL),
        scmp("s_cmp_eq_u32", s(SQRD), NQ * QSL),
        salu("s_cselect_b32", s(SQRD), 0, s(SQRD)),
        valu("v_add_u32", v(VQ), s(SQRD), v(VQB)),
    ]
    out = list(pre)
    if doA:
        i = 0
        for f in range(16):
            for k, (d, a_, first) in enumerate(frag_mfmas(f, Sn, 0)):
                out.append(mm(d, a_, FB + 4 * (f % NB), first))
                if k == NM - 1:
                    nf = f + LA
                    if nf == 16:
                        out += QUPD
                    if nf < 16 or prefetch:
                        out.append(q_frag(nf))
                out += slots[i]
                i += 1
    if DIAG == 3 and doA and doB and nin == int(ENV("QK_IN", "8")):
        out = stamp(10) + out + stamp(11)
    k = min(len(post), 14) if doA else 0
    out += post[:k]
    rest = post[k:]
    mi = 0
    for j, ins in enumerate(rest):
        out.append(ins)
        if j % 3 == 2 and mi < len(M):
            out.append(M[mi]); mi += 1
    out += M[mi:] + (PUB if pub else [])
    if DIAG == 3 and doA and doB and nin == int(ENV("QK_IN", "8")):
        out += stamp(12)
    return out


def pv_addr_late(a):
    x0, x1, x2 = FB, FB + 1, FB + 2
    a(valu("v_lshrrev_b32", v(x0), 3, v(VL)))
    a(valu("v_and_b32", v(x1), 7, v(VL)))
    a(valu("v_xor_b32", v(x1), v(x0), v(x1)))
    a(valu("v_lshlrev_b32", v(x1), 4, v(x1)))
    a(valu("v_lshl_add_u32", v(x1), v(x0), 7, v(x1)))
    a(valu("v_add_u32", v(VOR), s(ST0), v(x1)))
    if S16:
        a(valu("v_and_b32", v(x0), 15, v(VL)))
        a(valu("v_lshrrev_b32", v(x1), 4, v(VL)))
        a(valu("v_lshlrev_b32", v(x1), 1, v(x1)))
        a(valu("v_and_b32", v(x2), 7, v(x0)))
        a(valu("v_xor_b32", v(x1), v(x1), v(x2)))
        a(valu("v_lshlrev_b32", v(x1), 4, v(x1)))
        a(valu("v_lshl_add_u32", v(x1), v(x0), 7, v(x1)))
        a(valu("v_xor_b32", v(x2), 16, v(x1)))
        a(valu("v_add_u32", v(VOW[0]), s(ST0), v(x1)))
        a(valu("v_add_u32", v(VOW[1]), s(ST0), v(x2)))
    else:
        a(valu("v_and_b32", v(x0), 31, v(VL)))
        a(valu("v_lshrrev_b32", v(x1), 5, v(VL)))
        a(valu("v_lshlrev_b32", v(x1), 1, v(x1)))
        a(valu("v_and_b32", v(x2), 7, v(x0)))
        a(valu("v_xor_b32", v(x1), v(x1), v(x2)))
        a(valu("v_lshlrev_b32", v(x1), 4, v(x1)))
        a(valu("v_lshl_add_u32", v(x1), v(x0), 7, v(x1)))
        for c in range(4):
            a(valu("v_xor_b32", v(x2), 64 * (c >> 1) + 16 * (c & 1), v(x1)))
            a(valu("v_add_u32", v(VOW[c]), s(ST0), v(x2)))


def pv_X(slot, inv, xv):
    rd, va = [], []
    for qt in range(NQT):
        x = xv[qt]
        rd.append(ds_read("ds_read_b128", x, 4, VXRP, slot * 1024 + 256 * qt))
        va += [
            valu("v_add_f32", v(x), v(x), v(x + 1)),
            valu("v_add_f32", v(x + 2), v(x + 2), v(x + 3)),
            valu("v_add_f32", v(x), v(x), v(x + 2)),
            valu("v_rcp_f32", v(inv[qt]), v(x)),
        ]
    return rd, va


def pv_E(O, inv, VOW=VOW):
    E = []
    for c in range(4):
        b = O + 8 * c
        iv = inv[c >> 1] if S16 else inv[0]
        for r in range(8):
            E.append(valu("v_mul_f32", v(b + r), v(b + r), v(iv)))
        for r in range(4):
            E.append(valu("v_cvt_pk_bf16_f32", v(b + r), v(b + 2 * r), v(b + 2 * r + 1)))
        if S16:
            E.append(ds_write("ds_write_b128", VOW[c & 1], b, 4, 2048 * (c >> 1)))
        else:
            E.append(ds_write("ds_write_b128", VOW[c], b, 4))
    return E


def pv_D(O, VOR=VOR):
    hdr = [salu("s_mov_b32", s(SOE), s(SOSO)), salu("s_add_u32", s(SOSO), s(SOSO), 16384)]
    if ROT:
        hdr = [salu("s_add_u32", s(SOE), s(SOSO), s(SROT)), salu("s_and_b32", s(SOE), s(SOE), 262143),
               salu("s_add_u32", s(SOSO), s(SOSO), 16384)]
    rd = [ds_read("ds_read_b128", O + 8 * n + 4, 4, VOR, 1024 * n) for n in range(4)]
    st = []
    for n in range(4):
        g = [buf_store(O + 8 * n + 4, VOS, SRD_O, s(SOE), STM_STATE["m"])]
        if n < 3:
            g.append(salu("s_add_u32", s(SOE), s(SOE), 4096))
        st.append(g)
    return hdr, rd, st


def pv_ED(O, inv):
    hdr, rd, st = pv_D(O)
    return pv_E(O, inv) + hdr + rd + sum(st, [])


def pv_prologue():
    p = []
    a = p.append
    DG["v"] = 243
    vVD, vB0, vB1, vT0, vT1, vP2 = VOR, VOW[0], VOW[1], XV, XV + 1, XV + 2
    inv0 = INV[0]
    if int(ENV("CPF", "1")):
        a(salu("s_and_b32", s(ST3), s(2), 31))
        a(salu("s_lshl_b32", s(ST3), s(ST3), 3))
        a(salu("s_add_u32", s(ST3), s(ST3), s(SW)))
        a(scmp("s_cmp_lg_u32", s(ST3), 4 + 8 * int(ENV("CPF_WG", "5"))))
        a(raw("s_cbranch_scc1 L_nocpf", "branch"))
        p.extend(code_base("pv"))
        a(valu("v_lshlrev_b32", v(AF + 125), 6, v(VL)))
        p.extend(code_touch(int(ENV("CPF_LO", "1024")), CODE["size"], AF + 126, AF + 127, AF + 125))
        a(label("L_nocpf"))
    srd(a, SRD_A, SPTR + 4, ST1, 131072)
    srd(a, SRD_O, SPTR + 6, ST0, 0)
    a(salu("s_lshl_b32", s(ST2), s(SWW), 7))
    a(valu("v_lshrrev_b32", v(tA), 3, v(VL)))
    a(valu("v_and_b32", v(tB), 7, v(VL)))
    a(valu("v_lshlrev_b32", v(tC), 9, v(tA)))
    a(valu("v_lshl_add_u32", v(tC), v(tB), 4, v(tC)))
    a(valu("v_add_u32", v(VOS), s(ST2), v(tC)))
    a(valu("v_bfe_u32", v(tC), v(VL), 4, 1))
    a(valu("v_lshlrev_b32", v(tC), 4 if S16 else 6, v(tC)))
    a(valu("v_xor_b32", v(vVD), v(tC), v(VOS)))
    a(salu("s_lshl_b32", s(ST0), s(SWW), 12))
    a(salu("s_add_u32", s(ST0), s(ST0), OOFF))
    a(valu("v_lshlrev_b32", v(tA), 4, v(VL)))
    a(valu("v_add_u32", v(VPR), POFF, v(tA)))
    a(valu("v_add_u32", v(vP2), P2OFF, v(tA)))
    a(valu("v_and_b32", v(tA), 15 if S16 else 31, v(VL)))
    a(valu("v_lshlrev_b32", v(tA), 4, v(tA)))
    a(valu("v_add_u32", v(VXRP), XOFF + 512, v(tA)))
    if S16:
        a(valu("v_lshrrev_b32", v(tA), 2, v(VL)))
        a(valu("v_lshlrev_b32", v(tA), 7, v(tA)))
        a(valu("v_and_b32", v(tB), 3, v(VL)))
        a(valu("v_lshl_add_u32", v(tA), v(tB), 5, v(tA)))
        a(valu("v_bfe_u32", v(tB), v(VL), 3, 1))
        a(valu("v_lshl_add_u32", v(vB0), v(tB), 4, v(tA)))
        a(valu("v_xor_b32", v(vB1), 16, v(vB0)))
    else:
        a(valu("v_bfe_u32", v(tA), v(VL), 2, 2))
        a(valu("v_lshl_add_u32", v(tA), v(th), 2, v(tA)))
        a(valu("v_lshlrev_b32", v(tA), 7, v(tA)))
        a(valu("v_bfe_u32", v(tB), v(VL), 3, 1))
        a(valu("v_lshl_add_u32", v(tA), v(tB), 6, v(tA)))
        a(valu("v_and_b32", v(tB), 1, v(VL)))
        a(valu("v_lshl_add_u32", v(tA), v(tB), 5, v(tA)))
        a(valu("v_bfe_u32", v(tB), v(VL), 4, 1))
        a(valu("v_lshl_add_u32", v(tA), v(tB), 4, v(tA)))
        a(valu("v_bfe_u32", v(tB), v(VL), 1, 1))
        a(valu("v_lshl_add_u32", v(vB0), v(tB), 3, v(tA)))
        a(valu("v_xor_b32", v(vB1), 64, v(vB0)))
    a(salu("s_mov_b32", s(SQSO), 10 * 16384))
    a(salu("s_add_u32", s(SQM0), s(SQB), 4 * QSL))
    a(salu("s_add_u32", s(SQLIM), s(SQB), NQ * QSL))
    a(salu("s_mov_b32", s(SOSO), 0))
    a(salu("s_mov_b32", s(STICK), 5))
    VLOC = {0: 3, 1: 4, 2: 5, 3: "o", 4: 0, 5: 2, 6: "o", 7: 0}

    def vdest(j):
        loc = VLOC[j]
        return (ST0, 0) if loc == "o" else (SQB, loc * QSL)

    def vload(j):
        sb, off = vdest(j)
        throttle(a)
        for n in range(4):
            a(salu("s_add_u32", "m0", s(sb), off + n * 1024))
            a(salu("s_mov_b32", s(ST2), (32 * j + 8 * n) * 512))
            a(buf_lds(vVD, SRD_A, s(ST2), LD_MODS))

    accs = [ACC2, ACC[1], ACC[0]]
    inited = set()

    def vfrag(j):
        sb, off = vdest(j)
        a(salu("s_add_u32", s(ST3), s(sb), off))
        a(valu("v_add_u32", v(vT0), s(ST3), v(vB0)))
        a(valu("v_add_u32", v(vT1), s(ST3), v(vB1)))
        if S16:
            for dt in range(4):
                for aa in range(2):
                    a(ds_read("ds_read_b64_tr_b16", AF + 4 * (8 * dt + j) + 2 * aa, 2, (vT0, vT1)[dt >> 1],
                              16 * aa * 128 + 8 * (dt & 1)))
        else:
            for b in range(2):
                for dt in range(2):
                    for aa in range(2):
                        a(ds_read("ds_read_b64_tr_b16", AF + 4 * (16 * dt + 2 * j + b) + 2 * aa, 2, (vT0, vT1)[dt],
                                  (16 * b + 8 * aa) * 128))
        a(waitcnt(lgkm=0))
        p.extend(stamp(41 + j))

    def vmm(j):
        def pf(blk, b):
            buf = FB + 4 * ((2 * blk + b) % 4)
            if blk < 2:
                return ds_read("ds_read_b128", buf, 4, VPR, blk * 16384 + (2 * j + b) * 1024)
            return ds_read("ds_read_b128", buf, 4, vP2, (2 * j + b) * 1024)

        for blk in range(2):
            for b in range(2):
                a(pf(blk, b))
        for blk in range(3):
            for b in range(2):
                buf = FB + 4 * ((2 * blk + b) % 4)
                for (d, a_, _) in frag_mfmas(2 * j + b, accs[blk], 0):
                    a(mm(d, a_, buf, d not in inited))
                    inited.add(d)
                if blk == 0:
                    a(pf(2, b))

    def dummy_st():
        for _ in range(4):
            a(buf_store(AF, VOS, SRD_O, 0))

    p.extend(stamp(51))
    a(raw(f"s_setprio {ENV('PV_PRIO', '0')}", "salu"))
    a(barrier())
    vload(0); vload(1)
    a(barrier())
    p.extend(stamp(49))
    p.extend(stamp(59, True))
    vload(2); vload(3)
    a(barrier())
    vload(4)
    a(waitcnt(vm=16)); vfrag(0); qload(a, 3)
    a(barrier())
    rd, va = pv_X(0, inv0, [FB, FB + 4])
    p.extend(rd + va)
    a(waitcnt(vm=16)); vfrag(1); qload(a, 4)
    a(barrier())
    vload(5)
    rd, va = pv_X(1, INV[1], [FB, FB + 4])
    p.extend(rd + va)
    a(waitcnt(vm=20)); vfrag(2)
    a(barrier())
    a(waitcnt(vm=16)); vfrag(3); vload(6)
    vmm(0); vmm(1)
    a(waitcnt(vm=16)); vfrag(4); vload(7); qload(a, 5)
    vmm(2)
    a(waitcnt(vm=20))
    a(barrier())
    vmm(3); vmm(4)
    a(waitcnt(vm=16))
    a(barrier())
    qload(a, 9)
    a(waitcnt(vm=16)); vfrag(5); qload(a, 8); vmm(5)
    a(waitcnt(vm=16)); vfrag(6); vmm(6)
    a(waitcnt(vm=12)); vfrag(7); qload(a, 6); vmm(7)
    a(waitcnt(vm=12))
    a(barrier())
    p.extend(stamp(52))
    pv_addr_late(a)
    if ENV("EPH", "1") == "1":
        E0 = pv_E(ACC2, inv0)
        h0, r0, s0 = pv_D(ACC2)
        qload(a, 7)
        p.extend(E0 + r0)
        rd, va = pv_X(0, INV[0], [FB + 12, FB + 0])
        p.extend(rd + va)
        p.extend(stamp(56))
        a(waitcnt(lgkm=0))
        a(barrier())
        a(salu("s_mov_b32", s(SRD_O + 2), 262144))
        E1 = pv_E(ACC[1], INV[1])
        h1, r1, s1 = pv_D(ACC[1])
        p.extend(h0)
        for c in range(4):
            p.extend(E1[13 * c:13 * c + 13] + s0[c])
        p.extend(r1 + h1 + sum(s1, []))
    else:
        W2 = [FB + 4 + c for c in range(len(VOW))]
        R2 = FB + 8
        for c in range(len(VOW)):
            a(valu("v_subrev_u32", v(W2[c]), OOFF - POFF, v(VOW[c])))
        a(valu("v_subrev_u32", v(R2), OOFF - POFF, v(VOR)))
        E0 = pv_E(ACC2, inv0)
        E1 = pv_E(ACC[1], INV[1], W2)
        h0, r0, s0 = pv_D(ACC2)
        h1, r1, s1 = pv_D(ACC[1], R2)
        qload(a, 7)
        p.extend(E0 + r0)
        p.extend(E1 + r1)
        rd, va = pv_X(0, INV[0], [FB + 12, FB + 0])
        p.extend(rd + va)
        p.extend(stamp(56))
        a(waitcnt(lgkm=0))
        a(barrier())
        a(salu("s_mov_b32", s(SRD_O + 2), 262144))
        p.extend(h0 + sum(s0, []) + h1 + sum(s1, []))
    if DIAG:
        a(valu("v_mov_b32", v(238), v(DG["v"])))
        DG["v"] = 238
    p.extend(stamp(3) + stamp(23, True))
    return p


def pv_tick(par, mode=None, noq=False):
    Oc = ACC[1 - par]
    slots = [[] for _ in range(NSL + 1)]

    def p_frag(m):
        return ds_read("ds_read_b128", FB + 4 * (m % NB), 4, VPR, (1 - par) * 16384 + m * 1024)

    xrd, X = pv_X(1 - par, INV[1 - par], [XV, 224])
    pre = [p_frag(m) for m in range(LA)] + xrd
    E = pv_E(ACC[par], INV[par])
    hdr, rd, st = pv_D(ACC[par])
    qd, ql, qu = [], [[], [], [], []], []
    if not noq:
        qd = [
            scmp("s_cmp_lt_u32", s(SQSO), 262144),
            salu("s_cselect_b32", s(SRD_Q + 2), 262144, 0),
            salu("s_cselect_b32", s(SQE), s(SQSO), 0),
            salu("s_add_u32", s(SQSO), s(SQSO), 16384),
        ]
        if ROT:
            qd += [salu("s_add_u32", s(SQE), s(SQE), s(SROT)), salu("s_and_b32", s(SQE), s(SQE), 262143)]
        ql = []
        for n in range(4):
            g = [salu("s_add_u32", "m0", s(SQM0), n * 1056)]
            g.append(salu("s_add_u32", s(SQE), s(SQE), 1024) if n else nop(1))
            g.append(buf_lds(VQD, SRD_Q, s(SQE), LD_MODS))
            ql.append(g)
        qu = [
            salu("s_add_u32", s(SQM0), s(SQM0), QSL),
            scmp("s_cmp_eq_u32", s(SQM0), s(SQLIM)),
            salu("s_cselect_b32", s(SQM0), s(SQB), s(SQM0)),
        ]
    mode = mode or ENV("PV_MODE", "1")
    u = NSL // 32
    if mode == "0":
        pre += E[:13] + qd
        rest = E[13:]
        for k, ins in enumerate(rest):
            slots[k * 13 * u // len(rest)].append(ins)
        for n in range(4):
            slots[(1 + 3 * n) * u] += ql[n]
        slots[11 * u] += qu
        slots[13 * u] += X
        slots[14 * u] += rd[:2]
        slots[15 * u] += rd[2:] + hdr
        for n in range(4):
            slots[(18 + 3 * n) * u] += st[n]
    elif ENV("SKIPQ", "1") == "1" and not noq:
        lbl = f"L_pv_nq{par}"
        qd2 = [salu("s_mov_b32", s(SQE), s(SQSO)), salu("s_add_u32", s(SQSO), s(SQSO), 16384)]
        if ROT:
            qd2 += [salu("s_add_u32", s(SQE), s(SQE), s(SROT)), salu("s_and_b32", s(SQE), s(SQE), 262143)]
        pre += E[:26]
        pre += [scmp("s_cmp_gt_u32", s(STICK), 10), raw(f"s_cbranch_scc1 {lbl}", "branch")] + qd2 + sum(ql, []) + qu + [label(lbl)]
        pre += E[26:] + rd + X + hdr + sum(st, [])
    else:
        pre += qd
        for c in range(4):
            pre += E[13 * c:13 * c + 13] + ql[c]
        pre += qu + rd + X + hdr + sum(st, [])
    out = list(pre)
    if DIAG == 3 and not noq:
        out = stamp(10) + out + stamp(11)
    i = 0
    for f in range(16):
        for k, (d, a_, first) in enumerate(frag_mfmas(f, Oc, 0)):
            out.append(mm(d, a_, FB + 4 * (f % NB), first))
            if k == NM - 1 and f + LA < 16:
                out.append(p_frag(f + LA))
            out += slots[i]
            i += 1
    if DIAG == 3 and not noq:
        out += stamp(12)
    return out


def pv_last():
    Oc = ACC[1]
    seq = []
    if S16:
        for qt in range(2):
            for U in range(8):
                seq.append((2 * U + qt, frag_mfmas(2 * U + qt, Oc, 0)))
    else:
        for dt in range(2):
            for m in range(16):
                seq.append((m, [frag_mfmas(m, Oc, 0)[dt]]))
    n = len(seq)

    def p_frag(k):
        return ds_read("ds_read_b128", FB + 4 * (k % NB), 4, VPR, 16384 + seq[k][0] * 1024)

    L2 = 5 if S16 else 7
    xrd, X = pv_X(1, INV[1], [XV, 224])
    pre = [p_frag(k) for k in range(L2)] + xrd
    E14 = pv_E(ACC[0], INV[0])
    hdr, rd, st = pv_D(ACC[0])
    E15 = pv_E(Oc, INV[1])
    hdr2, rd2, st2 = pv_D(Oc)
    slots = [[] for _ in range(33)]
    pre += E14[:13]
    rest = E14[13:]
    for k, ins in enumerate(rest):
        slots[k * 9 // len(rest)].append(ins)
    slots[9] += X + hdr
    slots[10] += rd
    for k in range(4):
        slots[13 + 2 * k] += st[k]
    h = E15[:26]
    for k, ins in enumerate(h):
        slots[21 + k * 10 // len(h)].append(ins)
    out = list(pre)
    cnt = 0
    per = NSL // 32
    for k, (f, ms) in enumerate(seq):
        for j, (d, a_, first) in enumerate(ms):
            out.append(mm(d, a_, FB + 4 * (k % NB), first))
            if j == len(ms) - 1 and k + L2 < n:
                out.append(p_frag(k + L2))
            cnt += 1
            if cnt % per == 0:
                out += slots[cnt // per - 1]
    out += E15[26:] + hdr2 + rd2 + sum(st2, [])
    return out


def finalize(seq, q0=None, hist=None):
    s1, q = insert_lgkm_waits(seq, q0)
    return pad_hazards(s1, hist), q


def build():
    T = []
    _thr[0] = 0
    head, _ = finalize(common_head())
    T.append(render(head))
    inc = [salu("s_add_u32", s(STICK), s(STICK), 1)]

    pro = qk_prologue() + [q_frag(f) for f in range(LA)]
    NE = int(ENV("QK_EARLY_IN", "33"))
    pf = [waitcnt(lgkm=0)] + [q_frag(f) for f in range(LA)]
    np_ = dict(prefetch=False)
    early = qk_tick(1, doB=False, **np_) + [waitcnt(vm=4), barrier()] + tick_stamps() + inc + pf
    early += qk_tick(0, nin=NE, **np_) + [waitcnt(vm=0), barrier()] + tick_stamps() + inc + pf
    early += qk_tick(1, nin=NE, **np_) + [barrier()] + tick_stamps() + inc
    early += [valu("v_subrev_u32", v(VPW), POFF - P2OFF, v(VPW))]
    early += qk_tick(0, doA=False, pub=False, keepmax=True) + [barrier(), barrier()] + pf
    early += [valu("v_add_u32", v(VPW), POFF - P2OFF, v(VPW))]
    early += qk_tick(0, doB=False, keepsum=True, **np_) + [barrier()] + tick_stamps() + inc + pf
    early += qk_tick(1, doB=False, pub=False, **np_) + [barrier()]
    early += qk_tick(1, doA=False, keepmax=True) + [barrier()] + tick_stamps() + pf + inc
    pro, q = finalize(pro + early, None, head[-30:])
    T.append(render(pro))
    b0 = qk_tick(0) + [barrier()] + tick_stamps()
    b1 = qk_tick(1) + [barrier()] + tick_stamps()
    body_a, qa = insert_lgkm_waits(b0, q)
    body_b, qb = insert_lgkm_waits(b1, qa)
    tb, t0 = [i.text for i in qb], [i.text for i in q]
    assert DIAG or t0[len(t0) - len(tb):] == tb, (t0, tb)
    mid = [scmp("s_cmp_eq_u32", s(STICK), 15), raw("s_cbranch_scc1 L_qk_tail", "branch"),
           scmp("s_cmp_lg_u32", s(STICK), 5), raw("s_cbranch_scc1 L_qk_r0", "branch")] + pf + \
        [waitcnt(lgkm=0), label("L_qk_r0")] + inc
    end = inc + [raw("s_branch L_qk_loop", "branch")]
    loop = body_a + mid + body_b + end
    h1 = pad_hazards(loop, pro[-40:])
    h2 = pad_hazards(h1, h1[-40:])
    assert len(h1) == len(h2)
    T.append(".p2align 6\nL_qk_loop:\n" + render(h1))
    tail = inc + [raw("s_setprio 0", "salu")] + qk_tick(1, doA=False, doB=True) + [barrier()] + tick_stamps() + diag_end()
    tail, _ = finalize(tail, qa, [])
    T.append("L_qk_tail:\n    s_nop 7\n    s_nop 7\n" + render(tail) + "\n    s_endpgm")

    STM_STATE["m"] = ENV("ST_LOOP", ST_MODS)
    EPH = ENV("EPH", "1") == "1"
    ppro = pv_prologue()
    if EPH:
        ppro += pv_tick(0, "0") + [waitcnt(vm=16), barrier()] + tick_stamps() + inc
    pp, q = finalize(ppro, None, head[-30:])
    assert len(q) == 0 or DIAG
    T.append("L_pv:\n" + render(pp))

    def vmw(k):
        return [waitcnt(vm=28), salu("s_sub_u32", s(ST3), s(STICK), 6), scmp("s_cmp_lt_u32", s(ST3), 5),
                raw(f"s_cbranch_scc1 L_pv_w{k}", "branch"), waitcnt(vm=16), label(f"L_pv_w{k}")]

    c0 = pv_tick(0) + vmw(0) + [barrier()] + tick_stamps() + inc
    c1 = pv_tick(1) + vmw(1) + [barrier()] + tick_stamps() + inc
    l0, q1 = insert_lgkm_waits(c0, [])
    l1, q2 = insert_lgkm_waits(c1, [])
    assert len(q1) == 0 and len(q2) == 0
    if EPH:
        loop = l1 + l0 + [scmp("s_cmp_lt_u32", s(STICK), 16), raw("s_cbranch_scc1 L_pv_loop", "branch")]
    else:
        loop = l0 + [scmp("s_cmp_eq_u32", s(STICK), 16), raw("s_cbranch_scc1 L_pv_tail", "branch")] + l1 + \
            [raw("s_branch L_pv_loop", "branch")]
    h1 = pad_hazards(loop, pp[-40:])
    h2 = pad_hazards(h1, h1[-40:])
    assert len(h1) == len(h2)
    T.append(".p2align 6\nL_pv_loop:\n" + render(h1))
    STM_STATE["m"] = ENV("ST_TAIL", ST_MODS)
    fin = stamp(58) + stamp(57, True) + [raw("s_setprio 2", "salu")] + pv_tick(1, "0", noq=True) + [barrier()] + \
        tick_stamps() + inc + pv_last() + diag_end()
    fin, _ = finalize(fin, [], [])
    T.append("L_pv_tail:\n    s_nop 7\n    s_nop 7\n" + render(fin))
    return "\n".join(T)


HEADER = """; Kernarg layout for this problem (48 bytes, ptrs only, base s[0:1]):
; @launch grid=(256,1,1) block=(512,1,1) lds={lds}
.amdgcn_target "amdgcn-amd-amdhsa--gfx950"
.text
.globl {name}_kernel
.p2align 8
.type {name}_kernel,@function
{name}_kernel:
"""

FOOTER = """
L_end:
    s_endpgm
.section .rodata,"a"
.p2align 6
.amdhsa_kernel {name}_kernel
  .amdhsa_next_free_vgpr 256
  .amdhsa_next_free_sgpr 64
  .amdhsa_accum_offset 256
  .amdhsa_group_segment_fixed_size 0
  .amdhsa_kernarg_size 48
  .amdhsa_user_sgpr_count 2
  .amdhsa_user_sgpr_kernarg_segment_ptr 1
  .amdhsa_system_sgpr_workgroup_id_x 1
.end_amdhsa_kernel
"""


def assemble_sizes(path):
    import subprocess
    subprocess.run(["clang", "-x", "assembler", "-target", "amdgcn-amd-amdhsa", "-mcpu=gfx950",
                    "-c", path, "-o", path + ".o"], check=True)
    out = subprocess.run(["llvm-objdump", "-t", path + ".o"], capture_output=True, text=True).stdout
    sym = {}
    for line in out.splitlines():
        f = line.split()
        if len(f) >= 5 and f[-1].startswith("L_"):
            sym[f[-1]] = int(f[0], 16)
    os.remove(path + ".o")
    return sym


def main():
    out = sys.argv[1] if len(sys.argv) > 1 else f"cdna_kernels/{NAME}.s"
    prev = None
    for it in range(6):
        txt = HEADER.format(name=NAME, lds=LDS_BYTES) + build() + FOOTER.format(name=NAME)
        open(out, "w").write(txt)
        sym = assemble_sizes(out)
        cur = dict(size=sym["L_end"] + 4, qk_tail=sym["L_qk_tail"], pv=sym["L_pv"], pv_tail=sym["L_pv_tail"])
        if cur == prev:
            break
        prev = cur
        CODE.update(cur)
    else:
        raise RuntimeError("code size did not converge")
    print(f"wrote {out}: {txt.count(chr(10))} lines, code {cur}")


if __name__ == "__main__":
    main()
```

```python
import struct
import sys
import os

sys.path.insert(0, os.path.dirname(__file__))
from asmlib import *

NAME = "standalone__gqa_softmax__near_ridge"
ENV = os.environ.get
SH = int(ENV("SH", "16"))
S16 = SH == 16
NQT = 2 if S16 else 1

QSL = 16896
NQ = 6
POFF = NQ * QSL
OOFF = POFF + 32768
XOFF = OOFF + 16384
LDS_BYTES = XOFF + 2048
KS = 5 * QSL
P2OFF = QSL
assert KS + 65536 <= XOFF and LDS_BYTES <= 163840

AF = 0
ACC = [128, 160]
FB = 192
NB = 8
VL = 255
PK = 224
XVA, XVB = 232, 224
MC, LSUM, LMAX = [240, 241], [242, 243], [244, 245]
T0, T1 = 246, 247
VQ, VQB, VPW, VXW, VXRQ = 249, 250, 251, 252, 253
ACC2 = 208
XV = 240
if S16:
    INV = [[244, 245], [246, 247]]
    VOW = [248, 254]
else:
    INV = [[244], [245]]
    VOW = [246, 247, 248, 254]
VQD, VPR, VXRP, VOR, VOS = 249, 250, 251, 252, 253

DIAG = int(ENV("DIAG", "0"))
DG = {"v": 238, "t": 239}

SRD_A, SRD_Q, SRD_O = 4, 8, 12
SPTR = 20
SW, SWW = 28, 29
SQSO, SQM0, SQRD, SOSO, STICK, SC, ST0, ST1, ST2 = 30, 31, 32, 33, 34, 35, 36, 37, 38
SMASK = 40
SQE, SOE, SQB, SQLIM = 42, 43, 44, 45
STM = 46
SRD_W = 48
SDL = 52
ST3 = 53
SROT = 54
SQP, SOP = 55, 58

C_SCALE = 1.4426950408889634 / 16.0
LD_MODS = ENV("LD_MODS", " nt")
LD_K, LD_V, LD_Q = ENV("LD_K", LD_MODS), ENV("LD_V", LD_MODS), ENV("LD_Q", LD_MODS)
ST_MODS = ENV("ST_MODS", " nt")
STM_STATE = {"m": ST_MODS}
LA = int(ENV("LA", "5"))
ROT = int(ENV("ROT", "0"))
THR = int(ENV("THR", "0"))
_thr = [0]


def throttle(a):
    if not THR:
        return
    _thr[0] += 1
    a(raw(f"s_cbranch_vccz L_thr{_thr[0]}", "branch"))
    a(raw(f"s_waitcnt vmcnt({THR})", "wait0"))
    a(label(f"L_thr{_thr[0]}"))

NM = 4 if S16 else 2
NSL = 16 * NM


def f32bits(x):
    return struct.unpack("<I", struct.pack("<f", x))[0]


def stamp(lane, real=False):
    if not DIAG:
        return []
    vd, vt = DG["v"], DG["t"]
    op = "s_memrealtime" if real else "s_memtime"
    o = [raw(f"{op} {sr(STM, 2)}", "smem", wr=S(STM, 2)), waitcnt(lgkm=0)]
    if isinstance(lane, int):
        o.append(I(f"v_writelane_b32 v{vd}, s{STM}, {lane}", "valu", S(STM), V(vd)))
    else:
        o.append(I(f"v_cmp_eq_u32 vcc, s{lane[1]}, v{VL}", "valu", V(VL), []))
        o.append(valu("v_mov_b32", v(vt), s(STM)))
        o.append(nop(2))
        o.append(I(f"v_cndmask_b32 v{vd}, v{vd}, v{vt}, vcc", "valu", V(vd) + V(vt), V(vd)))
    return o


def tick_stamps():
    if DIAG != 1:
        return []
    return stamp(s(STICK)) + [salu("s_add_u32", s(SDL), s(STICK), 20)] + stamp(s(SDL), True)


def diag_end():
    if not DIAG:
        return []
    vd, vt = DG["v"], DG["t"]
    o = stamp(62) + stamp(63, True) + [I(f"v_writelane_b32 v{vd}, s59, 39", "valu", S(59), V(vd))]
    o += [
        raw(f"s_load_dwordx2 {sr(SRD_W, 2)}, s[0:1], 40", "smem", wr=S(SRD_W, 2)),
        waitcnt(lgkm=0),
        salu("s_mov_b32", s(SRD_W + 2), 256 * 8 * 256),
        salu("s_mov_b32", s(SRD_W + 3), "0x00020000"),
        salu("s_lshl_b32", s(ST0), s(2), 3),
        salu("s_add_u32", s(ST0), s(ST0), s(SW)),
        salu("s_lshl_b32", s(ST0), s(ST0), 8),
        valu("v_lshlrev_b32", v(vt), 2, v(VL)),
        raw(f"buffer_store_dword v{vd}, v{vt}, {sr(SRD_W, 4)}, s{ST0} offen", "vmem_st", rd=V(vd) + V(vt)),
    ]
    return o


def srd(a, base, ptr, off, size):
    a(salu("s_add_u32", s(base), s(ptr), s(off)))
    a(salu("s_addc_u32", s(base + 1), s(ptr + 1), 0))
    a(salu("s_and_b32", s(base + 1), s(base + 1), "0xffff"))
    a(salu("s_mov_b32", s(base + 2), size))
    a(salu("s_mov_b32", s(base + 3), "0x00020000"))


def mm(d, a_, b_, first):
    return (mfma16 if S16 else mfma)(d, a_, b_, None if first else d)


def frag_mfmas(f, acc, buf):
    if S16:
        kstep, qt = f >> 1, f & 1
        return [(acc + 16 * qt + 4 * t, AF + 4 * (8 * t + kstep), kstep == 0) for t in range(4)]
    return [(acc + 16 * t, AF + 4 * (16 * t + f), f == 0) for t in range(2)]


tq, th, tA, tB, tC, tc16, tg = 128, 129, 130, 131, 132, 140, 141


def common_head():
    p = []
    a = p.append
    a(scmp("s_cmp_ge_u32", s(2), 256))
    a(raw("s_cbranch_scc1 L_end", "branch"))
    if THR:
        a(raw("s_getreg_b32 s3, hwreg(HW_REG_XCC_ID, 0, 4)", "salu", wr=S(3)))
        a(salu("s_and_b32", s(3), s(3), 1))
        a(salu("s_xor_b32", s(3), s(3), 1 - int(ENV("THR_PAR", "0"))))
        a(raw("s_mov_b32 vcc_lo, s3", "salu", rd=S(3)))
        a(raw("s_mov_b32 vcc_hi, 0", "salu"))
    if DIAG:
        a(raw("s_getreg_b32 s59, hwreg(HW_REG_XCC_ID, 0, 4)", "salu", wr=S(59)))
    a(salu("s_and_b32", s(3), s(2), 7))
    a(salu("s_lshl_b32", s(3), s(3), 5))
    a(salu("s_lshr_b32", s(2), s(2), 3))
    a(salu("s_add_u32", s(2), s(2), s(3)))
    if DIAG:
        DG["v"] = 243
        a(valu("v_mov_b32", v(DG["v"]), 0))
        p.extend(stamp(60, True))
        p.extend(stamp(61))
    a(raw(f"s_load_dwordx4 {sr(SPTR, 4)}, s[0:1], 0", "smem", wr=S(SPTR, 4)))
    a(raw(f"s_load_dwordx4 {sr(SPTR + 4, 4)}, s[0:1], 16", "smem", wr=S(SPTR + 4, 4)))
    a(valu("v_and_b32", v(VL), 63, v(0)))
    a(valu("v_lshrrev_b32", v(tA), 6, v(0)))
    a(rfl(SW, tA))
    a(valu("v_and_b32", v(tq), 31, v(VL)))
    a(valu("v_lshrrev_b32", v(th), 5, v(VL)))
    a(salu("s_and_b32", s(SWW), s(SW), 3))
    a(salu("s_lshl_b32", s(ST0), s(2), 18))
    a(salu("s_lshl_b32", s(ST1), s(2), 17))
    a(salu("s_lshl_b32", s(ST2), s(SWW), 12))
    a(valu("v_xor_b32", v(tA), v(tq), v(th)))
    a(valu("v_lshlrev_b32", v(tA), 4, v(tA)))
    a(valu("v_lshl_add_u32", v(tA), v(th), 9, v(tA)))
    a(valu("v_add_u32", v(VQD), s(ST2), v(tA)))
    a(salu("s_mul_i32", s(SQB), s(SWW), 4 * 1056))
    if ROT:
        a(salu("s_mul_i32", s(SROT), s(2), ROT))
        a(salu("s_and_b32", s(SROT), s(SROT), 15))
        a(salu("s_lshl_b32", s(SROT), s(SROT), 14))
    a(raw("s_waitcnt lgkmcnt(0)", "wait0"))
    srd(a, SRD_Q, SPTR + 0, ST0, 262144)
    a(scmp("s_cmp_ge_u32", s(SW), 4))
    a(raw("s_cbranch_scc1 L_pv", "branch"))
    return p


SPC = 56
CODE = {"size": 0, "qk_tail": 0, "pv": 0, "pv_tail": 0}


def code_base(tag):
    return [
        raw(f"s_getpc_b64 {sr(SPC, 2)}", "salu", wr=S(SPC, 2)),
        label(f"L_pc_{tag}"),
        raw(f"s_sub_u32 s{SPC}, s{SPC}, L_pc_{tag}-{NAME}_kernel", "salu", rd=S(SPC), wr=S(SPC)),
        raw(f"s_subb_u32 s{SPC + 1}, s{SPC + 1}, 0", "salu", rd=S(SPC + 1), wr=S(SPC + 1)),
    ]


def code_touch(lo, hi, vaddr, vdst, vl64):
    o = []
    if not int(ENV("CPF", "1")) or hi <= lo:
        return o
    lo &= ~63
    while lo < hi:
        o.append(valu("v_add_u32", v(vaddr), lo, v(vl64)))
        if lo + 4096 > hi:
            o.append(valu("v_min_u32", v(vaddr), (hi - 4) & ~3, v(vaddr)))
        o.append(raw(f"global_load_dword v{vdst}, v{vaddr}, {sr(SPC, 2)}", "vmem_ld", rd=V(vaddr) + S(SPC, 2), wr=[]))
        lo += 4096
    return o


def qload(a, blk):
    throttle(a)
    if ROT:
        a(salu("s_add_u32", s(SQP), s(SROT), blk * 16384))
        a(salu("s_and_b32", s(SQP), s(SQP), 262143))
    for n in range(4):
        a(salu("s_add_u32", "m0", s(SQB), (blk % NQ) * QSL + n * 1056))
        if ROT:
            a(salu("s_add_u32", s(ST2), s(SQP), n * 1024))
        else:
            a(salu("s_mov_b32", s(ST2), blk * 16384 + n * 1024))
        a(buf_lds(VQD, SRD_Q, s(ST2), LD_Q))


def qk_prologue():
    p = []
    a = p.append
    vKe, vKo, vKA = 133, 134, 136
    srd(a, SRD_A, SPTR + 2, ST1, 131072)
    a(valu("v_lshrrev_b32", v(tA), 3, v(VL)))
    a(valu("v_lshlrev_b32", v(tA), 9, v(tA)))
    a(valu("v_and_b32", v(tB), 7, v(VL)))
    a(valu("v_lshrrev_b32", v(tC), 4, v(VL)))
    a(valu("v_xor_b32", v(tB), v(tB), v(tC)))
    a(valu("v_lshl_add_u32", v(vKe), v(tB), 4, v(tA)))
    a(valu("v_xor_b32", v(vKo), 64, v(vKe)))
    a(salu("s_lshl_b32", s(ST0), s(SWW), 15))
    a(salu("s_lshl_b32", s(ST1), s(SWW), 14))
    a(salu("s_add_u32", s(ST1), s(ST1), KS))

    def kload(j):
        u, dq = j >> 2, j & 3
        throttle(a)
        for n in range(4):
            a(salu("s_add_u32", "m0", s(ST1), (j & 3) * 4096 + n * 1024))
            a(salu("s_add_u32", s(ST2), s(ST0), u * 16384 + n * 4096 + dq * 128))
            a(buf_lds(vKo if n & 1 else vKe, SRD_A, s(ST2), LD_K))

    IW = int(ENV("INITW", "4"))
    for j in range(IW):
        kload(j)
    if IW == 4:
        qload(a, 0)
    if DIAG:
        a(valu("v_mov_b32", v(238), v(DG["v"])))
        DG["v"] = 238
    p.extend(stamp(51))
    a(raw(f"s_setprio {ENV('QK_PRIO', '1')}", "salu"))
    a(valu("v_and_b32", v(tc16), 15, v(VL)))
    a(valu("v_lshrrev_b32", v(tg), 4, v(VL)))
    if S16:
        a(valu("v_lshrrev_b32", v(tA), 1, v(tc16)))
        a(valu("v_xor_b32", v(tA), v(tA), v(tg)))
        a(valu("v_lshlrev_b32", v(tA), 4, v(tA)))
        a(valu("v_lshl_add_u32", v(tA), v(tc16), 7, v(tA)))
        a(valu("v_xor_b32", v(tB), 64, v(tA)))
        a(valu("v_add_u32", v(vKA), s(ST1), v(tA)))
        a(valu("v_add_u32", v(vKA + 1), s(ST1), v(tB)))
        a(valu("v_lshrrev_b32", v(tA), 1, v(tc16)))
        a(valu("v_mul_u32_u24", v(tA), 1056, v(tA)))
        a(valu("v_and_b32", v(tB), 1, v(tc16)))
        a(valu("v_lshl_add_u32", v(tA), v(tB), 9, v(tA)))
        a(valu("v_xor_b32", v(tB), v(tB), v(tg)))
        a(valu("v_lshl_add_u32", v(VQB), v(tB), 4, v(tA)))
        a(valu("v_lshlrev_b32", v(tA), 4, v(tc16)))
        a(valu("v_add_u32", v(VXRQ), XOFF, v(tA)))
        a(valu("v_and_b32", v(tB), 1, v(tg)))
        a(valu("v_lshl_add_u32", v(tA), v(tB), 9, v(VXRQ)))
        a(valu("v_lshl_add_u32", v(tA), v(th), 8, v(tA)))
        a(valu("v_lshlrev_b32", v(tB), 1, v(tB)))
        a(valu("v_lshrrev_b32", v(tC), 3, v(tc16)))
        a(valu("v_xor_b32", v(tB), v(tB), v(tC)))
        a(valu("v_xor_b32", v(tB), s(SWW), v(tB)))
        a(valu("v_lshl_add_u32", v(VXW), v(tB), 2, v(tA)))
        a(salu("s_mov_b32", s(SMASK), "0x0000ffff"))
        a(salu("s_mov_b32", s(SMASK + 1), "0x0000ffff"))
    else:
        a(valu("v_bfe_u32", v(tA), v(tq), 1, 3))
        a(valu("v_xor_b32", v(tA), v(tA), v(th)))
        a(valu("v_lshlrev_b32", v(tA), 4, v(tA)))
        a(valu("v_lshl_add_u32", v(tA), v(tq), 7, v(tA)))
        for k in range(4):
            a(valu("v_xor_b32", v(tB), 32 * k, v(tA)))
            a(valu("v_add_u32", v(vKA + k), s(ST1), v(tB)))
        a(valu("v_lshrrev_b32", v(tA), 1, v(tq)))
        a(valu("v_mul_u32_u24", v(tA), 1056, v(tA)))
        a(valu("v_and_b32", v(tB), 1, v(tq)))
        a(valu("v_lshl_add_u32", v(tA), v(tB), 9, v(tA)))
        a(valu("v_xor_b32", v(tB), v(tB), v(th)))
        a(valu("v_lshl_add_u32", v(VQB), v(tB), 4, v(tA)))
        a(valu("v_lshlrev_b32", v(tA), 4, v(tq)))
        a(valu("v_add_u32", v(VXRQ), XOFF, v(tA)))
        a(valu("v_lshl_add_u32", v(tA), v(th), 9, v(VXRQ)))
        a(valu("v_lshrrev_b32", v(tB), 3, v(tq)))
        a(valu("v_xor_b32", v(tB), s(SWW), v(tB)))
        a(valu("v_lshl_add_u32", v(VXW), v(tB), 2, v(tA)))
        a(salu("s_mov_b32", s(SMASK), -1))
        a(salu("s_mov_b32", s(SMASK + 1), 0))
    a(salu("s_lshl_b32", s(ST2), s(SWW), 12))
    a(salu("s_add_u32", s(ST2), s(ST2), POFF))
    a(valu("v_lshlrev_b32", v(tA), 4, v(VL)))
    a(valu("v_add_u32", v(VPW), s(ST2), v(tA)))
    a(salu("s_mov_b32", s(SC), hex(f32bits(C_SCALE))))
    a(salu("s_mov_b32", s(SQRD), 0))
    a(salu("s_mov_b32", s(STICK), 0))

    def kfrags(j):
        u, dq = j >> 2, j & 3
        if S16:
            for aa in range(2):
                for b in range(2):
                    a(ds_read("ds_read_b128", AF + 4 * (8 * (2 * u + aa) + 2 * dq + b), 4, vKA + b,
                              (j & 3) * 4096 + 2048 * aa))
        else:
            for k in range(4):
                a(ds_read("ds_read_b128", AF + 4 * (16 * u + 4 * dq + k), 4, vKA + k, (j & 3) * 4096))

    for j in range(4):
        if j == 0 and IW < 4:
            a(waitcnt(vm=4 * (IW - 1)))
            for jj in range(IW, 4):
                kload(jj)
            kfrags(0)
            a(waitcnt(lgkm=0))
            kload(4)
            qload(a, 0)
            continue
        a(waitcnt(vm=16))
        kfrags(j)
        a(waitcnt(lgkm=0))
        kload(4 + j)
    qload(a, 1)
    qload(a, 2)
    a(valu("v_mov_b32", v(VQ), v(VQB)))
    p.extend(stamp(40))
    a(barrier())
    for j, w in zip(range(4, 8), (20 if IW == 4 else 24, 16, 12, 8)):
        a(waitcnt(vm=w))
        kfrags(j)
    a(waitcnt(lgkm=0))
    p.extend(stamp(48))
    a(barrier())
    p.extend(stamp(49))
    p.extend(stamp(59, True))
    return p


def q_frag(f):
    f2 = f % 16
    off = (f2 & 1) * 8 * 1056 + 64 * (f2 >> 1) if S16 else 32 * f2
    return ds_read("ds_read_b128", FB + 4 * (f % NB), 4, VQ, off)


def qk_tick(par, doA=True, doB=True, prefetch=True, pub=True, keepmax=False, nin=None, keepsum=False):
    Sc, Sn = ACC[par], ACC[1 - par]
    slots = [[] for _ in range(NSL + 1)]
    pre, post = [], []
    if doB:
        X = []
        for qt in range(NQT):
            xv = (XVA, XVB)[qt]
            pre.append(ds_read("ds_read_b128", xv, 4, VXRQ, (1 - par) * 1024 + 256 * qt))
            X += [
                valu("v_max3_f32", v(T0), v(xv), v(xv + 1), v(xv + 2)),
                valu("v_max_f32", v(T0), v(T0), v(xv + 3)),
                valu("v_mul_f32", v(MC[qt]), s(SC), v(T0)),
            ]
        seq = []
        for pr in range(16):
            qt = (pr >> 3) if S16 else 0
            r0, r1 = Sc + 2 * pr, Sc + 2 * pr + 1
            g = [
                valu("v_fma_f32", v(r0), v(r0), s(SC), ("neg", v(MC[qt]))),
                valu("v_fma_f32", v(r1), v(r1), s(SC), ("neg", v(MC[qt]))),
                valu("v_exp_f32", v(r0), v(r0)),
                valu("v_exp_f32", v(r1), v(r1)),
            ]
            g2 = []
            if pr == 0 or (S16 and pr == 8):
                g2.append(valu("v_add_f32", v(LSUM[qt]), v(r0), v(r1)))
            else:
                g2.append(valu("v_add_f32", v(LSUM[qt]), v(LSUM[qt]), v(r0)))
                g2.append(valu("v_add_f32", v(LSUM[qt]), v(LSUM[qt]), v(r1)))
            g2.append(valu("v_cvt_pk_bf16_f32", v(PK + pr % 8), v(r0), v(r1)))
            if pr % 4 == 3:
                gi = pr >> 2
                fi = (2 * (gi & 1) + (gi >> 1)) if S16 else gi
                g2.append(ds_write("ds_write_b128", VPW, PK + (pr - 3) % 8, 4, par * 16384 + fi * 1024))
            seq.append((g, g2))
        flat = []
        for pr in range(16):
            flat.append(seq[pr][0][:2])
            flat.append(seq[pr][0][2:])
            if pr > 0:
                flat[-2] = flat[-2] + seq[pr - 1][1]
        flat.append(seq[15][1])
        if doA:
            nin = int(ENV("QK_IN", "8")) if nin is None else nin
            lo = NSL // 8
            slots[lo - 1] += X
            for k, grp in enumerate(flat[:nin]):
                slots[lo + k * (NSL - lo - 2) // max(nin, 1)] += grp
            post = sum(flat[nin:], [])
        else:
            post = X + sum(flat, [])
    elif pub and not keepsum:
        for qt in range(NQT):
            pre.append(valu("v_mov_b32", v(LSUM[qt]), 0))
    M = []
    if doA:
        if S16:
            for k in range(8):
                for qt in range(2):
                    b, lm = Sn + 16 * qt, LMAX[qt]
                    if k == 0:
                        M.append(valu("v_max3_f32", v(lm), v(b), v(b + 1), v(b + 2)))
                    elif k < 7:
                        M.append(valu("v_max3_f32", v(lm), v(lm), v(b + 1 + 2 * k), v(b + 2 + 2 * k)))
                    else:
                        M.append(valu("v_max_f32", v(lm), v(lm), v(b + 15)))
        else:
            lm = LMAX[0]
            M.append(valu("v_max3_f32", v(lm), v(Sn), v(Sn + 1), v(Sn + 2)))
            M.append(valu("v_max3_f32", v(T1), v(Sn + 16), v(Sn + 17), v(Sn + 18)))
            for k in range(6):
                M.append(valu("v_max3_f32", v(lm), v(lm), v(Sn + 3 + 2 * k), v(Sn + 4 + 2 * k)))
                M.append(valu("v_max3_f32", v(T1), v(T1), v(Sn + 19 + 2 * k), v(Sn + 20 + 2 * k)))
            M.append(valu("v_max3_f32", v(lm), v(lm), v(Sn + 15), v(Sn + 31)))
            M.append(valu("v_max_f32", v(lm), v(lm), v(T1)))
    elif not keepmax:
        for qt in range(NQT):
            M.append(valu("v_mov_b32", v(LMAX[qt]), 0))
    if S16:
        PUB = [
            perm32swap(LMAX[0], LMAX[1]),
            perm32swap(LSUM[0], LSUM[1]),
            valu("v_max_f32", v(LMAX[0]), v(LMAX[0]), v(LMAX[1])),
            valu("v_add_f32", v(LSUM[0]), v(LSUM[0]), v(LSUM[1])),
            perm16swap(LMAX[0], LSUM[0]),
        ]
    else:
        PUB = [perm32swap(LMAX[0], LSUM[0])]
    PUB += [
        valu("v_max_f32", v(T0), v(LMAX[0]), v(LSUM[0])),
        valu("v_add_f32", v(T1), v(LMAX[0]), v(LSUM[0])),
        valu("v_cndmask_b32", v(T0), v(T1), v(T0), s(SMASK, 2)),
        ds_write("ds_write_b32", VXW, T0, 1, par * 1024),
    ]
    QUPD = [
        salu("s_add_u32", s(SQRD), s(SQRD), QSL),
        scmp("s_cmp_eq_u32", s(SQRD), NQ * QSL),
        salu("s_cselect_b32", s(SQRD), 0, s(SQRD)),
        valu("v_add_u32", v(VQ), s(SQRD), v(VQB)),
    ]
    out = list(pre)
    if doA:
        i = 0
        for f in range(16):
            for k, (d, a_, first) in enumerate(frag_mfmas(f, Sn, 0)):
                out.append(mm(d, a_, FB + 4 * (f % NB), first))
                if k == NM - 1:
                    nf = f + LA
                    if nf == 16:
                        out += QUPD
                    if nf < 16 or prefetch:
                        out.append(q_frag(nf))
                out += slots[i]
                i += 1
    if DIAG == 3 and doA and doB and nin == int(ENV("QK_IN", "8")):
        out = stamp(10) + out + stamp(11)
    k = min(len(post), 14) if doA else 0
    out += post[:k]
    rest = post[k:]
    mi = 0
    for j, ins in enumerate(rest):
        out.append(ins)
        if j % 3 == 2 and mi < len(M):
            out.append(M[mi]); mi += 1
    out += M[mi:] + (PUB if pub else [])
    if DIAG == 3 and doA and doB and nin == int(ENV("QK_IN", "8")):
        out += stamp(12)
    return out


def pv_addr_late(a):
    x0, x1, x2 = FB, FB + 1, FB + 2
    a(valu("v_lshrrev_b32", v(x0), 3, v(VL)))
    a(valu("v_and_b32", v(x1), 7, v(VL)))
    a(valu("v_xor_b32", v(x1), v(x0), v(x1)))
    a(valu("v_lshlrev_b32", v(x1), 4, v(x1)))
    a(valu("v_lshl_add_u32", v(x1), v(x0), 7, v(x1)))
    a(valu("v_add_u32", v(VOR), s(ST0), v(x1)))
    if S16:
        a(valu("v_and_b32", v(x0), 15, v(VL)))
        a(valu("v_lshrrev_b32", v(x1), 4, v(VL)))
        a(valu("v_lshlrev_b32", v(x1), 1, v(x1)))
        a(valu("v_and_b32", v(x2), 7, v(x0)))
        a(valu("v_xor_b32", v(x1), v(x1), v(x2)))
        a(valu("v_lshlrev_b32", v(x1), 4, v(x1)))
        a(valu("v_lshl_add_u32", v(x1), v(x0), 7, v(x1)))
        a(valu("v_xor_b32", v(x2), 16, v(x1)))
        a(valu("v_add_u32", v(VOW[0]), s(ST0), v(x1)))
        a(valu("v_add_u32", v(VOW[1]), s(ST0), v(x2)))
    else:
        a(valu("v_and_b32", v(x0), 31, v(VL)))
        a(valu("v_lshrrev_b32", v(x1), 5, v(VL)))
        a(valu("v_lshlrev_b32", v(x1), 1, v(x1)))
        a(valu("v_and_b32", v(x2), 7, v(x0)))
        a(valu("v_xor_b32", v(x1), v(x1), v(x2)))
        a(valu("v_lshlrev_b32", v(x1), 4, v(x1)))
        a(valu("v_lshl_add_u32", v(x1), v(x0), 7, v(x1)))
        for c in range(4):
            a(valu("v_xor_b32", v(x2), 64 * (c >> 1) + 16 * (c & 1), v(x1)))
            a(valu("v_add_u32", v(VOW[c]), s(ST0), v(x2)))


def pv_X(slot, inv, xv):
    rd, va = [], []
    for qt in range(NQT):
        x = xv[qt]
        rd.append(ds_read("ds_read_b128", x, 4, VXRP, slot * 1024 + 256 * qt))
        va += [
            valu("v_add_f32", v(x), v(x), v(x + 1)),
            valu("v_add_f32", v(x + 2), v(x + 2), v(x + 3)),
            valu("v_add_f32", v(x), v(x), v(x + 2)),
            valu("v_rcp_f32", v(inv[qt]), v(x)),
        ]
    return rd, va


def pv_E(O, inv, VOW=VOW):
    E = []
    for c in range(4):
        b = O + 8 * c
        iv = inv[c >> 1] if S16 else inv[0]
        for r in range(8):
            E.append(valu("v_mul_f32", v(b + r), v(b + r), v(iv)))
        for r in range(4):
            E.append(valu("v_cvt_pk_bf16_f32", v(b + r), v(b + 2 * r), v(b + 2 * r + 1)))
        if S16:
            E.append(ds_write("ds_write_b128", VOW[c & 1], b, 4, 2048 * (c >> 1)))
        else:
            E.append(ds_write("ds_write_b128", VOW[c], b, 4))
    return E


def pv_D(O, VOR=VOR):
    hdr = [salu("s_mov_b32", s(SOE), s(SOSO)), salu("s_add_u32", s(SOSO), s(SOSO), 16384)]
    if ROT:
        hdr = [salu("s_add_u32", s(SOE), s(SOSO), s(SROT)), salu("s_and_b32", s(SOE), s(SOE), 262143),
               salu("s_add_u32", s(SOSO), s(SOSO), 16384)]
    rd = [ds_read("ds_read_b128", O + 8 * n + 4, 4, VOR, 1024 * n) for n in range(4)]
    st = []
    for n in range(4):
        g = [buf_store(O + 8 * n + 4, VOS, SRD_O, s(SOE), STM_STATE["m"])]
        if n < 3:
            g.append(salu("s_add_u32", s(SOE), s(SOE), 1024 if ENV("FULLROW") else 4096))
        st.append(g)
    return hdr, rd, st


def pv_ED(O, inv):
    hdr, rd, st = pv_D(O)
    return pv_E(O, inv) + hdr + rd + sum(st, [])


def pv_prologue():
    p = []
    a = p.append
    DG["v"] = 243
    vVD, vB0, vB1, vT0, vT1, vP2 = VOR, VOW[0], VOW[1], XV, XV + 1, XV + 2
    inv0 = INV[0]
    if int(ENV("CPF", "1")):
        a(salu("s_and_b32", s(ST3), s(2), 31))
        a(salu("s_lshl_b32", s(ST3), s(ST3), 3))
        a(salu("s_add_u32", s(ST3), s(ST3), s(SW)))
        a(scmp("s_cmp_lg_u32", s(ST3), 4 + 8 * int(ENV("CPF_WG", "5"))))
        a(raw("s_cbranch_scc1 L_nocpf", "branch"))
        p.extend(code_base("pv"))
        a(valu("v_lshlrev_b32", v(AF + 125), 6, v(VL)))
        p.extend(code_touch(int(ENV("CPF_LO", "1024")), CODE["size"], AF + 126, AF + 127, AF + 125))
        a(label("L_nocpf"))
    srd(a, SRD_A, SPTR + 4, ST1, 131072)
    srd(a, SRD_O, SPTR + 6, ST0, 0)
    a(salu("s_lshl_b32", s(ST2), s(SWW), 7))
    a(valu("v_lshrrev_b32", v(tA), 3, v(VL)))
    a(valu("v_and_b32", v(tB), 7, v(VL)))
    a(valu("v_lshlrev_b32", v(tC), 9, v(tA)))
    a(valu("v_lshl_add_u32", v(tC), v(tB), 4, v(tC)))
    a(valu("v_add_u32", v(VOS), s(ST2), v(tC)))
    a(valu("v_bfe_u32", v(tC), v(VL), 4, 1))
    a(valu("v_lshlrev_b32", v(tC), 4 if S16 else 6, v(tC)))
    a(valu("v_xor_b32", v(vVD), v(tC), v(VOS)))
    if ENV("OTLB"):
        a(salu("s_mov_b32", s(SRD_O + 2), 262144))
        a(raw(f"buffer_load_dword v{AF + 124}, v{VOS}, {sr(SRD_O, 4)}, 0 offen nt", "vmem_ld", rd=V(VOS) + S(SRD_O, 4), wr=[]))
    a(salu("s_lshl_b32", s(ST0), s(SWW), 12))
    a(salu("s_add_u32", s(ST0), s(ST0), OOFF))
    a(valu("v_lshlrev_b32", v(tA), 4, v(VL)))
    a(valu("v_add_u32", v(VPR), POFF, v(tA)))
    a(valu("v_add_u32", v(vP2), P2OFF, v(tA)))
    a(valu("v_and_b32", v(tA), 15 if S16 else 31, v(VL)))
    a(valu("v_lshlrev_b32", v(tA), 4, v(tA)))
    a(valu("v_add_u32", v(VXRP), XOFF + 512, v(tA)))
    if S16:
        a(valu("v_lshrrev_b32", v(tA), 2, v(VL)))
        a(valu("v_lshlrev_b32", v(tA), 7, v(tA)))
        a(valu("v_and_b32", v(tB), 3, v(VL)))
        a(valu("v_lshl_add_u32", v(tA), v(tB), 5, v(tA)))
        a(valu("v_bfe_u32", v(tB), v(VL), 3, 1))
        a(valu("v_lshl_add_u32", v(vB0), v(tB), 4, v(tA)))
        a(valu("v_xor_b32", v(vB1), 16, v(vB0)))
    else:
        a(valu("v_bfe_u32", v(tA), v(VL), 2, 2))
        a(valu("v_lshl_add_u32", v(tA), v(th), 2, v(tA)))
        a(valu("v_lshlrev_b32", v(tA), 7, v(tA)))
        a(valu("v_bfe_u32", v(tB), v(VL), 3, 1))
        a(valu("v_lshl_add_u32", v(tA), v(tB), 6, v(tA)))
        a(valu("v_and_b32", v(tB), 1, v(VL)))
        a(valu("v_lshl_add_u32", v(tA), v(tB), 5, v(tA)))
        a(valu("v_bfe_u32", v(tB), v(VL), 4, 1))
        a(valu("v_lshl_add_u32", v(tA), v(tB), 4, v(tA)))
        a(valu("v_bfe_u32", v(tB), v(VL), 1, 1))
        a(valu("v_lshl_add_u32", v(vB0), v(tB), 3, v(tA)))
        a(valu("v_xor_b32", v(vB1), 64, v(vB0)))
    a(salu("s_mov_b32", s(SQSO), 10 * 16384))
    a(salu("s_add_u32", s(SQM0), s(SQB), 4 * QSL))
    a(salu("s_add_u32", s(SQLIM), s(SQB), NQ * QSL))
    a(salu("s_mov_b32", s(SOSO), 0))
    a(salu("s_mov_b32", s(STICK), 5))
    VLOC = {0: 3, 1: 4, 2: 5, 3: "o", 4: 0, 5: 2, 6: "o", 7: 0}

    def vdest(j):
        loc = VLOC[j]
        return (ST0, 0) if loc == "o" else (SQB, loc * QSL)

    def vload(j):
        sb, off = vdest(j)
        throttle(a)
        for n in range(4):
            a(salu("s_add_u32", "m0", s(sb), off + n * 1024))
            a(salu("s_mov_b32", s(ST2), (32 * j + 8 * n) * 512))
            a(buf_lds(vVD, SRD_A, s(ST2), LD_V))

    accs = [ACC2, ACC[1], ACC[0]]
    inited = set()

    def vfrag(j):
        sb, off = vdest(j)
        a(salu("s_add_u32", s(ST3), s(sb), off))
        a(valu("v_add_u32", v(vT0), s(ST3), v(vB0)))
        a(valu("v_add_u32", v(vT1), s(ST3), v(vB1)))
        if S16:
            for dt in range(4):
                for aa in range(2):
                    a(ds_read("ds_read_b64_tr_b16", AF + 4 * (8 * dt + j) + 2 * aa, 2, (vT0, vT1)[dt >> 1],
                              16 * aa * 128 + 8 * (dt & 1)))
        else:
            for b in range(2):
                for dt in range(2):
                    for aa in range(2):
                        a(ds_read("ds_read_b64_tr_b16", AF + 4 * (16 * dt + 2 * j + b) + 2 * aa, 2, (vT0, vT1)[dt],
                                  (16 * b + 8 * aa) * 128))
        a(waitcnt(lgkm=0))
        p.extend(stamp(41 + j))

    def vmm(j):
        def pf(blk, b):
            buf = FB + 4 * ((2 * blk + b) % 4)
            if blk < 2:
                return ds_read("ds_read_b128", buf, 4, VPR, blk * 16384 + (2 * j + b) * 1024)
            return ds_read("ds_read_b128", buf, 4, vP2, (2 * j + b) * 1024)

        for blk in range(2):
            for b in range(2):
                a(pf(blk, b))
        for blk in range(3):
            for b in range(2):
                buf = FB + 4 * ((2 * blk + b) % 4)
                for (d, a_, _) in frag_mfmas(2 * j + b, accs[blk], 0):
                    a(mm(d, a_, buf, d not in inited))
                    inited.add(d)
                if blk == 0:
                    a(pf(2, b))

    def dummy_st():
        for _ in range(4):
            a(buf_store(AF, VOS, SRD_O, 0))

    p.extend(stamp(51))
    a(raw(f"s_setprio {ENV('PV_PRIO', '0')}", "salu"))
    a(barrier())
    vload(0); vload(1)
    a(barrier())
    p.extend(stamp(49))
    p.extend(stamp(59, True))
    vload(2); vload(3)
    a(barrier())
    vload(4)
    a(waitcnt(vm=16)); vfrag(0); qload(a, 3)
    a(barrier())
    rd, va = pv_X(0, inv0, [FB, FB + 4])
    p.extend(rd + va)
    a(waitcnt(vm=16)); vfrag(1); qload(a, 4)
    a(barrier())
    vload(5)
    rd, va = pv_X(1, INV[1], [FB, FB + 4])
    p.extend(rd + va)
    a(waitcnt(vm=20)); vfrag(2)
    a(barrier())
    a(waitcnt(vm=16)); vfrag(3); vload(6)
    vmm(0); vmm(1)
    a(waitcnt(vm=16)); vfrag(4); vload(7); qload(a, 5)
    vmm(2)
    a(waitcnt(vm=20))
    a(barrier())
    vmm(3); vmm(4)
    a(waitcnt(vm=16))
    a(barrier())
    qload(a, 9)
    a(waitcnt(vm=16)); vfrag(5); qload(a, 8); vmm(5)
    a(waitcnt(vm=16)); vfrag(6); vmm(6)
    a(waitcnt(vm=12)); vfrag(7); qload(a, 6); vmm(7)
    a(waitcnt(vm=12))
    a(barrier())
    if ENV("FULLROW"):
        a(salu("s_lshl_b32", s(ST3), s(SWW), 12))
        a(valu("v_lshlrev_b32", v(VOS), 4, v(VL)))
        a(valu("v_add_u32", v(VOS), s(ST3), v(VOS)))
    p.extend(stamp(52))
    pv_addr_late(a)
    if ENV("EPH", "1") == "1":
        E0 = pv_E(ACC2, inv0)
        h0, r0, s0 = pv_D(ACC2)
        qload(a, 7)
        p.extend(E0 + r0)
        rd, va = pv_X(0, INV[0], [FB + 12, FB + 0])
        p.extend(rd + va)
        p.extend(stamp(56))
        a(waitcnt(lgkm=0))
        a(barrier())
        a(salu("s_mov_b32", s(SRD_O + 2), 262144))
        E1 = pv_E(ACC[1], INV[1])
        h1, r1, s1 = pv_D(ACC[1])
        p.extend(h0)
        for c in range(4):
            p.extend(E1[13 * c:13 * c + 13] + s0[c])
        p.extend(r1 + h1 + sum(s1, []))
    else:
        W2 = [FB + 4 + c for c in range(len(VOW))]
        R2 = FB + 8
        for c in range(len(VOW)):
            a(valu("v_subrev_u32", v(W2[c]), OOFF - POFF, v(VOW[c])))
        a(valu("v_subrev_u32", v(R2), OOFF - POFF, v(VOR)))
        E0 = pv_E(ACC2, inv0)
        E1 = pv_E(ACC[1], INV[1], W2)
        h0, r0, s0 = pv_D(ACC2)
        h1, r1, s1 = pv_D(ACC[1], R2)
        qload(a, 7)
        p.extend(E0 + r0)
        p.extend(E1 + r1)
        rd, va = pv_X(0, INV[0], [FB + 12, FB + 0])
        p.extend(rd + va)
        p.extend(stamp(56))
        a(waitcnt(lgkm=0))
        a(barrier())
        a(salu("s_mov_b32", s(SRD_O + 2), 262144))
        p.extend(h0 + sum(s0, []) + h1 + sum(s1, []))
    if DIAG:
        a(valu("v_mov_b32", v(238), v(DG["v"])))
        DG["v"] = 238
    p.extend(stamp(3) + stamp(23, True))
    return p


def pv_tick(par, mode=None, noq=False):
    Oc = ACC[1 - par]
    slots = [[] for _ in range(NSL + 1)]

    def p_frag(m):
        return ds_read("ds_read_b128", FB + 4 * (m % NB), 4, VPR, (1 - par) * 16384 + m * 1024)

    xrd, X = pv_X(1 - par, INV[1 - par], [XV, 224])
    pre = [p_frag(m) for m in range(LA)] + xrd
    E = pv_E(ACC[par], INV[par])
    hdr, rd, st = pv_D(ACC[par])
    qd, ql, qu = [], [[], [], [], []], []
    if not noq:
        qd = [
            scmp("s_cmp_lt_u32", s(SQSO), 262144),
            salu("s_cselect_b32", s(SRD_Q + 2), 262144, 0),
            salu("s_cselect_b32", s(SQE), s(SQSO), 0),
            salu("s_add_u32", s(SQSO), s(SQSO), 16384),
        ]
        if ROT:
            qd += [salu("s_add_u32", s(SQE), s(SQE), s(SROT)), salu("s_and_b32", s(SQE), s(SQE), 262143)]
        ql = []
        for n in range(4):
            g = [salu("s_add_u32", "m0", s(SQM0), n * 1056)]
            g.append(salu("s_add_u32", s(SQE), s(SQE), 1024) if n else nop(1))
            g.append(buf_lds(VQD, SRD_Q, s(SQE), LD_Q))
            ql.append(g)
        qu = [
            salu("s_add_u32", s(SQM0), s(SQM0), QSL),
            scmp("s_cmp_eq_u32", s(SQM0), s(SQLIM)),
            salu("s_cselect_b32", s(SQM0), s(SQB), s(SQM0)),
        ]
    mode = mode or ENV("PV_MODE", "1")
    u = NSL // 32
    if mode == "0":
        pre += E[:13] + qd
        rest = E[13:]
        for k, ins in enumerate(rest):
            slots[k * 13 * u // len(rest)].append(ins)
        for n in range(4):
            slots[(1 + 3 * n) * u] += ql[n]
        slots[11 * u] += qu
        slots[13 * u] += X
        slots[14 * u] += rd[:2]
        slots[15 * u] += rd[2:] + hdr
        for n in range(4):
            slots[(18 + 3 * n) * u] += st[n]
    elif ENV("SKIPQ", "1") == "1" and not noq:
        lbl = f"L_pv_nq{par}"
        qd2 = [salu("s_mov_b32", s(SQE), s(SQSO)), salu("s_add_u32", s(SQSO), s(SQSO), 16384)]
        if ROT:
            qd2 += [salu("s_add_u32", s(SQE), s(SQE), s(SROT)), salu("s_and_b32", s(SQE), s(SQE), 262143)]
        pre += E[:26]
        pre += [scmp("s_cmp_gt_u32", s(STICK), 10), raw(f"s_cbranch_scc1 {lbl}", "branch")] + qd2 + sum(ql, []) + qu + [label(lbl)]
        pre += E[26:] + rd + X + hdr + sum(st, [])
    else:
        pre += qd
        for c in range(4):
            pre += E[13 * c:13 * c + 13] + ql[c]
        pre += qu + rd + X + hdr + sum(st, [])
    out = list(pre)
    if DIAG == 3 and not noq:
        out = stamp(10) + out + stamp(11)
    i = 0
    for f in range(16):
        for k, (d, a_, first) in enumerate(frag_mfmas(f, Oc, 0)):
            out.append(mm(d, a_, FB + 4 * (f % NB), first))
            if k == NM - 1 and f + LA < 16:
                out.append(p_frag(f + LA))
            out += slots[i]
            i += 1
    if DIAG == 3 and not noq:
        out += stamp(12)
    return out


def pv_last():
    Oc = ACC[1]
    seq = []
    if S16:
        for qt in range(2):
            for U in range(8):
                seq.append((2 * U + qt, frag_mfmas(2 * U + qt, Oc, 0)))
    else:
        for dt in range(2):
            for m in range(16):
                seq.append((m, [frag_mfmas(m, Oc, 0)[dt]]))
    n = len(seq)

    def p_frag(k):
        return ds_read("ds_read_b128", FB + 4 * (k % NB), 4, VPR, 16384 + seq[k][0] * 1024)

    L2 = 5 if S16 else 7
    xrd, X = pv_X(1, INV[1], [XV, 224])
    pre = [p_frag(k) for k in range(L2)] + xrd
    E14 = pv_E(ACC[0], INV[0])
    hdr, rd, st = pv_D(ACC[0])
    E15 = pv_E(Oc, INV[1])
    hdr2, rd2, st2 = pv_D(Oc)
    slots = [[] for _ in range(33)]
    pre += E14[:13]
    rest = E14[13:]
    for k, ins in enumerate(rest):
        slots[k * 9 // len(rest)].append(ins)
    slots[9] += X + hdr
    slots[10] += rd
    for k in range(4):
        slots[13 + 2 * k] += st[k]
    h = E15[:26]
    for k, ins in enumerate(h):
        slots[21 + k * 10 // len(h)].append(ins)
    out = list(pre)
    cnt = 0
    per = NSL // 32
    for k, (f, ms) in enumerate(seq):
        for j, (d, a_, first) in enumerate(ms):
            out.append(mm(d, a_, FB + 4 * (k % NB), first))
            if j == len(ms) - 1 and k + L2 < n:
                out.append(p_frag(k + L2))
            cnt += 1
            if cnt % per == 0:
                out += slots[cnt // per - 1]
    out += E15[26:] + hdr2 + rd2 + sum(st2, [])
    return out


def finalize(seq, q0=None, hist=None):
    s1, q = insert_lgkm_waits(seq, q0)
    return pad_hazards(s1, hist), q


def build():
    T = []
    _thr[0] = 0
    head, _ = finalize(common_head())
    T.append(render(head))
    inc = [salu("s_add_u32", s(STICK), s(STICK), 1)]

    pro = qk_prologue() + [q_frag(f) for f in range(LA)]
    NE = int(ENV("QK_EARLY_IN", "33"))
    pf = [waitcnt(lgkm=0)] + [q_frag(f) for f in range(LA)]
    np_ = dict(prefetch=False)
    early = qk_tick(1, doB=False, **np_) + [waitcnt(vm=4), barrier()] + tick_stamps() + inc + pf
    early += qk_tick(0, nin=NE, **np_) + [waitcnt(vm=0), barrier()] + tick_stamps() + inc + pf
    early += qk_tick(1, nin=NE, **np_) + [barrier()] + tick_stamps() + inc
    early += [valu("v_subrev_u32", v(VPW), POFF - P2OFF, v(VPW))]
    early += qk_tick(0, doA=False, pub=False, keepmax=True) + [barrier(), barrier()] + pf
    early += [valu("v_add_u32", v(VPW), POFF - P2OFF, v(VPW))]
    early += qk_tick(0, doB=False, keepsum=True, **np_) + [barrier()] + tick_stamps() + inc + pf
    early += qk_tick(1, doB=False, pub=False, **np_) + [barrier()]
    early += qk_tick(1, doA=False, keepmax=True) + [barrier()] + tick_stamps() + pf + inc
    pro, q = finalize(pro + early, None, head[-30:])
    T.append(render(pro))
    b0 = qk_tick(0) + [barrier()] + tick_stamps()
    b1 = qk_tick(1) + [barrier()] + tick_stamps()
    body_a, qa = insert_lgkm_waits(b0, q)
    body_b, qb = insert_lgkm_waits(b1, qa)
    tb, t0 = [i.text for i in qb], [i.text for i in q]
    assert DIAG or t0[len(t0) - len(tb):] == tb, (t0, tb)
    mid = [scmp("s_cmp_eq_u32", s(STICK), 15), raw("s_cbranch_scc1 L_qk_tail", "branch"),
           scmp("s_cmp_lg_u32", s(STICK), 5), raw("s_cbranch_scc1 L_qk_r0", "branch")] + pf + \
        [waitcnt(lgkm=0), label("L_qk_r0")] + inc
    end = inc + [raw("s_branch L_qk_loop", "branch")]
    loop = body_a + mid + body_b + end
    h1 = pad_hazards(loop, pro[-40:])
    h2 = pad_hazards(h1, h1[-40:])
    assert len(h1) == len(h2)
    T.append(".p2align 6\nL_qk_loop:\n" + render(h1))
    tail = inc + [raw(f"s_setprio {ENV('TQ', '0')}", "salu")] + qk_tick(1, doA=False, doB=True) + [barrier()] + tick_stamps() + diag_end()
    tail, _ = finalize(tail, qa, [])
    T.append("L_qk_tail:\n    s_nop 7\n    s_nop 7\n" + render(tail) + "\n    s_endpgm")

    STM_STATE["m"] = ENV("ST_LOOP", ST_MODS)
    EPH = ENV("EPH", "1") == "1"
    ppro = pv_prologue()
    if EPH:
        ppro += pv_tick(0, "0") + [waitcnt(vm=16), barrier()] + tick_stamps() + inc
    pp, q = finalize(ppro, None, head[-30:])
    assert len(q) == 0 or DIAG
    T.append("L_pv:\n" + render(pp))

    def vmw(k):
        return [waitcnt(vm=28), salu("s_sub_u32", s(ST3), s(STICK), 6), scmp("s_cmp_lt_u32", s(ST3), 5),
                raw(f"s_cbranch_scc1 L_pv_w{k}", "branch"), waitcnt(vm=16), label(f"L_pv_w{k}")]

    c0 = pv_tick(0) + vmw(0) + [barrier()] + tick_stamps() + inc
    c1 = pv_tick(1) + vmw(1) + [barrier()] + tick_stamps() + inc
    l0, q1 = insert_lgkm_waits(c0, [])
    l1, q2 = insert_lgkm_waits(c1, [])
    assert len(q1) == 0 and len(q2) == 0
    if EPH:
        loop = l1 + l0 + [scmp("s_cmp_lt_u32", s(STICK), 16), raw("s_cbranch_scc1 L_pv_loop", "branch")]
    else:
        loop = l0 + [scmp("s_cmp_eq_u32", s(STICK), 16), raw("s_cbranch_scc1 L_pv_tail", "branch")] + l1 + \
            [raw("s_branch L_pv_loop", "branch")]
    h1 = pad_hazards(loop, pp[-40:])
    h2 = pad_hazards(h1, h1[-40:])
    assert len(h1) == len(h2)
    T.append(".p2align 6\nL_pv_loop:\n" + render(h1))
    STM_STATE["m"] = ENV("ST_TAIL", ST_MODS)
    fin = stamp(58) + stamp(57, True) + [raw(f"s_setprio {ENV('TP', '2')}", "salu")] + pv_tick(1, ENV("TMODE", "0"), noq=True) + [barrier()] + \
        tick_stamps() + inc + pv_last() + diag_end()
    fin, _ = finalize(fin, [], [])
    T.append("L_pv_tail:\n    s_nop 7\n    s_nop 7\n" + render(fin))
    return "\n".join(T)


HEADER = """; Kernarg layout for this problem (48 bytes, ptrs only, base s[0:1]):
; @launch grid=(256,1,1) block=(512,1,1) lds={lds}
.amdgcn_target "amdgcn-amd-amdhsa--gfx950"
.text
.globl {name}_kernel
.p2align 8
.type {name}_kernel,@function
{name}_kernel:
"""

FOOTER = """
L_end:
    s_endpgm
.section .rodata,"a"
.p2align 6
.amdhsa_kernel {name}_kernel
  .amdhsa_next_free_vgpr 256
  .amdhsa_next_free_sgpr 64
  .amdhsa_accum_offset 256
  .amdhsa_group_segment_fixed_size 0
  .amdhsa_kernarg_size 48
  .amdhsa_user_sgpr_count 2
  .amdhsa_user_sgpr_kernarg_segment_ptr 1
  .amdhsa_system_sgpr_workgroup_id_x 1
.end_amdhsa_kernel
"""


def assemble_sizes(path):
    import subprocess
    subprocess.run(["clang", "-x", "assembler", "-target", "amdgcn-amd-amdhsa", "-mcpu=gfx950",
                    "-c", path, "-o", path + ".o"], check=True)
    out = subprocess.run(["llvm-objdump", "-t", path + ".o"], capture_output=True, text=True).stdout
    sym = {}
    for line in out.splitlines():
        f = line.split()
        if len(f) >= 5 and f[-1].startswith("L_"):
            sym[f[-1]] = int(f[0], 16)
    os.remove(path + ".o")
    return sym


def main():
    out = sys.argv[1] if len(sys.argv) > 1 else f"cdna_kernels/{NAME}.s"
    prev = None
    for it in range(6):
        txt = HEADER.format(name=NAME, lds=LDS_BYTES) + build() + FOOTER.format(name=NAME)
        open(out, "w").write(txt)
        sym = assemble_sizes(out)
        cur = dict(size=sym["L_end"] + 4, qk_tail=sym["L_qk_tail"], pv=sym["L_pv"], pv_tail=sym["L_pv_tail"])
        if cur == prev:
            break
        prev = cur
        CODE.update(cur)
    else:
        raise RuntimeError("code size did not converge")
    print(f"wrote {out}: {txt.count(chr(10))} lines, code {cur}")


if __name__ == "__main__":
    main()
```
